```python
import torch

def _softmax(x, axis=-1):
    return torch.softmax(x, dim=axis)
def _gelu(x):
    return torch.nn.functional.gelu(x, approximate="tanh")
def _silu(x):
    return torch.nn.functional.silu(x)
def _sigmoid(x):
    return torch.sigmoid(x)
def _layernorm(x, axis=-1, eps=1e-5):
    m = x.mean(dim=axis, keepdim=True)
    v = x.var(dim=axis, keepdim=True, unbiased=False)
    return (x - m) / torch.sqrt(v + eps)
def _scatter_add(tgt, idx, src, axis=0):
    return tgt.clone().index_add_(axis, idx, src)
def _segment_sum(src, seg, n):
    out = torch.zeros((n,) + src.shape[1:], dtype=src.dtype)
    return out.index_add_(0, seg, src)
def _pad(x, pw):
    flat = tuple(v for pair in reversed(pw) for v in pair)
    return torch.nn.functional.pad(x, flat)

kernel_name = 'concat_heads__mha_block_cached__gqa_block_cached__near_ridge'

def setup_inputs():

    _w = (lambda a: (lambda t: t.to(torch.bfloat16) if t.is_floating_point() else t)(torch.as_tensor(a)))
    def _A_setup():
        B, Sq, D = 8, 240, 576
        H, Sk, Dh = 32, 1024, 128
        return {
            "x": _w((lambda *s: torch.randn(*s, dtype=torch.bfloat16) * 0.8)(B, Sq, D)),
            "k_cache": _w((lambda *s: torch.randn(*s, dtype=torch.bfloat16) * 0.8)(B, H, Sk, Dh)),
            "v_cache": _w((lambda *s: torch.randn(*s, dtype=torch.bfloat16) * 0.05)(B, H, Sk, Dh)),
            "wq": _w((lambda *s: torch.randn(*s, dtype=torch.bfloat16) * 0.8)(D, H * Dh) * (D ** -0.5)),
            "wo": _w((lambda *s: torch.randn(*s, dtype=torch.bfloat16) * 0.05)(H * Dh, D) * ((H * Dh) ** -0.5)),
        }
    _A_in = _A_setup()

    def _B_setup():
        B, Sq, D = 8, 240, 576
        Hq, Hkv, Sk, Dh = 32, 32, 1024, 128
        assert Hq % Hkv == 0, (Hq, Hkv)
        return {
            "x": _w((lambda *s: torch.randn(*s, dtype=torch.bfloat16) * 0.8)(B, Sq, D)),
            "k_cache": _w((lambda *s: torch.randn(*s, dtype=torch.bfloat16) * 0.8)(B, Hkv, Sk, Dh)),
            "v_cache": _w((lambda *s: torch.randn(*s, dtype=torch.bfloat16) * 0.05)(B, Hkv, Sk, Dh)),
            "wq": _w((lambda *s: torch.randn(*s, dtype=torch.bfloat16) * 0.8)(D, Hq * Dh) * (D ** -0.5)),
            "wo": _w((lambda *s: torch.randn(*s, dtype=torch.bfloat16) * 0.05)(Hq * Dh, D) * ((Hq * Dh) ** -0.5)),
        }
    _B_in = _B_setup()

    return {
        "A_x": _A_in["x"],
        "A_k_cache": _A_in["k_cache"],
        "A_v_cache": _A_in["v_cache"],
        "A_wq": _A_in["wq"],
        "A_wo": _A_in["wo"],
        "B_x": _B_in["x"],
        "B_k_cache": _B_in["k_cache"],
        "B_v_cache": _B_in["v_cache"],
        "B_wq": _B_in["wq"],
        "B_wo": _B_in["wo"],
    }

def reference(A_x, A_k_cache, A_v_cache, A_wq, A_wo, B_x, B_k_cache, B_v_cache, B_wq, B_wo):
    def _A_ref(x, k_cache, v_cache, wq, wo):
        B, Sq, D = x.shape
        H, Dh = 32, 128
        q = (lambda x, *d: x.permute(*d))((x @ wq).reshape(B, Sq, H, Dh), 0, 2, 1, 3)
        scores = torch.einsum("bhqd,bhkd->bhqk", q, k_cache) * (Dh ** -0.5)
        p = _softmax(scores, axis=-1)
        o = torch.einsum("bhqk,bhkd->bhqd", p, v_cache)
        return (lambda x, *d: x.permute(*d))(o, 0, 2, 1, 3).reshape(B, Sq, H * Dh) @ wo

    def _B_ref(x, k_cache, v_cache, wq, wo):
        B, Sq, D = x.shape
        Hq, Dh = 32, 128
        Hkv = k_cache.shape[1]
        rep = Hq // Hkv
        q = (lambda x, *d: x.permute(*d))((x @ wq).reshape(B, Sq, Hq, Dh), 0, 2, 1, 3)
        k = (lambda x, n, axis: torch.repeat_interleave(x, n, dim=axis))(k_cache, rep, axis=1)
        v = (lambda x, n, axis: torch.repeat_interleave(x, n, dim=axis))(v_cache, rep, axis=1)
        scores = torch.einsum("bhqd,bhkd->bhqk", q, k) * (Dh ** -0.5)
        p = _softmax(scores, axis=-1)
        o = torch.einsum("bhqk,bhkd->bhqd", p, v)
        return (lambda x, *d: x.permute(*d))(o, 0, 2, 1, 3).reshape(B, Sq, Hq * Dh) @ wo

    a = _A_ref(A_x, A_k_cache, A_v_cache, A_wq, A_wo)
    b = _B_ref(B_x, B_k_cache, B_v_cache, B_wq, B_wo)
    return torch.concatenate([a, b], axis=-1)
```

```python
import re

class Reg:
    def __init__(self, f, i, n=1):
        self.f, self.i, self.n = f, i, n
    def __str__(self):
        if self.f in ('vcc', 'm0', 'exec', 'scc'):
            return self.f
        return f"{self.f}{self.i}" if self.n == 1 else f"{self.f}[{self.i}:{self.i+self.n-1}]"
    def regs(self):
        return [(self.f, self.i + k) for k in range(self.n)]
    def sub(self, off, n=1):
        assert off + n <= self.n, (str(self), off, n)
        return Reg(self.f, self.i + off, n)
    def __getitem__(self, k):
        return self.sub(k, 1)

def V(i, n=1): return Reg('v', i, n)
def A(i, n=1): return Reg('a', i, n)
def S(i, n=1): return Reg('s', i, n)
VCC = Reg('vcc', 0, 1)
M0 = Reg('m0', 0, 1)
EXEC = Reg('exec', 0, 1)
SCC = Reg('scc', 0, 1)

def regs_of(xs):
    out = []
    for x in xs:
        if isinstance(x, Reg):
            out += x.regs()
    return out

TRANS = ('v_exp_f32', 'v_rcp_f32', 'v_log_f32', 'v_rsq_f32', 'v_sqrt_f32')

class I:
    __slots__ = ('op', 'text', 'kind', 'rd', 'wr', 'a', 'b', 'c', 'lds_rd', 'lds_wr', 'wait', 'passes', 'val', 'wide', 'cmt')
    def __init__(self, op, text, kind, rd=(), wr=(), **kw):
        self.op, self.text, self.kind = op, text, kind
        self.rd, self.wr = regs_of(rd), regs_of(wr)
        self.a = self.b = self.c = None
        self.lds_rd = kw.get('lds_rd')
        self.lds_wr = kw.get('lds_wr')
        self.wait = kw.get('wait')
        self.passes = kw.get('passes', 0)
        self.val = None
        self.wide = kw.get('wide', False)
        self.cmt = kw.get('cmt')
    def render(self):
        if self.kind == 'wait':
            vm, lg = self.val
            parts = []
            if vm is not None: parts.append(f"vmcnt({vm})")
            if lg is not None: parts.append(f"lgkmcnt({lg})")
            if not parts:
                return "    s_nop 0"
            return "    s_waitcnt " + " ".join(parts)
        if self.kind == 'label':
            return self.text
        t = "    " + self.text
        if self.cmt: t += "  ; " + self.cmt
        return t

class Loop:
    def __init__(self, body, count):
        self.body, self.count = body, count

def fmt(x):
    if isinstance(x, float):
        return repr(x)
    return str(x)

def label(name): return I('label', name + ":", 'label')
def raw(text, kind='salu', rd=(), wr=()): return I(text.split()[0], text, kind, rd, wr)

def salu(op, dst, *src, scc=True):
    wr = [dst] + ([SCC] if scc else [])
    return I(op, f"{op} {dst}, " + ", ".join(fmt(s) for s in src), 'salu', src, wr)
def s_mov(dst, src): return salu('s_mov_b32', dst, src, scc=False)
def s_cmp(op, a, b): return I(op, f"{op} {fmt(a)}, {fmt(b)}", 'salu', [a, b], [SCC])
def s_branch(op, target): return I(op, f"{op} {target}", 'branch', [VCC] if 'vcc' in op else [SCC] if 'scc' in op else [])
def s_nop(n):
    i = I('s_nop', f"s_nop {n}", 'nop'); i.val = n + 1; return i
def s_barrier(): return I('s_barrier', 's_barrier', 'barrier')

def valu(op, dst, *src, extra_rd=(), extra_wr=(), mods=""):
    rd = [s for s in src if isinstance(s, Reg)] + list(extra_rd)
    kind = 'trans' if op in TRANS else 'valu'
    return I(op, f"{op} {dst}, " + ", ".join(fmt(s) for s in src) + mods, kind, rd, [dst] + list(extra_wr))
class Neg:
    def __init__(self, r): self.r = r
    def __str__(self): return "-" + str(self.r)
def valu_n(op, dst, *src):
    rd = [s.r if isinstance(s, Neg) else s for s in src if isinstance(s, (Reg, Neg))]
    kind = 'trans' if op in TRANS else 'valu'
    return I(op, f"{op} {dst}, " + ", ".join(fmt(s) for s in src), kind, rd, [dst])
def v_cmp(op, a, b): return I(op, f"{op} vcc, {fmt(a)}, {fmt(b)}", 'valu', [a, b], [VCC])
def permswap(a, b): return I('v_permlane32_swap_b32', f"v_permlane32_swap_b32 {a}, {b}", 'perm', [a, b], [a, b])
def readfirstlane(dst, src): return I('v_readfirstlane_b32', f"v_readfirstlane_b32 {dst}, {src}", 'rfl', [src], [dst])

def mfma(d, a, b, c, shape='32x32x16'):
    op = f"v_mfma_f32_{shape}_bf16"
    i = I(op, f"{op} {d}, {a}, {b}, {fmt(c)}", 'mfma', [a, b, c], [d], passes=8 if shape == '32x32x16' else 4)
    i.a, i.b, i.c = a, b, (c if isinstance(c, Reg) else None)
    i.val = d
    return i

def ds_read(op, dst, addr, off, slot):
    assert 0 <= off < 65536, off
    return I(op, f"{op} {dst}, {addr} offset:{off}", 'ds', [addr], [dst], lds_rd=slot)
def ds_write(op, addr, src, off, slot):
    assert 0 <= off < 65536, off
    return I(op, f"{op} {addr}, {src} offset:{off}", 'ds', [addr, src], [], lds_wr=slot)

def buf_load(op, dst, voff, srd, soff, off, flags=""):
    assert 0 <= off < 4096, off
    return I(op, f"{op} {dst}, {voff}, {srd}, {fmt(soff)} offen offset:{off}{flags}", 'vmem', [voff, srd, soff], [dst])
def buf_dma(voff, srd, soff, off, slot, flags=""):
    assert 0 <= off < 4096, off
    return I('buffer_load_dwordx4', f"buffer_load_dwordx4 {voff}, {srd}, {fmt(soff)} offen offset:{off}{flags} lds", 'dma',
             [voff, srd, soff, M0], [], lds_wr=slot)
def buf_store(op, src, voff, srd, soff, off, flags=""):
    assert 0 <= off < 4096, off
    return I(op, f"{op} {src}, {voff}, {srd}, {fmt(soff)} offen offset:{off}{flags}", 'vstore', [src, voff, srd, soff], [],
             wide=(src.n >= 3))
def s_load(op, dst, base, off):
    return I(op, f"{op} {dst}, {base}, {off}", 'smem', [base], [dst])

def wait(vm=None, lg=None):
    return I('s_waitcnt', '', 'wait', wait=(vm, lg))

def expand(prog):
    out = []
    for x in prog:
        if isinstance(x, Loop):
            for _ in range(x.count):
                out += expand(x.body)
        else:
            out.append(x)
    return out

def flatten(prog):
    out = []
    for x in prog:
        if isinstance(x, Loop):
            out += flatten(x.body)
        else:
            out.append(x)
    return out

def _res_set(res):
    rs, slots = set(), set()
    for r in res:
        if isinstance(r, Reg): rs.update(r.regs())
        else: slots.add(r)
    return rs, slots

def _hits(op, rs, slots, counter):
    if rs & set(op.wr): return True
    if counter == 'vm':
        if op.lds_wr in slots: return True
        if op.kind == 'vstore' and rs & set(op.rd): return True
    else:
        if op.lds_rd in slots or op.lds_wr in slots: return True
    return False

def resolve_waits(trace):
    best = {}
    def need(q, res, counter):
        if res is None: return None
        if isinstance(res, int): return res
        rs, slots = _res_set(res)
        for k in range(len(q) - 1, -1, -1):
            if _hits(q[k], rs, slots, counter):
                return len(q) - 1 - k
        return None
    vq, lq = [], []
    for ins in trace:
        if ins.kind in ('vmem', 'dma', 'vstore'): vq.append(ins)
        elif ins.kind == 'ds': lq.append(ins)
        elif ins.kind == 'wait':
            vm, lg = need(vq, ins.wait[0], 'vm'), need(lq, ins.wait[1], 'lg')
            old = best.get(id(ins), (None, None))
            def mn(a, b):
                if a is None: return b
                if b is None: return a
                return min(a, b)
            best[id(ins)] = (mn(old[0], vm), mn(old[1], lg))
    for ins in trace:
        if ins.kind == 'wait':
            vm, lg = best[id(ins)]
            if vm is not None: vm = min(vm, 63)
            if lg is not None: lg = min(lg, 15)
            ins.val = (vm, lg)

def check(trace, name="", shared_lds=True):
    errs = []
    vq, lq = [], []
    smem_pending = set()
    epoch = 0
    dma_retired_epoch = {}
    rd_retired_epoch = {}
    pos = 0
    last_valu_wr = {}; last_trans_wr = {}; last_mfma_wr = {}; last_mfma_c = {}; last_valu_sgpr = {}; last_store_rd = {}
    last_m0 = -100
    def err(i, ins, msg): errs.append(f"{name}[{i}] {ins.text or ins.op}: {msg}")
    for i, ins in enumerate(trace):
        k = ins.kind
        if k == 'label': continue
        if k == 'wait':
            vm, lg = ins.val
            if vm is not None:
                while len(vq) > vm:
                    o = vq.pop(0)
                    if o.lds_wr: dma_retired_epoch[o.lds_wr] = epoch
            if lg is not None:
                while len(lq) > lg:
                    o = lq.pop(0)
                    if o.lds_rd: rd_retired_epoch[o.lds_rd] = epoch
                    if o.lds_wr: dma_retired_epoch[o.lds_wr] = epoch
                if lg == 0: smem_pending.clear()
            pos += 1
            continue
        if k == 'barrier':
            epoch += 1; pos += 1
            continue
        if k == 'nop':
            pos += ins.val
            continue
        touched = set(ins.rd) | set(ins.wr)
        for o in vq + lq:
            if set(o.wr) & touched: err(i, ins, f"touches pending load dest of: {o.text}")
        for o in vq:
            if o.kind == 'vstore' and ins.kind in ('vmem', 'ds') and set(o.rd) & set(ins.wr) and False:
                pass
        for o in lq:
            if o.lds_wr and o.op.startswith('ds_write') and False: pass
        if smem_pending & touched: err(i, ins, "touches pending s_load dest")
        if len(vq) > 63: err(i, ins, "more than 63 vmem outstanding")
        if ins.lds_rd:
            s = ins.lds_rd
            if any(o.lds_wr == s for o in vq + lq): err(i, ins, f"reads slot {s} with own pending write")
            elif shared_lds and not s.startswith('priv') and dma_retired_epoch.get(s, -1) >= epoch: err(i, ins, f"reads slot {s} without barrier after write retire")
        if ins.lds_wr:
            s = ins.lds_wr
            if any(o.lds_rd == s for o in lq): err(i, ins, f"writes slot {s} with own pending read")
            elif shared_lds and not s.startswith('priv') and rd_retired_epoch.get(s, -1) >= epoch: err(i, ins, f"writes slot {s} without barrier after read retire")
        def dist(d, r): return pos - d.get(r, -1000) - 1
        if k == 'mfma':
            for r in ins.rd:
                if dist(last_valu_wr, r) < 2: err(i, ins, f"VALU->MFMA {r} dist {dist(last_valu_wr, r)}")
            for part in (ins.a, ins.b):
                for r in part.regs():
                    if r in last_mfma_wr and pos - last_mfma_wr[r][0] - 1 < last_mfma_wr[r][1] + 4: err(i, ins, f"MFMA->MFMA AB {r}")
            if ins.c is not None:
                for r in ins.c.regs():
                    if r in last_mfma_wr:
                        p, passes, d = last_mfma_wr[r]
                        same = (d.f, d.i, d.n) == (ins.c.f, ins.c.i, ins.c.n) and passes == ins.passes
                        if not same and pos - p - 1 < passes + 2: err(i, ins, f"MFMA->MFMA C overlap {r}")
            for r in ins.wr:
                if r in last_mfma_wr:
                    p, passes, d = last_mfma_wr[r]
                    same = ins.c is not None and (d.f, d.i, d.n) == (ins.c.f, ins.c.i, ins.c.n)
                    if not same and pos - p - 1 < passes + 2: err(i, ins, f"MFMA WAW {r}")
        else:
            chk = touched if k in ('valu', 'trans', 'perm', 'rfl') else (set(ins.rd) | set(ins.wr))
            for r in chk:
                if r in last_mfma_wr and pos - last_mfma_wr[r][0] - 1 < last_mfma_wr[r][1] + 4:
                    err(i, ins, f"MFMA->use {r} dist {pos - last_mfma_wr[r][0] - 1}")
        if k in ('valu', 'trans', 'perm', 'rfl'):
            for r in ins.wr:
                if r in last_mfma_c and pos - last_mfma_c[r][0] - 1 < last_mfma_c[r][1] - 1: err(i, ins, f"MFMA C WAR {r}")
                if dist(last_store_rd, r) < 2: err(i, ins, f"store data WAR {r}")
            for r in ins.rd:
                if r[0] in ('s', 'vcc') and dist(last_valu_sgpr, r) < 2: err(i, ins, f"VALU sgpr->VALU {r}")
            if k != 'trans':
                for r in ins.rd:
                    if dist(last_trans_wr, r) < 1: err(i, ins, f"trans->VALU {r}")
            if k == 'perm':
                for r in ins.rd:
                    if dist(last_valu_wr, r) < 2: err(i, ins, f"VALU->permlane {r}")
            if k == 'rfl':
                for r in ins.rd:
                    if dist(last_valu_wr, r) < 1: err(i, ins, f"VALU->readfirstlane {r}")
        if k in ('vmem', 'ds') :
            for r in ins.wr:
                if dist(last_store_rd, r) < 1: err(i, ins, f"store data WAR(load) {r}")
        if k in ('vmem', 'dma', 'vstore'):
            for r in ins.rd:
                if r[0] == 's' and dist(last_valu_sgpr, r) < 5: err(i, ins, f"VALU sgpr->VMEM {r}")
        if k == 'dma' and pos - last_m0 - 1 < 1: err(i, ins, "M0->DMA")
        if k == 'salu':
            for r in ins.rd:
                if r[0] == 's' and dist(last_valu_sgpr, r) < 1: err(i, ins, f"VALU sgpr->SALU {r} (pad)")
        if k in ('valu', 'trans', 'perm', 'rfl'):
            for r in ins.wr:
                if r[0] in ('s', 'vcc'): last_valu_sgpr[r] = pos
                else: last_valu_wr[r] = pos
                if k == 'trans': last_trans_wr[r] = pos
                last_mfma_wr.pop(r, None)
        if k == 'mfma':
            for r in ins.wr: last_mfma_wr[r] = (pos, ins.passes, ins.val)
            if ins.c is not None:
                for r in ins.c.regs(): last_mfma_c[r] = (pos, ins.passes)
        if k == 'vstore' and ins.wide:
            for r in ins.rd:
                if r[0] in ('v', 'a'): last_store_rd[r] = pos
        if ('m0', 0) in ins.wr: last_m0 = pos
        if k in ('vmem', 'dma', 'vstore'): vq.append(ins)
        if k == 'ds': lq.append(ins)
        if k == 'smem': smem_pending.update(ins.wr)
        pos += 1
    return errs

def render(prog):
    return "\n".join(x.render() for x in flatten(prog))
```

```python
from asmlib import *
O_BYTES = 60 * 256 * 1024
DEPTH = 7

def set_srd(srd, base, off_lo, nbytes):
    return [salu('s_add_u32', srd[0], base[0], off_lo), salu('s_addc_u32', srd[1], base[1], 0),
            s_mov(srd[2], nbytes), s_mov(srd[3], 0x20000)]

def kernel2(OPT):
    sWO = [S(4, 2), S(6, 2)]; sOUT, sWS = S(8, 2), S(10, 2); sWOP = S(12, 2)
    srdO, srdW, srdOut = S(16, 4), S(20, 4), S(24, 4)
    sW, sP, sMT, sNG, sT0, sT1, sT2 = S(28), S(29), S(30), S(31), S(32), S(33), S(34)
    sOO = [S(35), S(36)]; sWOFF, sLB, sLOOP = S(37), S(38), S(39)
    sR1, sR2 = S(40), S(41)
    vTID = V(0)
    vOa = [V(1), V(2), V(3)]; vWd = [V(4), V(5), V(6)]; vWr = V(7); vEw = [V(8), V(9)]; vEr = V(10); vOut = V(11)
    l, hi, t0, t1, t2, t3 = V(12), V(13), V(14), V(15), V(16), V(17)
    def acc(nt, m): return A((nt * 3 + m) * 16, 16)
    def Of(slot, m): return V(64 + (slot * 3 + m) * 4, 4)
    def Wf(buf, nt): return V(160 + (buf * 3 + nt) * 4, 4)
    o = [s_cmp('s_cmp_ge_u32', S(2), 240), s_branch('s_cbranch_scc1', 'L_k2_end')]
    o += [s_load('s_load_dwordx2', sWO[0], S(0, 2), 32), s_load('s_load_dwordx2', sWO[1], S(0, 2), 72),
          s_load('s_load_dwordx2', sOUT, S(0, 2), 80), s_load('s_load_dwordx2', sWS, S(0, 2), 96)]
    o += [salu('s_bfe_u32', sP, S(2), 0x10002), salu('s_lshr_b32', sT0, S(2), 3), salu('s_mul_i32', sT1, sT0, 43, scc=False),
          salu('s_lshr_b32', sT1, sT1, 8), salu('s_mul_i32', sT2, sT1, 6, scc=False), salu('s_sub_u32', sNG, sT0, sT2),
          salu('s_and_b32', sT0, S(2), 3), salu('s_mul_i32', sT0, sT0, 5, scc=False), salu('s_add_u32', sMT, sT0, sT1)]
    o += [valu('v_lshrrev_b32', t0, 6, vTID), valu('v_and_b32', l, 63, vTID), readfirstlane(sW, t0), valu('v_lshrrev_b32', hi, 5, l), s_nop(0),
          salu('s_mul_i32', sLB, sW, 8 * 3072, scc=False)]
    for i in range(3):
        o += [valu('v_lshlrev_b32', t0, 4, l), valu('v_add_u32', vOa[i], i * 262144, t0)]
    for u in range(3):
        o += [valu('v_add_u32', t0, 64 * u, l), valu('v_mul_u32_u24', t1, 171, t0), valu('v_lshrrev_b32', t1, 11, t1),
              valu('v_mul_u32_u24', t2, 12, t1), valu('v_sub_u32', t2, t0, t2), valu('v_mul_u32_u24', t1, 1152, t1),
              valu('v_lshl_add_u32', t1, t2, 4, t1), valu('v_subrev_u32', vWd[u], 1024 * u, t1)]
    o += [valu('v_bfe_u32', t0, l, 2, 2), valu('v_lshl_add_u32', t0, hi, 2, t0), valu('v_mul_u32_u24', t0, 192, t0),
          valu('v_bfe_u32', t1, l, 4, 1), valu('v_and_b32', t2, 3, l), valu('v_lshl_add_u32', t1, t1, 2, t2), valu('v_mul_u32_u24', t1, 24, t1),
          valu('v_add3_u32', vWr, t0, t1, sLB)]
    o += [salu('s_mul_i32', sT0, sW, 9216, scc=False), valu('v_lshlrev_b32', t0, 4, l), valu('v_add_u32', vEw[0], sT0, t0),
          valu('v_add_u32', vEw[1], 73728, vEw[0]), salu('s_mul_i32', sT0, sW, 36864, scc=False), valu('v_add_u32', vEr, sT0, t0)]
    o += [salu('s_mul_i32', sT0, sMT, 96 * 2304, scc=False), salu('s_mul_i32', sT1, sP, 1152, scc=False), salu('s_add_u32', sT0, sT0, sT1),
          salu('s_mul_i32', sT1, sNG, 192, scc=False), salu('s_add_u32', sT0, sT0, sT1), salu('s_mul_i32', sT1, sW, 48, scc=False),
          salu('s_add_u32', sT0, sT0, sT1), valu('v_and_b32', t0, 31, l), valu('v_mul_u32_u24', t0, 2304, t0),
          valu('v_mul_u32_u24', t1, 24, hi), valu('v_add3_u32', vOut, t0, t1, sT0), s_mov(sR1, 32 * 2304), s_mov(sR2, 64 * 2304)]
    o += [raw("s_waitcnt lgkmcnt(0)", 'salu'), wait(lg=0)]
    o += [s_cmp('s_cmp_eq_u32', sP, 0), I('s_cselect_b64', f"s_cselect_b64 {sWOP}, {sWO[0]}, {sWO[1]}", 'salu', [sWO[0], sWO[1], SCC], [sWOP])]
    o += [salu('s_mul_i32', sT0, sP, O_BYTES, scc=False), salu('s_mul_i32', sT1, sMT, 3 * 262144, scc=False), salu('s_add_u32', sT0, sT0, sT1),
          salu('s_lshl_b32', sT1, sW, 16), salu('s_add_u32', sT0, sT0, sT1)]
    o += set_srd(srdO, sWS, sT0, 2 * 262144 + 65536)
    o += [salu('s_mul_i32', sT0, sNG, 192, scc=False), salu('s_mul_i32', sT1, sW, 1024 * 1152, scc=False), salu('s_add_u32', sT0, sT0, sT1),
          salu('s_sub_u32', sT1, 4096 * 1152, sT0)]
    o += set_srd(srdW, sWOP, sT0, sT1)
    o += set_srd(srdOut, sOUT, 0, 1920 * 2304)
    o += [s_mov(sOO[0], 0), s_mov(sOO[1], 4096), s_mov(sWOFF, 0)]

    def loads(k):
        sl = k % 8
        r = [salu('s_add_u32', M0, sLB, sl * 3072)]
        r += [buf_load('buffer_load_dwordx4', Of(sl, m), vOa[m], srdO, sOO[sl // 4], (sl % 4) * 1024) for m in range(3)]
        r += [buf_dma(vWd[u], srdW, sWOFF, 1024 * u, f"priv{sl}") for u in range(3)]
        r += [salu('s_add_u32', sWOFF, sWOFF, 18432)]
        if sl % 4 == 3: r += [salu('s_add_u32', sOO[sl // 4], sOO[sl // 4], 8192)]
        return r
    def reads(k):
        sl = k % 8
        return [ds_read('ds_read_b64_tr_b16', Wf(k % 2, nt).sub(2 * h, 2), vWr, sl * 3072 + h * 8 * 192 + 8 * nt, f"priv{sl}")
                for nt in range(3) for h in range(2)]
    def step(k, first=False, ld=True, rd=True):
        sl = k % 8
        out = [wait(vm=[Of(sl, m) for m in range(3)] + ([f"priv{(k + 1) % 8}"] if rd else []), lg=[Wf(k % 2, nt) for nt in range(3)])]
        gaps = [[] for _ in range(9)]
        if rd:
            for i, ins in enumerate(reads(k + 1)): gaps[i].append(ins)
        if ld:
            for i, ins in enumerate(loads(k + DEPTH)): gaps[min(i, 8)].append(ins)
        i = 0
        for nt in range(3):
            for m in range(3):
                out.append(mfma(acc(nt, m), Wf(k % 2, nt), Of(sl, m), acc(nt, m)))
                out += gaps[i]; i += 1
        return out
    for k in range(DEPTH): o += loads(k)
    for i in range(144): o.append(valu('v_accvgpr_write_b32', A(i), 0))
    o += [wait(vm=['priv0'])] + reads(0)
    body = [label('L_k2_loop')]
    for k in range(8): body += step(k)
    body += [salu('s_sub_u32', sLOOP, sLOOP, 1), s_cmp('s_cmp_lg_u32', sLOOP, 0), s_branch('s_cbranch_scc1', 'L_k2_loop')]
    o += [s_mov(sLOOP, 7), Loop(body, 7)]
    for k in range(56, 64): o += step(k, ld=(k + DEPTH < 64), rd=(k < 63))
    o += [s_nop(7), s_barrier()]
    for T in range(9):
        for d in range(4):
            o.append(ds_write('ds_write_b128', vEw[d // 2], A(T * 16 + 4 * d, 4), (d % 2) * 36864 + T * 1024, 'X'))
    o += [wait(lg=0), s_barrier()]
    def part(s, T): return V(32 + (s * 9 + T) * 4, 4)
    order = [nt * 3 + m for m in range(3) for nt in range(3)]
    for T in order:
        for s in range(4): o.append(ds_read('ds_read_b128', part(s, T), vEr, s * 9216 + T * 1024, 'X'))
    for m in range(3):
        pk = V(192 + m * 8, 6)
        for nt in range(3):
            T = nt * 3 + m
            o.append(wait(lg=[part(s, T) for s in range(4)]))
            for i in range(4):
                o += [valu('v_add_f32', part(0, T)[i], part(0, T)[i], part(1, T)[i]), valu('v_add_f32', part(2, T)[i], part(2, T)[i], part(3, T)[i])]
            for i in range(4): o.append(valu('v_add_f32', part(0, T)[i], part(0, T)[i], part(2, T)[i]))
            for i in range(2): o.append(valu('v_cvt_pk_bf16_f32', pk[2 * nt + i], part(0, T)[2 * i], part(0, T)[2 * i + 1]))
        so = [0, sR1, sR2][m]
        o += [buf_store('buffer_store_dwordx2', pk.sub(2 * i, 2), vOut, srdOut, so, 8 * i) for i in range(3)]
    o += [label('L_k2_end'), raw('s_endpgm')]
    return o
```

```python
import sys, os, math, struct
from asmlib import *

NAME = "concat_heads__mha_block_cached__gqa_block_cached__near_ridge"
OPT = dict(stamp=0, nt=1, nodma=0, noexp=0, k2=1, k1=1)
for a in sys.argv[2:]:
    k, v = a.split('=')
    OPT[k] = int(v)

def f2u(x): return struct.unpack('<I', struct.pack('<f', x))[0]
O_BYTES = 60 * 256 * 1024
KVNT = " nt" if OPT['nt'] else ""

sPTR = S(4, 26)
def ptr(p, i): return S(4 + 10 * p + 2 * i, 2)
sDBG, sWS = S(26, 2), S(28, 2)
sRET = S(30, 2)
srdK, srdV, srdX, srdW, srdO = S(32, 4), S(36, 4), S(40, 4), S(44, 4), S(48, 4)
sW, sB, sH, sLOOP, sITEM, sKOFF, sVOFF, sW4K = S(52), S(53), S(54), S(55), S(56), S(57), S(58), S(59)
sTHR, sSCALE, sWOFF, sT0, sT1, s4096 = S(60), S(62, 2), S(64), S(65), S(66), S(67)
sSTAMP = S(70, 2)
sBH = S(68)
vTID = V(0)
vKr = [V(1 + i) for i in range(8)]
vVr = [V(9 + i) for i in range(4)]
vWr = [V(13 + i) for i in range(4)]
vKd = [V(17 + i) for i in range(4)]
vVd, vWd = V(21), V(22)
vX = [V(23), V(24)]
vO = [V(25), V(26)]
vL = [V(27), V(28)]
vT = [V(29), V(30), V(31)]
def Sreg(par, qt): return V(32 + par * 32 + qt * 16, 16)
def Preg(par, qt, ks): return V(96 + par * 16 + qt * 8 + ks * 4, 4)
def negM(qt): return V(128 + qt * 16, 16)
def Qreg(qt, s): return V(160 + qt * 32 + s * 4, 4)
def QACC(dt, qt): return V(32 + (dt * 2 + qt) * 16, 16)
vE = [V(224 + i) for i in range(6)]
def vLS(par, qt): return V(230 + par * 2 + qt)
vU = [V(234 + i) for i in range(8)]
def Oacc(dt, qt): return A((dt * 2 + qt) * 16, 16)
def Kf(s): return A(128 + 4 * s, 4)
def Vf(ks, dt): return A(160 + (ks * 4 + dt) * 4, 4)
def Xf(buf, qt, ks): return A([192, 224, 128][buf] + (qt * 4 + ks) * 4, 4)
def wq_slot(c): return ['V2', 'V3', 'W0', 'W1'][(c + 2) % 4]
def wq_buf(c): return (c + 2) % 4

def stamp(idx):
    if not OPT['stamp']: return []
    return [raw(f"s_memtime {sSTAMP}", 'salu', [], [sSTAMP]), raw("s_waitcnt lgkmcnt(0)", 'salu'),
            valu('v_mov_b32', vU[6], sSTAMP[0]), valu('v_mov_b32', vU[7], idx * 4),
            raw(f"s_nop 0", 'salu'),
            raw(f"buffer_store_dword {vU[6]}, {vU[7]}, s[72:75], s76 offen", 'salu')]

def dma_K(slot):
    if OPT['nodma']: return []
    return [salu('s_add_u32', M0, sW4K, slot * 16384)] + \
           [buf_dma(vKd[n], srdK, sKOFF, 1024 * n, f"K{slot}", KVNT) for n in range(4)] + \
           [salu('s_add_u32', sKOFF, sKOFF, 16384)]
def dma_V(slot):
    if OPT['nodma']: return []
    return [salu('s_add_u32', M0, sW4K, 65536 + slot * 16384)] + \
           [buf_dma(vVd, srdV, sVOFF, 1024 * n, f"V{slot}", KVNT) for n in range(4)] + \
           [salu('s_add_u32', sVOFF, sVOFF, 16384)]
def dma_W(c):
    out = [salu('s_add_u32', M0, sW4K, 98304 + wq_buf(c) * 16384)]
    for n in range(4):
        out.append(s_mov(sWOFF, c * 64 * 8192 + n * (32768 - 1024)))
        out.append(buf_dma(vWd, srdW, sWOFF, 1024 * n, wq_slot(c)))
    return out
def load_X(c):
    return [buf_load('buffer_load_dwordx4', Xf(c % 3, qt, ks), vX[qt], srdX, 0, c * 128 + ks * 32)
            for qt in range(2) for ks in range(4)]

def rd_K(sub, s):
    sub %= 8
    return ds_read('ds_read_b128', Kf(s), vKr[s], (sub // 2) * 16384 + (sub % 2) * 8192, f"K{sub // 2}")
def rd_V(sub, ks, dt, h):
    sub %= 8
    return ds_read('ds_read_b64_tr_b16', Vf(ks, dt).sub(2 * h, 2), vVr[dt],
                   (sub // 2) * 16384 + ((sub % 2) * 32 + ks * 16 + h * 8) * 256, f"V{sub // 2}")
def rd_W(c, ks, dt, h):
    return ds_read('ds_read_b64_tr_b16', Vf(ks % 2, dt).sub(2 * h, 2), vWr[dt],
                   wq_buf(c) * 16384 + (16 * ks + 4 * h) * 256, wq_slot(c))

def interleave(mf, gaps):
    out = []
    for g in range(len(gaps)):
        if mf[g] is not None: out.append(mf[g])
        elif not out or out[-1].kind == 'trans': out.append(s_nop(0))
        out += gaps[g]
    return out

def sm_exp(par, n):
    qt, r = n // 16, n % 16
    if OPT['noexp']: return valu('v_mov_b32', vE[n % 6], Sreg(par, qt)[r])
    return valu('v_exp_f32', vE[n % 6], Sreg(par, qt)[r])
def sm_post(par, n):
    qt, r = n // 16, n % 16
    out = []
    if r == 1: out.append(valu('v_add_f32', vLS(par, qt), vE[(n - 1) % 6], vE[n % 6]))
    elif r > 1: out.append(valu('v_add_f32', vLS(par, qt), vLS(par, qt), vE[n % 6]))
    if r % 2 == 1:
        out.append(valu('v_cvt_pk_bf16_f32', Preg(par, qt, r // 8)[(r % 8) // 2], vE[(n - 1) % 6], vE[n % 6]))
    return out

EXP_A = [16, 17, 18, 19, 20, 21, 22, 23, 24, 25, 26, 27, 28, 28, 29, 30, 30, 31]
EXP_B = [0, 1, 2, 3, 4, 5, 6, 7, 8, 9, 10, 11, 12, 13]
EXP_B = [0, 1, 2, 3, 4, 5, 6, 7, 8, 9, 10, 11, 12, 12]
assert len(EXP_A) + len(EXP_B) == 32
K_GAPS = [16, 17, 19, 20, 22, 23, 25, 26]
sites = []

def place_softmax(gaps, par_fin, par_new, do_fin=True, do_new=True):
    nA = len(EXP_A)
    if do_fin:
        gaps[0] += sm_post(par_fin, nA - 1)
        for i, g in enumerate(EXP_B):
            n = nA + i
            gaps[g].append(sm_exp(par_fin, n))
        for i, g in enumerate(EXP_B):
            n = nA + i
            gaps[g + 1][0:0] = []
        posts = {}
        for i, g in enumerate(EXP_B):
            posts.setdefault(g + 1, []).extend(sm_post(par_fin, nA + i))
        for g, l in posts.items(): gaps[g][0:0] = l
        site = len(sites); sites.append(par_fin)
        gaps[14] += [valu('v_max_f32', vT[0], vLS(par_fin, 0), vLS(par_fin, 1)), v_cmp('v_cmp_lt_f32', sTHR, vT[0])]
        gaps[15] += [s_branch('s_cbranch_vccnz', f"L_tramp{site}"), label(f"L_ret{site}")]
        gaps[16] += [valu('v_add_f32', vL[0], vL[0], vLS(par_fin, 0))]
        gaps[17] += [valu('v_add_f32', vL[1], vL[1], vLS(par_fin, 1))]
    if do_new:
        posts = {}
        for n, g in enumerate(EXP_A):
            gaps[g].append(sm_exp(par_new, n))
            if n < nA - 1: posts.setdefault(g + 1, []).extend(sm_post(par_new, n))
        for g, l in posts.items(): gaps[g][0:0] = l

def period(j, qk=True, pv=True, rdk=True, extra=None, endwait=None):
    par = j % 2
    mf = [None] * 32
    gaps = [[] for _ in range(32)]
    if qk:
        for qt in range(2):
            for s in range(8):
                d = Sreg(1 - par, qt)
                mf[qt * 8 + s] = mfma(d, Kf(s), Qreg(qt, s), negM(qt) if s == 0 else d)
    if pv:
        for ks in range(2):
            for dt in range(4):
                for qt in range(2):
                    mf[16 + ks * 8 + dt * 2 + qt] = mfma(Oacc(dt, qt), Vf(ks, dt), Preg(par, qt, ks), Oacc(dt, qt))
    place_softmax(gaps, par, 1 - par, do_fin=pv, do_new=qk)
    if pv:
        for ks in range(2):
            for dt in range(4):
                for h in range(2):
                    gaps[ks * 8 + dt * 2 + h].append(rd_V(j, ks, dt, h))
        gaps[15].append(wait(lg=[Vf(0, dt) for dt in range(4)]))
        gaps[23].append(wait(lg=[Vf(1, dt) for dt in range(4)]))
    if rdk:
        for s in range(8): gaps[K_GAPS[s]].append(rd_K(j + 2, s))
    if extra:
        for g, l in extra.items(): gaps[g] += l
    if endwait is not None: gaps[31] += endwait
    return interleave(mf, gaps)

def spread(instrs, glist):
    d = {}
    for ins, g in zip(instrs, glist): d.setdefault(g, []).extend(ins if isinstance(ins, list) else [ins])
    return d

DMA_GAPS = [13, 14, 18, 21, 24, 27]
def tile(t, dV=True, dK=True, last=False, nxt=None):
    out = []
    e0 = spread(dma_V((t + 3) % 4), DMA_GAPS) if dV else {}
    e1 = spread(dma_K(t % 4), DMA_GAPS) if dK else {}
    if nxt:
        for g, l in nxt[0].items(): e0.setdefault(g, []).extend(l)
        for g, l in nxt[1].items(): e1.setdefault(g, []).extend(l)
    out += period(2 * t, extra=e0, rdk=not last, endwait=None if last else [wait(lg=0)])
    if last:
        out += period(2 * t + 1, qk=False, rdk=False, extra=e1)
    else:
        out += period(2 * t + 1, extra=e1,
                      endwait=[wait(vm=[f"V{(t + 1) % 4}", f"K{(t + 2) % 4}"], lg=0), s_barrier()])
    return out

def fallback(par):
    o = [label(f"L_fb{par}"), s_nop(15)]
    for qt in range(2):
        Sx, Sn = Sreg(par, qt), Sreg(1 - par, qt)
        t, t2, f = vU[0], vU[1], vU[2]
        o.append(valu('v_max3_f32', t, Sx[0], Sx[1], Sx[2]))
        for r in range(3, 15, 2): o.append(valu('v_max3_f32', t, t, Sx[r], Sx[r + 1]))
        o += [valu('v_max_f32', t, t, Sx[15]), valu('v_mov_b32', t2, t), s_nop(1), permswap(t, t2),
              valu('v_max3_f32', t, t, t2, 0), valu_n('v_exp_f32', f, Neg(t))]
        for r in range(16): o.append(valu('v_sub_f32', negM(qt)[r], negM(qt)[r], t))
        for r in range(16): o.append(valu('v_sub_f32', Sx[r], Sx[r], t))
        for r in range(16): o.append(valu('v_sub_f32', Sn[r], Sn[r], t))
        o.append(valu('v_mul_f32', vL[qt], vL[qt], f))
        for dt in range(4):
            for r in range(16):
                o += [valu('v_accvgpr_read_b32', vU[3], Oacc(dt, qt)[r]), valu('v_mul_f32', vU[3], vU[3], f),
                      valu('v_accvgpr_write_b32', Oacc(dt, qt)[r], vU[3])]
        for r in range(16):
            n = qt * 16 + r
            o += [valu('v_exp_f32', vE[n % 6], Sx[r]), s_nop(0)] + sm_post(par, n)
    o += [s_nop(1), raw(f"s_setpc_b64 {sRET}", 'branch', [sRET])]
    return o

def set_srd(srd, base, off_lo, nbytes):
    return [salu('s_add_u32', srd[0], base[0], off_lo), salu('s_addc_u32', srd[1], base[1], 0),
            s_mov(srd[2], nbytes), s_mov(srd[3], 0x20000)]

def item_srds(p):
    o = []
    o += [salu('s_lshl_b32', sT0, sBH, 18)]
    o += set_srd(srdK, ptr(p, 1), sT0, 262144)
    o += set_srd(srdV, ptr(p, 2), sT0, 262144)
    o += [salu('s_mul_i32', sT0, sB, 276480, scc=False)]
    o += set_srd(srdX, ptr(p, 0), sT0, 276480)
    o += [salu('s_lshl_b32', sT0, sH, 8), salu('s_sub_u32', sT1, 576 * 8192, sT0)]
    o += set_srd(srdW, ptr(p, 3), sT0, sT1)
    o += set_srd(srdO, sWS, p * O_BYTES, O_BYTES)
    return o

def k1_setup():
    o = []
    o += [s_cmp('s_cmp_ge_u32', S(2), 256), s_branch('s_cbranch_scc1', 'L_k1_end')]
    o += [s_load('s_load_dwordx16', S(4, 16), S(0, 2), 0), s_load('s_load_dwordx8', S(20, 8), S(0, 2), 64),
          s_load('s_load_dwordx2', S(28, 2), S(0, 2), 96)]
    o += [salu('s_and_b32', sT0, S(2), 1), salu('s_lshl_b32', sT0, sT0, 2), salu('s_lshr_b32', sT1, S(2), 3),
          salu('s_and_b32', sB, sT1, 3), salu('s_add_u32', sB, sB, sT0),
          salu('s_and_b32', sT0, S(2), 6), salu('s_lshl_b32', sT0, sT0, 2), salu('s_lshr_b32', sT1, S(2), 5),
          salu('s_add_u32', sH, sT0, sT1), salu('s_lshl_b32', sBH, sB, 5), salu('s_add_u32', sBH, sBH, sH)]
    l, hi, t0, t1, t2, t3, r, c, g1 = vU[0], vU[1], vU[2], vU[3], vU[4], vU[5], vT[0], vT[1], vT[2]
    o += [valu('v_lshrrev_b32', t0, 6, vTID), valu('v_and_b32', l, 63, vTID), readfirstlane(sW, t0),
          valu('v_lshrrev_b32', hi, 5, l), s_nop(0), salu('s_lshl_b32', sW4K, sW, 12)]
    c_scale = math.log2(math.e) / math.sqrt(128.0)
    o += [s_mov(sTHR, f2u(65536.0)), s_mov(sSCALE[0], f2u(c_scale)), s_mov(sSCALE[1], f2u(c_scale)), s_mov(s4096, 4096)]
    o += [valu('v_and_b32', t0, 31, l), valu('v_lshlrev_b32', t1, 8, t0), valu('v_and_b32', t0, 15, l)]
    for s in range(8):
        o += [valu('v_add_u32', t2, 2 * s, hi), valu('v_xor_b32', t2, t2, t0), valu('v_lshl_add_u32', vKr[s], t2, 4, t1)]
    o += [valu('v_bfe_u32', r, l, 2, 2), valu('v_and_b32', c, 3, l), valu('v_bfe_u32', g1, l, 4, 1)]
    o += [valu('v_lshl_add_u32', t0, hi, 2, r), valu('v_lshlrev_b32', t0, 8, t0), valu('v_lshl_add_u32', t0, g1, 5, t0),
          valu('v_lshl_add_u32', t1, c, 3, t0), valu('v_add_u32', t1, 65536, t1)]
    for dt in range(4):
        o += [valu('v_xor_b32', t2, dt, r), valu('v_lshl_add_u32', vVr[dt], t2, 6, t1)]
    o += [valu('v_lshl_add_u32', t0, hi, 3, r), valu('v_lshlrev_b32', t0, 8, t0), valu('v_lshl_add_u32', t0, g1, 5, t0),
          valu('v_and_b32', t1, 1, c), valu('v_lshlrev_b32', t1, 1, t1), valu('v_lshrrev_b32', t2, 1, c), valu('v_or_b32', t1, t1, t2),
          valu('v_lshl_add_u32', t1, t1, 3, t0), valu('v_add_u32', t1, 98304, t1)]
    for dt in range(4):
        o += [valu('v_xor_b32', t2, dt, r), valu('v_lshl_add_u32', vWr[dt], t2, 6, t1)]
    u, pch = r, c
    o += [valu('v_lshrrev_b32', u, 4, l), valu('v_and_b32', pch, 15, l),
          valu('v_lshlrev_b32', t0, 8, u), valu('v_add_u32', t0, sW4K, t0)]
    for n in range(4):
        o += [valu('v_add_u32', t2, 4 * n, u), valu('v_xor_b32', t2, t2, pch), valu('v_lshl_add_u32', vKd[n], t2, 4, t0)]
    o += [valu('v_lshlrev_b32', t2, 2, u), valu('v_xor_b32', t2, t2, pch), valu('v_lshl_add_u32', vVd, t2, 4, t0),
          salu('s_lshl_b32', sT0, sW, 4), valu('v_add_u32', t1, sT0, u), valu('v_lshlrev_b32', t1, 13, t1),
          valu('v_lshl_add_u32', vWd, t2, 4, t1)]
    o += [salu('s_lshl_b32', sT0, sW, 6), valu('v_and_b32', t0, 31, l), valu('v_add_u32', t0, sT0, t0),
          salu('s_mul_i32', sT1, sB, 240, scc=False), salu('s_lshl_b32', sT0, sH, 13)]
    for qt in range(2):
        o += [valu('v_add_u32', t1, 32 * qt, t0), valu('v_mul_u32_u24', t2, 1152, t1), valu('v_lshl_add_u32', vX[qt], hi, 4, t2),
              valu('v_add_u32', t2, sT1, t1), valu('v_lshrrev_b32', t3, 5, t2), valu('v_lshlrev_b32', t3, 18, t3),
              valu('v_and_b32', t2, 31, t2), valu('v_lshl_add_u32', t3, t2, 4, t3), valu('v_lshl_add_u32', t3, hi, 9, t3),
              valu('v_add_u32', t3, sT0, t3), v_cmp('v_cmp_gt_u32', 240, t1), valu('v_mov_b32', t2, 0x7f000000), s_nop(0),
              valu('v_cndmask_b32', vO[qt], t2, t3, VCC)]
    o += [raw("s_waitcnt lgkmcnt(0)", 'salu'), wait(lg=0)]
    if OPT['stamp']:
        o += set_srd(S(72, 4), sWS, 200 * 1024 * 1024, 1024 * 1024)
        o += [salu('s_lshl_b32', S(76), S(2), 2), salu('s_add_u32', S(76), S(76), sW), salu('s_lshl_b32', S(76), S(76), 8)]
    return o

KV_FILL = {0: 'K', 1: 'V', 2: 'K', 3: 'V', 4: 'K', 5: 'K', 7: 'V'}
def qproj():
    o = []
    o += [s_mov(sKOFF, 0), s_mov(sVOFF, 0), valu('v_mov_b32', vL[0], 0), valu('v_mov_b32', vL[1], 0)]
    o += [wait(vm=[wq_slot(0)]), s_barrier()]
    for dt in range(4):
        for h in range(2): o.append(rd_W(0, 0, dt, h))
    nk = nv = 0
    zero = [valu('v_accvgpr_write_b32', A(i), 0) for i in range(128)]
    for c in range(9):
        mf, gaps = [], [[] for _ in range(32)]
        for ks in range(4):
            for dt in range(4):
                for qt in range(2):
                    d = QACC(dt, qt)
                    mf.append(mfma(d, Vf(ks % 2, dt), Xf(c % 3, qt, ks), 0 if (c == 0 and ks == 0) else d))
        pre = [wait(vm=[Xf(c % 3, qt, ks) for qt in range(2) for ks in range(4)], lg=[Vf(0, 0), Vf(0, 1)])]
        for ks in range(4):
            cc, kk = (c, ks + 1) if ks < 3 else (c + 1, 0)
            if cc > 8: continue
            for dt in range(4):
                for h in range(2): gaps[ks * 8 + dt * 2 + h].append(rd_W(cc, kk, dt, h))
        for ks in range(4):
            gaps[ks * 8 + 3].append(wait(lg=[Vf(ks % 2, 2), Vf(ks % 2, 3)]))
            if ks < 3: gaps[ks * 8 + 7].append(wait(lg=[Vf((ks + 1) % 2, 0), Vf((ks + 1) % 2, 1)]))
        if c + 2 <= 8:
            for i, ins in enumerate(load_X(c + 2)): gaps[i].append(ins)
        bar = [wait(vm=[wq_slot(c + 1)] if c < 8 else ['K0']), s_barrier()]
        gaps[23] += bar
        ex = []
        if c + 3 <= 8: ex += dma_W(c + 3)
        if c in KV_FILL:
            if KV_FILL[c] == 'K': ex += dma_K(nk); nk += 1
            else: ex += dma_V(nv); nv += 1
        for i, ins in enumerate(ex): gaps[24 + (i * 8) // max(len(ex), 1)].append(ins)
        for g in range(8, 23):
            if zero: gaps[g].append(zero.pop(0))
        if c == 8:
            for i, s in enumerate([0, 4, 1, 5, 2, 6]): gaps[24 + i].append(rd_K(0, s))
            gaps[31] += [rd_K(0, 3), rd_K(0, 7)]
        o += pre + interleave(mf, gaps)
    assert not zero
    return o

def q_convert(qt):
    o = []
    for dt in range(4):
        acc = QACC(dt, qt)
        for B in range(2):
            for i in range(4):
                pr = acc.sub(8 * B + 2 * i, 2)
                o.append(valu('v_pk_mul_f32', pr, pr, sSCALE))
            for i in range(4):
                o.append(valu('v_cvt_pk_bf16_f32', Qreg(qt, 2 * dt + B)[i], acc[8 * B + 2 * i], acc[8 * B + 2 * i + 1]))
    return o

def first_max(qt):
    Sx = Sreg(0, qt)
    t, t2 = vU[0], vU[1]
    o = [valu('v_max3_f32', t, Sx[0], Sx[1], Sx[2])]
    for r in range(3, 15, 2): o.append(valu('v_max3_f32', t, t, Sx[r], Sx[r + 1]))
    o += [valu('v_max_f32', t, t, Sx[15]), valu('v_mov_b32', t2, t), s_nop(1), permswap(t, t2), valu('v_max_f32', t, t, t2)]
    for r in range(16): o.append(valu('v_sub_f32', negM(qt)[r], 0, t))
    for r in range(16): o.append(valu('v_sub_f32', Sx[r], Sx[r], t))
    return o

def att_prologue():
    o = [s_nop(11)]
    o += q_convert(0) + q_convert(1)
    o += [wait(lg=0)]
    for qt in range(2):
        for s in range(8):
            d = Sreg(0, qt)
            o.append(mfma(d, Kf(s), Qreg(qt, s), 0 if s == 0 else d))
            if qt == 1: o.append(rd_K(1, s))
    o += first_max(0) + first_max(1)
    gaps = [[] for _ in range(32)]
    place_softmax(gaps, 1, 0, do_fin=False, do_new=True)
    for g in gaps:
        if g: o += g + [s_nop(0)]
    o += [wait(vm=['V0', 'K1'], lg=0), s_barrier()]
    return o

def o_epilogue():
    o = [s_nop(7)]
    rc = [vU[0], vU[1]]
    for qt in range(2):
        o += [valu('v_mov_b32', vU[2], vL[qt]), s_nop(1), permswap(vL[qt], vU[2]), valu('v_add_f32', vU[2], vU[2], vL[qt]),
              valu('v_rcp_f32', rc[qt], vU[2]), s_nop(0)]
    k = 0
    for dt in range(4):
        for qt in range(2):
            for B in range(2):
                tmp = V(160 + (k % 2) * 8, 8); pk = V(176 + (k % 4) * 4, 4); k += 1
                for i in range(8): o.append(valu('v_accvgpr_read_b32', tmp[i], Oacc(dt, qt)[8 * B + i]))
                for i in range(8): o.append(valu('v_mul_f32', tmp[i], tmp[i], rc[qt]))
                for i in range(4): o.append(valu('v_cvt_pk_bf16_f32', pk[i], tmp[2 * i], tmp[2 * i + 1]))
                kap = dt * 2 + B
                o.append(buf_store('buffer_store_dwordx4', pk, vO[qt], srdO, s4096 if kap >= 4 else 0, (kap % 4) * 1024))
    return o

def preamble():
    return load_X(0) + dma_W(0) + load_X(1) + dma_W(1) + dma_W(2)

def kernel1():
    head = k1_setup() + [s_mov(sITEM, 0)] + item_srds(0)
    body = [label('L_item')] + stamp(0) + preamble() + qproj() + stamp(1) + att_prologue() + stamp(2)
    loop = [label('L_tiles')]
    for t in range(4): loop += tile(t)
    loop += [salu('s_sub_u32', sLOOP, sLOOP, 1), s_cmp('s_cmp_lg_u32', sLOOP, 0), s_branch('s_cbranch_scc1', 'L_tiles')]
    body += [s_mov(sLOOP, 3), Loop(loop, 3)]
    body += tile(12, dK=False) + tile(13, dV=False, dK=False) + tile(14, dV=False, dK=False) + tile(15, dV=False, dK=False, last=True)
    body += stamp(3) + o_epilogue() + stamp(4)
    body += [s_cmp('s_cmp_lg_u32', sITEM, 0), s_branch('s_cbranch_scc1', 'L_k1_end'), s_mov(sITEM, 1)]
    if OPT['stamp']: body += [salu('s_add_u32', S(76), S(76), 64)]
    body += item_srds(1) + [wait(lg=0), s_barrier(), s_branch('s_branch', 'L_item')]
    prog = head + [Loop(body, 2)] + [label('L_k1_end'), raw('s_endpgm')]
    tramps = []
    for i, par in enumerate(sites):
        tramps += [label(f"L_tramp{i}"), raw(f"s_call_b64 {sRET}, L_fb{par}", 'branch', [], [sRET]), s_branch('s_branch', f"L_ret{i}")]
    return prog, tramps + fallback(0) + fallback(1)

def descriptor(name, vgpr, accum, sgpr=96):
    return f""".amdhsa_kernel {name}
  .amdhsa_next_free_vgpr {vgpr}
  .amdhsa_next_free_sgpr {sgpr}
  .amdhsa_accum_offset {accum}
  .amdhsa_group_segment_fixed_size 0
  .amdhsa_kernarg_size 104
  .amdhsa_user_sgpr_count 2
  .amdhsa_user_sgpr_kernarg_segment_ptr 1
  .amdhsa_system_sgpr_workgroup_id_x 1
.end_amdhsa_kernel
"""

def finish(prog, rare, name, shared=True):
    tr = expand(prog)
    resolve_waits(tr)
    errs = check(tr, name, shared)
    if rare:
        resolve_waits(rare)
        errs += check(rare, name + "_rare", shared)
    for e in errs[:40]: print("CHECK:", e, file=sys.stderr)
    if errs: print(f"{len(errs)} check errors in {name}", file=sys.stderr)
    return render(prog) + "\n" + (render(rare) if rare else "")

def main():
    ref = open(os.path.join(os.path.dirname(os.path.abspath(__file__)), '..', 'cdna_kernels', NAME + '.s.ref')).read().splitlines()
    hdr = [l for l in ref if l.startswith(';') and '@launch' not in l and 'Override launch' not in l and 'grid=ceil' not in l]
    k1, k1r = kernel1()
    out = hdr[:]
    out.append("; @launch kernel=attn_kernel grid=(256,1,1) block=(256,1,1) lds=163840")
    if OPT['k2']:
        out.append("; @launch kernel=oproj_kernel grid=(240,1,1) block=(256,1,1) lds=147456")
    out += ['.amdgcn_target "amdgcn-amd-amdhsa--gfx950"', '.text', '.globl attn_kernel', '.p2align 8', '.type attn_kernel,@function', 'attn_kernel:']
    out.append(finish(k1, k1r, 'k1'))
    if OPT['k2']:
        import gen2
        k2 = gen2.kernel2(OPT)
        out += ['.globl oproj_kernel', '.p2align 8', '.type oproj_kernel,@function', 'oproj_kernel:']
        out.append(finish(k2, None, 'k2'))
    out += ['.section .rodata,"a"', '.p2align 6', descriptor('attn_kernel', 512, 256)]
    if OPT['k2']:
        out += ['.p2align 6', descriptor('oproj_kernel', 512, 256)]
    open(sys.argv[1], 'w').write("\n".join(out))

if __name__ == '__main__':
    main()
```

```python
import re

class Reg:
    def __init__(self, f, i, n=1):
        self.f, self.i, self.n = f, i, n
    def __str__(self):
        if self.f in ('vcc', 'm0', 'exec', 'scc'):
            return self.f
        return f"{self.f}{self.i}" if self.n == 1 else f"{self.f}[{self.i}:{self.i+self.n-1}]"
    def regs(self):
        return [(self.f, self.i + k) for k in range(self.n)]
    def sub(self, off, n=1):
        assert off + n <= self.n, (str(self), off, n)
        return Reg(self.f, self.i + off, n)
    def __getitem__(self, k):
        return self.sub(k, 1)

def V(i, n=1): return Reg('v', i, n)
def A(i, n=1): return Reg('a', i, n)
def S(i, n=1): return Reg('s', i, n)
VCC = Reg('vcc', 0, 1)
M0 = Reg('m0', 0, 1)
EXEC = Reg('exec', 0, 1)
SCC = Reg('scc', 0, 1)

def regs_of(xs):
    out = []
    for x in xs:
        if isinstance(x, Reg):
            out += x.regs()
    return out

TRANS = ('v_exp_f32', 'v_rcp_f32', 'v_log_f32', 'v_rsq_f32', 'v_sqrt_f32')

class I:
    __slots__ = ('op', 'text', 'kind', 'rd', 'wr', 'a', 'b', 'c', 'lds_rd', 'lds_wr', 'wait', 'passes', 'val', 'wide', 'cmt', 'tag')
    def __init__(self, op, text, kind, rd=(), wr=(), **kw):
        self.op, self.text, self.kind = op, text, kind
        self.rd, self.wr = regs_of(rd), regs_of(wr)
        self.a = self.b = self.c = None
        self.lds_rd = kw.get('lds_rd')
        self.lds_wr = kw.get('lds_wr')
        self.wait = kw.get('wait')
        self.passes = kw.get('passes', 0)
        self.val = None
        self.wide = kw.get('wide', False)
        self.cmt = kw.get('cmt')
        self.tag = None
    def render(self):
        if self.kind == 'wait':
            vm, lg = self.val
            parts = []
            if vm is not None: parts.append(f"vmcnt({vm})")
            if lg is not None: parts.append(f"lgkmcnt({lg})")
            if not parts:
                return "    s_nop 0"
            return "    s_waitcnt " + " ".join(parts)
        if self.kind == 'label':
            return self.text
        t = "    " + self.text
        if self.cmt: t += "  ; " + self.cmt
        return t

class Loop:
    def __init__(self, body, count):
        self.body, self.count = body, count

def fmt(x):
    if isinstance(x, float):
        return repr(x)
    return str(x)

def label(name): return I('label', name + ":", 'label')
def raw(text, kind='salu', rd=(), wr=()): return I(text.split()[0], text, kind, rd, wr)

def salu(op, dst, *src, scc=True):
    wr = [dst] + ([SCC] if scc else [])
    return I(op, f"{op} {dst}, " + ", ".join(fmt(s) for s in src), 'salu', src, wr)
def s_mov(dst, src): return salu('s_mov_b32', dst, src, scc=False)
def s_cmp(op, a, b): return I(op, f"{op} {fmt(a)}, {fmt(b)}", 'salu', [a, b], [SCC])
def s_branch(op, target): return I(op, f"{op} {target}", 'branch', [VCC] if 'vcc' in op else [SCC] if 'scc' in op else [])
def s_nop(n):
    i = I('s_nop', f"s_nop {n}", 'nop'); i.val = n + 1; return i
def s_barrier(): return I('s_barrier', 's_barrier', 'barrier')

def valu(op, dst, *src, extra_rd=(), extra_wr=(), mods=""):
    rd = [s for s in src if isinstance(s, Reg)] + list(extra_rd)
    kind = 'trans' if op in TRANS else 'valu'
    return I(op, f"{op} {dst}, " + ", ".join(fmt(s) for s in src) + mods, kind, rd, [dst] + list(extra_wr))
class Neg:
    def __init__(self, r): self.r = r
    def __str__(self): return "-" + str(self.r)
def valu_n(op, dst, *src):
    rd = [s.r if isinstance(s, Neg) else s for s in src if isinstance(s, (Reg, Neg))]
    kind = 'trans' if op in TRANS else 'valu'
    return I(op, f"{op} {dst}, " + ", ".join(fmt(s) for s in src), kind, rd, [dst])
def v_cmp(op, a, b): return I(op, f"{op} vcc, {fmt(a)}, {fmt(b)}", 'valu', [a, b], [VCC])
def permswap(a, b): return I('v_permlane32_swap_b32', f"v_permlane32_swap_b32 {a}, {b}", 'perm', [a, b], [a, b])
def readfirstlane(dst, src): return I('v_readfirstlane_b32', f"v_readfirstlane_b32 {dst}, {src}", 'rfl', [src], [dst])

def mfma(d, a, b, c, shape='32x32x16'):
    op = f"v_mfma_f32_{shape}_bf16"
    i = I(op, f"{op} {d}, {a}, {b}, {fmt(c)}", 'mfma', [a, b, c], [d], passes=8 if shape == '32x32x16' else 4)
    i.a, i.b, i.c = a, b, (c if isinstance(c, Reg) else None)
    i.val = d
    return i

def ds_read(op, dst, addr, off, slot):
    assert 0 <= off < 65536, off
    return I(op, f"{op} {dst}, {addr} offset:{off}", 'ds', [addr], [dst], lds_rd=slot)
def ds_write(op, addr, src, off, slot):
    assert 0 <= off < 65536, off
    return I(op, f"{op} {addr}, {src} offset:{off}", 'ds', [addr, src], [], lds_wr=slot)

def buf_load(op, dst, voff, srd, soff, off, flags=""):
    assert 0 <= off < 4096, off
    return I(op, f"{op} {dst}, {voff}, {srd}, {fmt(soff)} offen offset:{off}{flags}", 'vmem', [voff, srd, soff], [dst])
def buf_dma(voff, srd, soff, off, slot, flags=""):
    assert 0 <= off < 4096, off
    return I('buffer_load_dwordx4', f"buffer_load_dwordx4 {voff}, {srd}, {fmt(soff)} offen offset:{off}{flags} lds", 'dma',
             [voff, srd, soff, M0], [], lds_wr=slot)
def buf_store(op, src, voff, srd, soff, off, flags=""):
    assert 0 <= off < 4096, off
    return I(op, f"{op} {src}, {voff}, {srd}, {fmt(soff)} offen offset:{off}{flags}", 'vstore', [src, voff, srd, soff], [],
             wide=(src.n >= 3))
def s_load(op, dst, base, off):
    return I(op, f"{op} {dst}, {base}, {off}", 'smem', [base], [dst])

def wait(vm=None, lg=None):
    return I('s_waitcnt', '', 'wait', wait=(vm, lg))

def expand(prog):
    out = []
    for x in prog:
        if isinstance(x, Loop):
            for _ in range(x.count):
                out += expand(x.body)
        else:
            out.append(x)
    return out

def flatten(prog):
    out = []
    for x in prog:
        if isinstance(x, Loop):
            out += flatten(x.body)
        else:
            out.append(x)
    return out

def _res_set(res):
    rs, slots = set(), set()
    for r in res:
        if isinstance(r, Reg): rs.update(r.regs())
        else: slots.add(r)
    return rs, slots

def _hits(op, rs, slots, counter):
    if rs & set(op.wr): return True
    if counter == 'vm':
        if op.lds_wr in slots: return True
        if op.kind == 'vstore' and rs & set(op.rd): return True
    else:
        if op.lds_rd in slots or op.lds_wr in slots: return True
    return False

def resolve_waits(trace):
    best = {}
    def need(q, res, counter):
        if res is None: return None
        if isinstance(res, int): return res
        rs, slots = _res_set(res)
        for k in range(len(q) - 1, -1, -1):
            if _hits(q[k], rs, slots, counter):
                return len(q) - 1 - k
        return None
    vq, lq = [], []
    for ins in trace:
        if ins.kind in ('vmem', 'dma', 'vstore'): vq.append(ins)
        elif ins.kind == 'ds': lq.append(ins)
        elif ins.kind == 'wait':
            vm, lg = need(vq, ins.wait[0], 'vm'), need(lq, ins.wait[1], 'lg')
            old = best.get(id(ins), (None, None))
            def mn(a, b):
                if a is None: return b
                if b is None: return a
                return min(a, b)
            best[id(ins)] = (mn(old[0], vm), mn(old[1], lg))
    for ins in trace:
        if ins.kind == 'wait':
            vm, lg = best[id(ins)]
            if vm is not None: vm = min(vm, 63)
            if lg is not None: lg = min(lg, 15)
            ins.val = (vm, lg)

def check(trace, name="", shared_lds=True):
    errs = []
    vq, lq = [], []
    smem_pending = set()
    epoch = 0
    dma_retired_epoch = {}
    rd_retired_epoch = {}
    pos = 0
    last_valu_wr = {}; last_trans_wr = {}; last_mfma_wr = {}; last_mfma_c = {}; last_valu_sgpr = {}; last_store_rd = {}
    last_m0 = -100; m0tag = None
    def err(i, ins, msg): errs.append(f"{name}[{i}] {ins.text or ins.op}: {msg}")
    for i, ins in enumerate(trace):
        k = ins.kind
        if k == 'label': continue
        if k == 'wait':
            vm, lg = ins.val
            if vm is not None:
                while len(vq) > vm:
                    o = vq.pop(0)
                    if o.lds_wr: dma_retired_epoch[o.lds_wr] = epoch
            if lg is not None:
                while len(lq) > lg:
                    o = lq.pop(0)
                    if o.lds_rd: rd_retired_epoch[o.lds_rd] = epoch
                    if o.lds_wr: dma_retired_epoch[o.lds_wr] = epoch
                if lg == 0: smem_pending.clear()
            pos += 1
            continue
        if k == 'barrier':
            epoch += 1; pos += 1
            continue
        if k == 'nop':
            pos += ins.val
            continue
        touched = set(ins.rd) | set(ins.wr)
        for o in vq + lq:
            if set(o.wr) & touched: err(i, ins, f"touches pending load dest of: {o.text}")
        for o in vq:
            if o.kind == 'vstore' and ins.kind in ('vmem', 'ds') and set(o.rd) & set(ins.wr) and False:
                pass
        for o in lq:
            if o.lds_wr and o.op.startswith('ds_write') and False: pass
        if smem_pending & touched: err(i, ins, "touches pending s_load dest")
        if len(vq) > 63: err(i, ins, "more than 63 vmem outstanding")
        if ins.lds_rd:
            s = ins.lds_rd
            if any(o.lds_wr == s for o in vq + ([] if s.startswith('priv') else lq)): err(i, ins, f"reads slot {s} with own pending write")
            elif shared_lds and not s.startswith('priv') and dma_retired_epoch.get(s, -1) >= epoch: err(i, ins, f"reads slot {s} without barrier after write retire")
        if ins.lds_wr:
            s = ins.lds_wr
            if any(o.lds_rd == s for o in lq) and not (k == 'ds' and s.startswith('priv')): err(i, ins, f"writes slot {s} with own pending read")
            elif shared_lds and not s.startswith('priv') and rd_retired_epoch.get(s, -1) >= epoch: err(i, ins, f"writes slot {s} without barrier after read retire")
        def dist(d, r): return pos - d.get(r, -1000) - 1
        if k == 'mfma':
            for r in ins.rd:
                if dist(last_valu_wr, r) < 2: err(i, ins, f"VALU->MFMA {r} dist {dist(last_valu_wr, r)}")
            for part in (ins.a, ins.b):
                for r in part.regs():
                    if r in last_mfma_wr and pos - last_mfma_wr[r][0] - 1 < last_mfma_wr[r][1] + 4: err(i, ins, f"MFMA->MFMA AB {r}")
            if ins.c is not None:
                for r in ins.c.regs():
                    if r in last_mfma_wr:
                        p, passes, d = last_mfma_wr[r]
                        same = (d.f, d.i, d.n) == (ins.c.f, ins.c.i, ins.c.n) and passes == ins.passes
                        if not same and pos - p - 1 < passes + 2: err(i, ins, f"MFMA->MFMA C overlap {r}")
            for r in ins.wr:
                if r in last_mfma_wr:
                    p, passes, d = last_mfma_wr[r]
                    same = ins.c is not None and (d.f, d.i, d.n) == (ins.c.f, ins.c.i, ins.c.n)
                    if not same and pos - p - 1 < passes + 2: err(i, ins, f"MFMA WAW {r}")
        else:
            chk = touched if k in ('valu', 'trans', 'perm', 'rfl') else (set(ins.rd) | set(ins.wr))
            for r in chk:
                if r in last_mfma_wr and pos - last_mfma_wr[r][0] - 1 < last_mfma_wr[r][1] + 4:
                    err(i, ins, f"MFMA->use {r} dist {pos - last_mfma_wr[r][0] - 1}")
        if k in ('valu', 'trans', 'perm', 'rfl'):
            for r in ins.wr:
                if r in last_mfma_c and pos - last_mfma_c[r][0] - 1 < last_mfma_c[r][1] - 1: err(i, ins, f"MFMA C WAR {r}")
                if dist(last_store_rd, r) < 2: err(i, ins, f"store data WAR {r}")
            for r in ins.rd:
                if r[0] in ('s', 'vcc') and dist(last_valu_sgpr, r) < 2: err(i, ins, f"VALU sgpr->VALU {r}")
            if k != 'trans':
                for r in ins.rd:
                    if dist(last_trans_wr, r) < 1: err(i, ins, f"trans->VALU {r}")
            if k == 'perm':
                for r in ins.rd:
                    if dist(last_valu_wr, r) < 2: err(i, ins, f"VALU->permlane {r}")
            if k == 'rfl':
                for r in ins.rd:
                    if dist(last_valu_wr, r) < 1: err(i, ins, f"VALU->readfirstlane {r}")
        if k in ('vmem', 'ds') :
            for r in ins.wr:
                if dist(last_store_rd, r) < 1: err(i, ins, f"store data WAR(load) {r}")
        if k in ('vmem', 'dma', 'vstore'):
            for r in ins.rd:
                if r[0] == 's' and dist(last_valu_sgpr, r) < 5: err(i, ins, f"VALU sgpr->VMEM {r}")
        if k == 'dma' and pos - last_m0 - 1 < 1: err(i, ins, "M0->DMA")
        if k == 'dma' and ins.tag is not None and ins.tag is not m0tag: err(i, ins, "M0 belongs to another DMA group")
        if k == 'salu':
            for r in ins.rd:
                if r[0] == 's' and dist(last_valu_sgpr, r) < 1: err(i, ins, f"VALU sgpr->SALU {r} (pad)")
        if k in ('valu', 'trans', 'perm', 'rfl'):
            for r in ins.wr:
                if r[0] in ('s', 'vcc'): last_valu_sgpr[r] = pos
                else: last_valu_wr[r] = pos
                if k == 'trans': last_trans_wr[r] = pos
                last_mfma_wr.pop(r, None)
        if k == 'mfma':
            for r in ins.wr: last_mfma_wr[r] = (pos, ins.passes, ins.val)
            if ins.c is not None:
                for r in ins.c.regs(): last_mfma_c[r] = (pos, ins.passes)
        if k == 'vstore' and ins.wide:
            for r in ins.rd:
                if r[0] in ('v', 'a'): last_store_rd[r] = pos
        if ('m0', 0) in ins.wr: last_m0 = pos; m0tag = ins
        if k in ('vmem', 'dma', 'vstore'): vq.append(ins)
        if k == 'ds': lq.append(ins)
        if k == 'smem': smem_pending.update(ins.wr)
        pos += 1
    return errs

def render(prog):
    return "\n".join(x.render() for x in flatten(prog))


COST = {'trans': 8, 'label': 0, 'dma': 12, 'vmem': 8, 'vstore': 8}
def cost_of(ins):
    if ins.op.startswith('v_pk_'): return 8
    if ins.op.startswith('ds_write'): return 8
    return COST.get(ins.kind, 4)

class F:
    n = 0
    def __init__(self, ins, lo=0, hi=None, after=(), tail=False):
        self.ins = ins if isinstance(ins, list) else [ins]
        self.lo, self.hi, self.tail = lo, hi, tail
        self.after = [(a, 0) if isinstance(a, F) else a for a in after if a is not None]
        self.cost = sum(cost_of(i) for i in self.ins)
        self.gap = None
        F.n += 1; self.seq = F.n

def chain(groups, lo=0, hi=None, delta=0, after=(), step=0, slack=None, per=16):
    out = []
    for i, g in enumerate(groups):
        out.append(F(g, lo + int(i * step), hi, list(after) + ([(out[-1], delta)] if out else [])))
        if slack is not None: out[-1].hi = min(hi, out[-1].lo + slack)
    if hi is not None and per:
        rem = 0
        for f in reversed(out):
            f.hi = max(f.lo, min(f.hi, hi - rem // per)); rem += f.cost
    return out

def schedule(mf, fillers, budget=24, report=None):
    n = len(mf)
    for f in fillers:
        if f.hi is None: f.hi = n - 1
    for _ in range(3):
        for f in reversed(fillers):
            for a, d in f.after:
                if a.gap is None and a.hi is not None: a.hi = min(a.hi, f.hi - d)
    todo = list(fillers)
    pinned = [0] * (n + 1)
    for f in fillers:
        if f.lo == f.hi: pinned[f.lo] += f.cost
    out, loads = [], []
    for g in range(n):
        body, tail, used = [], [], 0
        while True:
            ready = [f for f in todo if f.lo <= g and all(a.gap is not None and a.gap + d <= g for a, d in f.after)]
            if not ready: break
            f = min(ready, key=lambda f: (f.hi, f.seq))
            if f.hi > g and used + f.cost > budget:
                fit = [x for x in ready if used + x.cost <= budget or used <= min(pinned[g + 1:x.hi + 1] or [99])]
                if not fit: break
                f = min(fit, key=lambda f: (f.hi, f.seq))
            assert f.hi >= g, ("missed deadline", f.ins[0].text or f.ins[0].op, f.lo, f.hi, g)
            f.gap = g; todo.remove(f); used += f.cost
            (tail if f.tail else body).extend(f.ins)
        if mf[g] is not None: out.append(mf[g])
        elif not out or out[-1].kind == 'trans': out.append(s_nop(0))
        out += body + tail
        loads.append(used)
    assert not todo, [(f.ins[0].text or f.ins[0].op, f.lo, f.hi) for f in todo]
    if report is not None: report.append(loads)
    return out

def tag_m0(groups):
    cur = None
    for g in groups:
        for x in g:
            if ('m0', 0) in x.wr: cur = x
            if x.kind == 'dma': x.tag = cur
    return groups
```

```python
from asmlib import *
O_BYTES = 60 * 262144
PACK_OFF = 32 * 1024 * 1024
PACK_BYTES = 4096 * 1152
LDS = 147456

def set_srd(srd, base, off_lo, nbytes):
    return [salu('s_add_u32', srd[0], base[0], off_lo), salu('s_addc_u32', srd[1], base[1], 0),
            s_mov(srd[2], nbytes), s_mov(srd[3], 0x20000)]
def smul(d, a, b): return salu('s_mul_i32', d, a, b, scc=False)

def kernel2(OPT):
    D = OPT['depth']; R = 8
    BS = OPT['rot2']
    sOUT, sWS = S(8, 2), S(10, 2)
    srdO, srdW, srdOut = S(16, 4), S(20, 4), S(24, 4)
    sW, sP, sMT, sNG, sT0, sT1, sT2 = S(28), S(29), S(30), S(31), S(32), S(33), S(34)
    sOO, sWO, sLOOP, sLIN, sROT = S(35), S(36), S(37), S(38), S(39)
    sR1, sR2 = S(40), S(41)
    vTID = V(0)
    vOa = [V(1), V(2), V(3)]; vEw = [V(8), V(9)]; vEr = V(10); vOut = V(11)
    l, hi, t0, t1, t2, t3 = V(12), V(13), V(14), V(15), V(16), V(17)
    def acc(nt, m): return A((nt * 3 + m) * 16, 16)
    def Of(slot, m): return V(32 + (slot * 6 + m) * 4, 4)
    def Wf(slot, nt): return V(32 + (slot * 6 + 3 + nt) * 4, 4)
    o = [s_cmp('s_cmp_ge_u32', S(2), OPT.get('k2n', 240)), s_branch('s_cbranch_scc1', 'L_k2_end')]
    o += [s_load('s_load_dwordx2', sWS, S(0, 2), 96), s_load('s_load_dwordx2', sOUT, S(0, 2), 80)]
    o += [salu('s_bfe_u32', sP, S(2), 0x10002), salu('s_lshr_b32', sT0, S(2), 3), smul(sT1, sT0, 43),
          salu('s_lshr_b32', sT1, sT1, 8), smul(sT2, sT1, 6), salu('s_sub_u32', sNG, sT0, sT2), salu('s_add_u32', sROT, sT1, sNG),
          salu('s_and_b32', sT0, S(2), 3), smul(sT0, sT0, 5), salu('s_add_u32', sMT, sT0, sT1)]
    o += [valu('v_lshrrev_b32', t0, 6, vTID), valu('v_and_b32', l, 63, vTID), readfirstlane(sW, t0), valu('v_lshlrev_b32', vOa[0], 4, l),
          valu('v_add_u32', vOa[1], 262144, vOa[0]), valu('v_add_u32', vOa[2], 2 * 262144, vOa[0])]
    o += [smul(sT0, sP, O_BYTES), smul(sT1, sMT, 3 * 262144), salu('s_add_u32', sT0, sT0, sT1),
          salu('s_lshl_b32', sT1, sW, 16), salu('s_add_u32', sT0, sT0, sT1),
          smul(sT1, sP, PACK_BYTES), smul(sT2, sNG, 786432), salu('s_add_u32', sT1, sT1, sT2), smul(sT2, sW, 196608),
          salu('s_add_u32', sT1, sT1, sT2), salu('s_add_u32', sT1, sT1, PACK_OFF)]
    if BS: o += [smul(sROT, sROT, 0 if OPT.get('wrapk')==2 else BS), salu('s_and_b32', sT2, sROT, 8 * BS - 1), salu('s_lshl_b32', sOO, sT2, 10), smul(sWO, sT2, 3072), s_mov(sLIN, 0)]
    else: o += [s_mov(sOO, 0), s_mov(sWO, 0)]
    o += [wait(lg=0)]
    o += set_srd(srdO, sWS, sT0, 2 * 262144 + 65536) + set_srd(srdW, sWS, sT1, 196608)
    def stamp(idx):
        if not OPT['stamp']: return []
        return [raw("s_memtime s[70:71]"), raw("s_memrealtime s[78:79]"), raw("s_waitcnt lgkmcnt(0)"),
                valu('v_mov_b32', V(20), S(70)), valu('v_mov_b32', V(21), idx * 4), raw("s_nop 0"),
                raw("buffer_store_dword v20, v21, s[72:75], s76 offen", 'vstore'), raw("s_nop 1"), valu('v_mov_b32', V(20), S(78)), raw("s_nop 0"),
                raw("buffer_store_dword v20, v21, s[72:75], s76 offen offset:32", 'vstore'), raw("s_nop 1"),
                raw("s_getreg_b32 s70, hwreg(HW_REG_XCC_ID)"), valu('v_mov_b32', V(20), S(70)), raw("s_nop 0"),
                raw("buffer_store_dword v20, v21, s[72:75], s76 offen offset:64", 'vstore'), raw("s_nop 1")]
    if OPT['stamp']:
        o += set_srd(S(72, 4), sWS, 201 * 1024 * 1024, 1024 * 1024)
        o += [salu('s_lshl_b32', S(76), S(2), 2), salu('s_add_u32', S(76), S(76), sW), salu('s_lshl_b32', S(76), S(76), 8)]
    o += stamp(0)

    def loads(k):
        sl = k % R
        r = []
        for i in range(3):
            r += [[buf_load('buffer_load_dwordx4', Wf(sl, i), vOa[0], srdW, sWO, 1024 * i, OPT['wof'])],
                  [buf_load('buffer_load_dwordx4', Of(sl, i), vOa[i], srdO, sOO, 0, OPT['of'])]]
        if BS:
            r += [[salu('s_add_u32', sROT, sROT, 1), salu('s_add_u32', sLIN, sLIN, 1), salu('s_and_b32', sT0, sROT, 8 * BS - 1)],
                  [salu('s_and_b32', sT1, sLIN, 0 if OPT.get('wrapk') else 256 - 8 * BS), salu('s_or_b32', sT0, sT0, sT1), salu('s_lshl_b32', sOO, sT0, 10), smul(sWO, sT0, 3072)]]
        else: r += [[salu('s_add_u32', sWO, sWO, 3072), salu('s_add_u32', sOO, sOO, 1024)]]
        return r
    def step(k, first=False, ld=True):
        sl = k % R
        out = [wait(vm=[Of(sl, m) for m in range(3)] + [Wf(sl, m) for m in range(3)])]
        L = loads(k + D) if ld else []
        i = 0
        for nt in range(3):
            for m in range(3):
                out.append(mfma(acc(nt, m), Wf(sl, nt), Of(sl, m), 0 if first else acc(nt, m)))
                if i < len(L): out += L[i]
                i += 1
        return out
    for k in range(D):
        for g in loads(k): o += g
    o += set_srd(srdOut, sOUT, 0, 1920 * 2304)
    o += [valu('v_lshrrev_b32', hi, 5, l), smul(sT0, sW, 9216), valu('v_add_u32', vEw[0], sT0, vOa[0]),
          valu('v_add_u32', vEw[1], 73728, vEw[0]), smul(sT0, sW, 36864), valu('v_add_u32', vEr, sT0, vOa[0])]
    o += [smul(sR1, sMT, 96 * 2304), smul(sR2, sP, 1152), salu('s_add_u32', sR1, sR1, sR2),
          smul(sR2, sNG, 192), salu('s_add_u32', sR1, sR1, sR2), smul(sR2, sW, 48),
          salu('s_add_u32', sR1, sR1, sR2), valu('v_and_b32', t0, 31, l), valu('v_mul_u32_u24', t0, 2304, t0),
          valu('v_mul_u32_u24', t1, 24, hi), valu('v_add3_u32', vOut, t0, t1, sR1), s_mov(sR1, 32 * 2304), s_mov(sR2, 64 * 2304)]
    for k in range(8): o += step(k, first=(k == 0))
    body = [label('L_k2_loop')]
    for k in range(8): body += step(k)
    body += [salu('s_sub_u32', sLOOP, sLOOP, 1), s_cmp('s_cmp_lg_u32', sLOOP, 0), s_branch('s_cbranch_scc1', 'L_k2_loop')]
    o += [s_mov(sLOOP, 6), Loop(body, 6)]
    for k in range(56, 64): o += step(k, ld=(k + D < 64))
    o += stamp(1) + [s_nop(7), s_nop(3)]
    for T in range(9):
        for d in range(4):
            o.append(ds_write('ds_write_b128', vEw[d // 2], A(T * 16 + 4 * d, 4), (d % 2) * 36864 + T * 1024, 'X'))
    o += [wait(lg=0), s_barrier()]
    def part(s, T): return V(32 + (s * 9 + T) * 4, 4)
    order = [nt * 3 + m for m in range(3) for nt in range(3)]
    for T in order:
        for s in range(4): o.append(ds_read('ds_read_b128', part(s, T), vEr, s * 9216 + T * 1024, 'X'))
    for m in range(3):
        pk = V(192 + m * 8, 6)
        for nt in range(3):
            T = nt * 3 + m
            o.append(wait(lg=[part(s, T) for s in range(4)]))
            for i in range(4):
                o += [valu('v_add_f32', part(0, T)[i], part(0, T)[i], part(1, T)[i]), valu('v_add_f32', part(2, T)[i], part(2, T)[i], part(3, T)[i])]
            for i in range(4): o.append(valu('v_add_f32', part(0, T)[i], part(0, T)[i], part(2, T)[i]))
            for i in range(2): o.append(valu('v_cvt_pk_bf16_f32', pk[2 * nt + i], part(0, T)[2 * i], part(0, T)[2 * i + 1]))
        so = [0, sR1, sR2][m]
        o += [buf_store('buffer_store_dwordx2', pk.sub(2 * i, 2), vOut, srdOut, so, 8 * i) for i in range(3)]
    o += stamp(2)
    o += [label('L_k2_end'), raw('s_endpgm')]
    return o
```

```python
import sys, os, math, struct
from asmlib import *

NAME = "concat_heads__mha_block_cached__gqa_block_cached__near_ridge"
OPT = dict(stamp=0, nodma=0, k2=1, k1=1, ost=' sc1', pst=' sc1', xf='', wf='', pf=' nt', kvf=' nt', rot=1, rep=0,
           depth=5, rot2=0, of='', wof='', fill='0K,0V,1K,2V,3K,4K', nost=0, nox=0, now=0, notr=0)
STR = ('ost', 'pst', 'xf', 'wf', 'pf', 'kvf', 'of', 'wof')
for a in sys.argv[2:]:
    k, v = a.split('=')
    OPT[k] = ((' ' + v.replace('+', ' ')) if v != '-' else '') if k in STR else v if k == 'fill' else int(v)

def f2u(x): return struct.unpack('<I', struct.pack('<f', x))[0]
O_BYTES = 60 * 262144
PACK_OFF = 32 * 1024 * 1024
PACK_BYTES = 4096 * 1152
HUGE = 0x7f000000

pX, pK, pV, pWQ, pWO, pWS = S(4, 2), S(6, 2), S(8, 2), S(10, 2), S(12, 2), S(14, 2)
srdP, srdQ = S(16, 4), S(20, 4)
sWC, sR0 = S(24), S(25)
sPS, sPD = [S(26), S(27)], [S(28), S(29)]
sRET = S(30, 2)
srdK, srdV, srdX, srdW, srdO = S(32, 4), S(36, 4), S(40, 4), S(44, 4), S(48, 4)
sW, sB, sH, sLOOP, sITEM, sKOFF, sVOFF, sW4K = S(52), S(53), S(54), S(55), S(56), S(57), S(58), S(59)
sTHR, sLO, sSCALE, sP, sWOFF, sT0, sT1, sT2, sXC = S(60), S(61), S(62), S(63), S(64), S(65), S(66), S(67), S(68)
sPM0 = S(69)
sSTAMP = S(70, 2)
sMASK = S(80, 2)
sOH = [S(82), S(83), S(84), S(85)]
sPS1, sPD1 = [S(86), S(87)], [S(88), S(89)]
vTID = V(0)
vKr = [V(1 + i) for i in range(8)]
vVr = [V(9 + i) for i in range(4)]
vWr = [V(13 + i) for i in range(4)]
vKd = [V(17 + i) for i in range(4)]
vVd, vWd = V(21), V(22)
vPd = [V(23), V(24), V(30)]
vPr, vPs = V(31), V(0)
vO = [V(25), V(26)]
vL = [V(27), V(28)]
vT = V(29)
def Sreg(par, qt): return V(32 + par * 32 + qt * 16, 16)
def Preg(par, qt, ks): return V(96 + par * 16 + qt * 8 + ks * 4, 4)
def negM(qt): return V(128 + qt * 16, 16)
def Qreg(qt, s): return V(160 + qt * 32 + s * 4, 4)
def QACC(dt, qt): return V([[32, 48, 128, 144], [96, 112, 64, 80]][qt][dt], 16)
def XF(c, qt, ks): return V(160 + ((c + 1) % 2) * 32 + qt * 16 + ks * 4, 4)
vE = [V(224 + i) for i in range(6)]
def vLS(par, qt): return V(230 + par * 2 + qt)
vU = [V(234 + i) for i in range(8)]
vM0 = [vU[4], vU[5]]
vXg = [V(242 + i) for i in range(8)]
vXw = [V(250), V(251)]
vXr = [V(252 + i) for i in range(4)]
def Oacc(dt, qt): return A((dt * 2 + qt) * 16, 16)
def Kf(s): return A(128 + 4 * s, 4)
def Vf(ks, dt): return A(160 + (ks * 4 + dt) * 4, 4)
def Wf(ks, dt): return A(128 + ((ks % 2) * 4 + dt) * 4, 4)
PAIR = [192, 224, 160]
POS = [[0, 1, 2, 0, 1, 2, 0, 1, 2], [0, 1, 0, 2, 1, 0, 2, 1, 0]]
def XR(it, c, qt, i): return A(PAIR[POS[it][c]] + qt * 16 + i * 4, 4)
def W8(it, ks, dt):
    fr = [p for p in range(3) if p != POS[it][8]]
    return A(PAIR[fr[dt // 2]] + (dt % 2) * 16 + ks * 4, 4)
def PKf(s, nt): return A(192 + (s * 3 + nt) * 4, 4)
WSLOT = ['W0', 'V2', 'V3']
WOFFS = [32768, 0, 16384]
XT = 147456

def stamp(idx):
    if not OPT['stamp']: return []
    return [raw(f"s_memtime {sSTAMP}", 'salu', [], [sSTAMP]), raw("s_memrealtime s[78:79]"), raw("s_waitcnt lgkmcnt(0)", 'salu'),
            valu('v_mov_b32', vU[6], sSTAMP[0]), valu('v_mov_b32', vU[7], idx * 4),
            raw(f"s_nop 0", 'salu'),
            raw(f"buffer_store_dword {vU[6]}, {vU[7]}, s[72:75], s76 offen", 'vstore'),
            raw("s_nop 1"), valu('v_mov_b32', vU[6], S(78)), raw("s_nop 0"),
            raw(f"buffer_store_dword {vU[6]}, {vU[7]}, s[72:75], s76 offen offset:32", 'vstore'), raw("s_nop 1")]

def dma_K(slot):
    if OPT['nodma']: return []
    return tag_m0([[salu('s_add_u32', M0, sW4K, slot * 16384)]] + \
           [[buf_dma(vKd[n], srdK, sKOFF, 1024 * n, f"K{slot}", OPT['kvf'])] for n in range(4)] + \
           [[salu('s_add_u32', sKOFF, sKOFF, 16384)]])
def dma_V(slot):
    if OPT['nodma']: return []
    return tag_m0([[salu('s_add_u32', M0, sW4K, 65536 + slot * 16384)]] + \
           [[buf_dma(vVd, srdV, sVOFF, 1024 * n, f"V{slot}", OPT['kvf'])] for n in range(4)] + \
           [[salu('s_add_u32', sVOFF, sVOFF, 16384)]])
def advance(reg, step):
    return [salu('s_add_u32', reg, reg, step), s_cmp('s_cmp_eq_u32', reg, 9 * step),
            I('s_cselect_b32', f"s_cselect_b32 {reg}, 0, {reg}", 'salu', [reg, SCC], [reg])]
def dma_W(c):
    out = [[salu('s_add_u32', M0, sW4K, 98304 + WOFFS[c % 3]), s_nop(0), buf_dma(vWd, srdW, sWC, 0, WSLOT[c % 3], OPT['wf'])]]
    for n in range(1, 4):
        out.append([salu('s_add_u32', sWOFF, sWC, n * (32768 - 1024)), buf_dma(vWd, srdW, sWOFF, 1024 * n, WSLOT[c % 3], OPT['wf'])])
    out.append(advance(sWC, 524288))
    return tag_m0(out)
def load_X(it, c):
    out = [[buf_load('buffer_load_dwordx4', XR(it, c, i // 4, i % 4), vXg[i], srdX, sXC, 0, OPT['xf'])] for i in range(8)]
    if OPT['nox'] and it == 1 and c >= 3: out = [[s_nop(0)] for i in range(8)]
    out.append(advance(sXC, 128))
    return out
def transit(it, c):
    out = []
    for qt in range(2):
        out.append([wait(vm=[XR(it, c, qt, i) for i in range(4)])])
        out += [[ds_write('ds_write_b128', vXw[i % 2], XR(it, c, qt, i), i * 1024, 'privX')] for i in range(4)]
        out += [[ds_read('ds_read_b128', XF(c, qt, ks), vXr[ks], 0, 'privX')] for ks in range(4)]
    if OPT['notr'] and it == 1 and c >= 1: out = [x if x[0].kind == 'wait' else [s_nop(0)] for x in out]
    return out
def dma_P():
    out = []
    for s in range(2):
        out.append([salu('s_add_u32', M0, sPM0, s * 3072), s_nop(0), buf_dma(vPd[0], srdP, sPS[s], 0, 'W0', OPT['pf'])])
        out += [[buf_dma(vPd[u], srdP, sPS[s], 1024 * u, 'W0', OPT['pf'])] for u in (1, 2)]
    return tag_m0(out)
def pack_out():
    out = []
    for s in range(2):
        for nt in range(3):
            out += [[ds_read('ds_read_b64_tr_b16', PKf(s, nt).sub(2 * h, 2), vPr, s * 3072 + h * 1536 + 8 * nt, 'W0')] for h in range(2)]
    st = []
    for s in range(2):
        for nt in range(3):
            st.append([wait(lg=[PKf(s, nt)]), buf_store('buffer_store_dwordx4', PKf(s, nt), vPs, srdQ, sPD[s], nt * 1024, OPT['pst'])])
    return out, st

def rd_K(sub, s):
    sub %= 8
    return ds_read('ds_read_b128', Kf(s), vKr[s], (sub // 2) * 16384 + (sub % 2) * 8192, f"K{sub // 2}")
def rd_V(sub, ks, dt, h):
    sub %= 8
    return ds_read('ds_read_b64_tr_b16', Vf(ks, dt).sub(2 * h, 2), vVr[dt],
                   (sub // 2) * 16384 + ((sub % 2) * 32 + ks * 16 + h * 8) * 256, f"V{sub // 2}")
def rd_W(c, ks, dt, h, dst=None):
    return ds_read('ds_read_b64_tr_b16', (dst or Wf(ks, dt)).sub(2 * h, 2), vWr[dt],
                   WOFFS[c % 3] + (16 * ks + 4 * h) * 256, WSLOT[c % 3])

def sm_exp(par, n):
    return valu('v_exp_f32', vE[n % 6], Sreg(par, n // 16)[n % 16])
def sm_post(par, n):
    qt, r = n // 16, n % 16
    out = []
    if r == 1: out.append(valu('v_add_f32', vLS(par, qt), vE[(n - 1) % 6], vE[n % 6]))
    elif r > 1: out.append(valu('v_add_f32', vLS(par, qt), vLS(par, qt), vE[n % 6]))
    if r % 2 == 1:
        out.append(valu('v_cvt_pk_bf16_f32', Preg(par, qt, r // 8)[(r % 8) // 2], vE[(n - 1) % 6], vE[n % 6]))
    return out

EXP_A = [16, 17, 18, 19, 20, 21, 22, 23, 24, 25, 26, 27, 28, 28, 29, 30, 30, 31]
EXP_B = [0, 1, 2, 3, 4, 5, 6, 7, 8, 9, 10, 11, 12, 12]
K_GAPS = [16, 17, 19, 20, 22, 23, 25, 26]
DMA_GAPS = [13, 14, 18, 21, 24, 27]
sites = []
def site(kind):
    i = len(sites); sites.append(kind)
    return i

def fixed(gaps, base=0):
    out = []
    for g in sorted(gaps):
        body = [x for x in gaps[g] if x.kind not in ('wait', 'barrier')]
        tail = [x for x in gaps[g] if x.kind in ('wait', 'barrier')]
        if body: out.append(F(body, base + g, base + g))
        if tail: out.append(F(tail, base + g, base + g, tail=True))
    return out

def period_parts(j, qk=True, pv=True, rdk=True, fin=True, first=False, dtmajor=False, endwait=None, dma=None, c0=False):
    par = j % 2
    mf = [None] * 32
    gaps = {g: [] for g in range(32)}
    if qk:
        for qt in range(2):
            for s in range(8):
                d = Sreg(1 - par, qt)
                mf[qt * 8 + s] = mfma(d, Kf(s), Qreg(qt, s), (0 if first else negM(qt)) if s == 0 else d)
    order = [(ks, dt, qt) for dt in range(4) for ks in range(2) for qt in range(2)] if dtmajor else \
            [(ks, dt, qt) for ks in range(2) for dt in range(4) for qt in range(2)]
    for i, (ks, dt, qt) in enumerate(order):
        mf[16 + i] = mfma(Oacc(dt, qt), Vf(ks, dt), Preg(par, qt, ks), 0 if (first and ks == 0) else Oacc(dt, qt))
    nA = len(EXP_A)
    if fin:
        gaps[0] += sm_post(par, nA - 1)
        for i, g in enumerate(EXP_B): gaps[g + 1] += sm_post(par, nA + i)
        for i, g in enumerate(EXP_B): gaps[g].append(sm_exp(par, nA + i))
        k = site(f"fb{par}")
        gaps[14] += [valu('v_max_f32', vT, vLS(par, 0), vLS(par, 1)), v_cmp('v_cmp_lt_f32', sTHR, vT)]
        gaps[15] += [s_branch('s_cbranch_vccnz', f"L_tramp{k}"), label(f"L_ret{k}")]
    if first:
        gaps[16] += [valu('v_mov_b32', vL[0], vLS(par, 0))]
        gaps[17] += [valu('v_mov_b32', vL[1], vLS(par, 1))]
    else:
        gaps[16] += [valu('v_add_f32', vL[0], vL[0], vLS(par, 0))]
        gaps[17] += [valu('v_add_f32', vL[1], vL[1], vLS(par, 1))]
    if qk:
        posts = {}
        for n, g in enumerate(EXP_A):
            if n < nA - 1: posts.setdefault(g + 1, []).extend(sm_post(1 - par, n))
        for g, l in posts.items(): gaps[g][0:0] = l
        for n, g in enumerate(EXP_A): gaps[g].append(sm_exp(1 - par, n))
    rdo = [(ks, dt) for dt in range(4) for ks in range(2)] if dtmajor else [(ks, dt) for ks in range(2) for dt in range(4)]
    for i, (ks, dt) in enumerate(rdo):
        for h in range(2): gaps[2 * i + h].append(rd_V(j, ks, dt, h))
    gaps[15].append(wait(lg=[Vf(*x) for x in rdo[:4]]))
    gaps[23].append(wait(lg=[Vf(*x) for x in rdo[4:]]))
    if rdk:
        for s in range(8): gaps[K_GAPS[s]].append(rd_K(j + 2, s))
    if dma:
        for grp, g in zip(dma, DMA_GAPS): gaps[g] += grp
    if endwait is not None: gaps[31] += endwait
    return mf, gaps

REP = []
def period(j, extra=(), budget=24, **kw):
    mf, gaps = period_parts(j, **kw)
    return schedule(mf, fixed(gaps) + list(extra), budget, REP)

def tile_end(t, more=()):
    return [wait(vm=[f"V{(t + 1) % 4}", f"K{(t + 2) % 4}"] + list(more), lg=0), s_barrier()]
def tile(t, dV=True, dK=True, e0=(), e1=(), more=()):
    out = period(2 * t, extra=e0, dma=dma_V((t + 3) % 4) if dV else None, endwait=[wait(lg=0)])
    out += period(2 * t + 1, extra=e1, dma=dma_K(t % 4) if dK else None, endwait=tile_end(t, more))
    return out

def row_max(Sx, t, t2):
    o = [valu('v_max3_f32', t, Sx[0], Sx[1], Sx[2])]
    for r in range(3, 15, 2): o.append(valu('v_max3_f32', t, t, Sx[r], Sx[r + 1]))
    return o + [valu('v_max_f32', t, t, Sx[15]), valu('v_mov_b32', t2, t), s_nop(1), permswap(t, t2)]

def fallback(kind):
    first = kind == 'fbfirst'
    par = 0 if first else int(kind[2])
    o = [label(f"L_{kind}"), s_nop(15)]
    for qt in range(2):
        Sx, Sn = Sreg(par, qt), Sreg(1 - par, qt)
        t, t2, f = vU[0], vU[1], vU[2]
        o += row_max(Sx, t, t2)
        if first:
            o += [valu('v_max_f32', t, t, t2), valu('v_sub_f32', vM0[qt], 0, t)]
        else:
            o += [valu('v_max3_f32', t, t, t2, 0), valu_n('v_exp_f32', f, Neg(t))]
            for r in range(16): o.append(valu('v_sub_f32', negM(qt)[r], negM(qt)[r], t))
        for r in range(16): o.append(valu('v_sub_f32', Sx[r], Sx[r], t))
        for r in range(16): o.append(valu('v_sub_f32', Sn[r], Sn[r], t))
        if not first:
            o.append(valu('v_mul_f32', vL[qt], vL[qt], f))
            for dt in range(4):
                for r in range(16):
                    o += [valu('v_accvgpr_read_b32', vU[3], Oacc(dt, qt)[r]), valu('v_mul_f32', vU[3], vU[3], f),
                          valu('v_accvgpr_write_b32', Oacc(dt, qt)[r], vU[3])]
        for r in range(16):
            n = qt * 16 + r
            o += [valu('v_exp_f32', vE[n % 6], Sx[r]), s_nop(0)] + sm_post(par, n)
    o += [s_nop(1), raw(f"s_setpc_b64 {sRET}", 'branch', [sRET])]
    return o

def set_srd(srd, base, off_lo, nbytes):
    return [salu('s_add_u32', srd[0], base[0], off_lo), salu('s_addc_u32', srd[1], base[1], 0),
            s_mov(srd[2], nbytes), s_mov(srd[3], 0x20000)]
def smul(d, a, b): return salu('s_mul_i32', d, a, b, scc=False)
def flat(groups): return [x for g in groups for x in g]

def k1_setup():
    l, hi, t0, t1, t2, t3, r, c, g1 = vU[0], vU[1], vU[2], vU[3], vU[4], vU[5], vE[0], vE[1], vE[2]
    o = [s_cmp('s_cmp_ge_u32', S(2), 256), s_branch('s_cbranch_scc1', 'L_k1_end')]
    o += [s_load('s_load_dwordx8', S(4, 8), S(0, 2), 0), s_load('s_load_dwordx2', pWO, S(0, 2), 32),
          s_load('s_load_dwordx8', S(32, 8), S(0, 2), 40), s_load('s_load_dwordx2', S(40, 2), S(0, 2), 72),
          s_load('s_load_dwordx2', pWS, S(0, 2), 96)]
    o += [salu('s_bfe_u32', sP, S(2), 0x10002), salu('s_and_b32', sT0, S(2), 1), salu('s_lshl_b32', sT0, sT0, 2), salu('s_bfe_u32', sT1, S(2), 0x20003),
          salu('s_add_u32', sB, sT0, sT1), salu('s_lshl_b32', sT1, sT1, 1),
          salu('s_lshr_b32', sT2, S(2), 5), salu('s_add_u32', sR0, sT1, sT2), s_cmp('s_cmp_ge_u32', sR0, 9),
          I('s_cselect_b32', f"s_cselect_b32 {sT1}, 9, 0", 'salu', [SCC], [sT1]), salu('s_sub_u32', sR0, sR0, sT1),
          salu('s_and_b32', sT0, S(2), 2), salu('s_lshl_b32', sT0, sT0, 2), salu('s_add_u32', sH, sT0, sT2), salu('s_lshl_b32', sH, sH, 1)]
    if not OPT['rot']: o.append(s_mov(sR0, 0))
    o += [salu('s_lshl_b32', sXC, sR0, 7), salu('s_lshl_b32', sWC, sR0, 19)]
    o += [valu('v_lshrrev_b32', t0, 6, vTID), valu('v_and_b32', l, 63, vTID), readfirstlane(sW, t0),
          valu('v_lshrrev_b32', hi, 5, l), valu('v_lshrrev_b32', t1, 3, l), valu('v_and_b32', t2, 7, l), salu('s_lshl_b32', sW4K, sW, 12)]
    o += [smul(sT0, sW, 64 * 1152), valu('v_mul_u32_u24', t0, 1152, t1), valu('v_lshl_add_u32', t0, t2, 4, t0), s_nop(0),
          valu('v_add_u32', vXg[0], sT0, t0)]
    for i in range(1, 8): o.append(valu('v_add_u32', vXg[i], i * 9216, vXg[0]))
    u, pch = r, c
    o += [valu('v_lshrrev_b32', u, 4, l), valu('v_and_b32', pch, 15, l), valu('v_lshlrev_b32', t3, 2, u), valu('v_xor_b32', t3, t3, pch),
          salu('s_lshl_b32', sT0, sW, 4), valu('v_add_u32', t0, sT0, u), valu('v_lshlrev_b32', t0, 13, t0), valu('v_lshl_add_u32', vWd, t3, 4, t0)]
    o += [wait(lg=0), s_cmp('s_cmp_eq_u32', sP, 0)]
    for d, s1 in ((pX, S(32, 2)), (pK, S(34, 2)), (pV, S(36, 2)), (pWQ, S(38, 2)), (pWO, S(40, 2))):
        o.append(I('s_cselect_b64', f"s_cselect_b64 {d}, {d}, {s1}", 'salu', [d, s1, SCC], [d]))
    o += [smul(sT0, sB, 276480)] + set_srd(srdX, pX, sT0, 276480)
    o += [salu('s_lshl_b32', sT0, sH, 8), salu('s_sub_u32', sT1, 576 * 8192, sT0)] + set_srd(srdW, pWQ, sT0, sT1)
    o += flat(load_X(0, 0) + dma_W(0) + load_X(0, 1) + dma_W(1) + load_X(0, 2) + dma_W(2))
    o += [salu('s_lshl_b32', sT0, sB, 5), salu('s_add_u32', sT0, sT0, sH), salu('s_lshl_b32', sT0, sT0, 18)]
    o += set_srd(srdK, pK, sT0, 524288) + set_srd(srdV, pV, sT0, 524288)
    o += [smul(sT0, sP, O_BYTES)] + set_srd(srdO, pWS, sT0, O_BYTES)
    o += set_srd(srdP, pWO, 0, PACK_BYTES)
    o += [smul(sT0, sP, PACK_BYTES), salu('s_add_u32', sT0, sT0, PACK_OFF)] + set_srd(srdQ, pWS, sT0, PACK_BYTES)
    o += [s_mov(sKOFF, 0), s_mov(sVOFF, 0), s_mov(sITEM, 0), salu('s_lshl_b32', sOH[0], sH, 13)]
    for i in range(1, 4): o.append(salu('s_add_u32', sOH[i], sOH[0], 4096 * i))
    c_scale = math.log2(math.e) / math.sqrt(128.0)
    o += [s_mov(sTHR, f2u(65536.0)), s_mov(sLO, f2u(2.0 ** -20)), s_mov(sSCALE, f2u(c_scale))]
    o += [valu('v_lshlrev_b32', t0, 8, u), valu('v_add_u32', t0, sW4K, t0), valu('v_lshl_add_u32', vVd, t3, 4, t0)]
    for n in range(4):
        o += [valu('v_add_u32', t3, 4 * n, u), valu('v_xor_b32', t3, t3, pch), valu('v_lshl_add_u32', vKd[n], t3, 4, t0)]
    o += [valu('v_xor_b32', t2, t2, u), valu('v_lshlrev_b32', t1, 7, t1), valu('v_lshl_add_u32', t1, t2, 4, t1),
          salu('s_add_u32', sT0, sW4K, XT), valu('v_add_u32', vXw[0], sT0, t1), valu('v_xor_b32', vXw[1], 64, vXw[0])]
    o += [valu('v_and_b32', t0, 31, l), valu('v_lshlrev_b32', t1, 7, t0), valu('v_add_u32', t1, sT0, t1), valu('v_bfe_u32', t2, l, 1, 3)]
    for ks in range(4):
        o += [valu('v_add_u32', t3, 2 * ks, hi), valu('v_xor_b32', t3, t3, t2), valu('v_lshl_add_u32', vXr[ks], t3, 4, t1)]
    o += [valu('v_lshlrev_b32', t1, 8, t0), valu('v_and_b32', t0, 15, l)]
    for s in range(8):
        o += [valu('v_add_u32', t2, 2 * s, hi), valu('v_xor_b32', t2, t2, t0), valu('v_lshl_add_u32', vKr[s], t2, 4, t1)]
    o += [valu('v_bfe_u32', r, l, 2, 2), valu('v_and_b32', c, 3, l), valu('v_bfe_u32', g1, l, 4, 1)]
    o += [valu('v_lshl_add_u32', t0, hi, 2, r), valu('v_lshlrev_b32', t3, 8, t0), valu('v_lshl_add_u32', t3, g1, 5, t3),
          valu('v_lshl_add_u32', t1, c, 3, t3), valu('v_add_u32', t1, 65536, t1)]
    for dt in range(4):
        o += [valu('v_xor_b32', t2, dt, r), valu('v_lshl_add_u32', vVr[dt], t2, 6, t1)]
    o += [salu('s_lshl_b32', sPM0, sW, 13), salu('s_add_u32', sPM0, sPM0, 131072), valu('v_mul_u32_u24', t0, 192, t0),
          valu('v_lshl_add_u32', t1, g1, 2, c), valu('v_mul_u32_u24', t1, 24, t1), valu('v_add3_u32', vPr, t0, t1, sPM0)]
    o += [valu('v_lshl_add_u32', t0, hi, 3, r), valu('v_lshlrev_b32', t0, 8, t0), valu('v_lshl_add_u32', t0, g1, 5, t0),
          valu('v_and_b32', t1, 1, c), valu('v_lshlrev_b32', t1, 1, t1), valu('v_lshrrev_b32', t2, 1, c), valu('v_or_b32', t1, t1, t2),
          valu('v_lshl_add_u32', t1, t1, 3, t0), valu('v_add_u32', t1, 98304, t1)]
    for dt in range(4):
        o += [valu('v_xor_b32', t2, dt, r), valu('v_lshl_add_u32', vWr[dt], t2, 6, t1)]
    for k in range(3):
        o += [valu('v_add_u32', t0, 64 * k, l), valu('v_mul_u32_u24', t1, 171, t0), valu('v_lshrrev_b32', t1, 11, t1),
              valu('v_mul_u32_u24', t2, 12, t1), valu('v_sub_u32', t2, t0, t2), valu('v_mul_u32_u24', t1, 1152, t1),
              valu('v_lshl_add_u32', t1, t2, 4, t1), valu('v_subrev_u32', vPd[k], 1024 * k, t1)]
    o += [salu('s_lshl_b32', sT0, sW, 6), valu('v_and_b32', t0, 31, l), valu('v_add_u32', t0, sT0, t0), smul(sT1, sB, 240)]
    for qt in range(2):
        o += [valu('v_add_u32', t1, 32 * qt, t0),
              valu('v_add_u32', t2, sT1, t1), valu('v_lshrrev_b32', t3, 5, t2), valu('v_lshlrev_b32', t3, 18, t3),
              valu('v_and_b32', t2, 31, t2), valu('v_lshl_add_u32', t3, t2, 4, t3), valu('v_lshl_add_u32', t3, hi, 9, t3),
              v_cmp('v_cmp_gt_u32', 240, t1), valu('v_mov_b32', t2, HUGE), s_nop(0),
              valu('v_cndmask_b32', vO[qt], t2, t3, VCC)]
    o += [valu('v_lshlrev_b32', vPs, 4, l)]
    o += [salu('s_and_b32', sT0, S(2), 3), salu('s_lshl_b32', sT0, sT0, 5), salu('s_lshr_b32', sT1, S(2), 3), salu('s_add_u32', sT0, sT0, sT1),
          salu('s_lshl_b32', sT0, sT0, 1)]
    for it in range(2):
        for s in range(2):
            ps, pd = ([sPS, sPS1][it][s], [sPD, sPD1][it][s])
            o += [salu('s_lshl_b32', sT1, sW, 1), salu('s_add_u32', sT1, sT1, 8 * it + s), s_cmp('s_cmp_ge_u32', sT1, 6),
                  I('s_cselect_b32', f"s_cselect_b32 {sT2}, 1, 0", 'salu', [SCC], [sT2]),
                  smul(pd, sT2, 6), salu('s_sub_u32', sT1, sT1, pd), salu('s_add_u32', sT2, sT2, sT0),
                  smul(ps, sT2, 16 * 1152), smul(pd, sT1, 192), salu('s_add_u32', ps, ps, pd),
                  smul(pd, sT1, 786432), smul(sT2, sT2, 3072), salu('s_add_u32', pd, pd, sT2), s_cmp('s_cmp_ge_u32', sT1, 6),
                  I('s_cselect_b32', f"s_cselect_b32 {ps}, {HUGE}, {ps}", 'salu', [SCC, ps], [ps]),
                  I('s_cselect_b32', f"s_cselect_b32 {pd}, {HUGE}, {pd}", 'salu', [SCC, pd], [pd])]
    if OPT['stamp']:
        o += set_srd(S(72, 4), pWS, 200 * 1024 * 1024, 1024 * 1024)
        o += [salu('s_lshl_b32', S(76), S(2), 2), salu('s_add_u32', S(76), S(76), sW), salu('s_lshl_b32', S(76), S(76), 8)]
    return o

def l_final(rc):
    o = []
    for qt in range(2):
        o.append([valu('v_mov_b32', rc[qt], vL[qt]), s_nop(1), permswap(vL[qt], rc[qt]), valu('v_add_f32', rc[qt], rc[qt], vL[qt]),
                  valu('v_rcp_f32', rc[qt], rc[qt]), s_nop(0)])
    return o
def o_piece(it, dt, qt, B, rc, tmp, pk):
    g = [[valu('v_accvgpr_read_b32', tmp[i], Oacc(dt, qt)[8 * B + i])] for i in range(8)]
    g += [[valu('v_mul_f32', tmp[i], tmp[i], rc[qt])] for i in range(8)]
    g += [[valu('v_cvt_pk_bf16_f32', pk[i], tmp[2 * i], tmp[2 * i + 1])] for i in range(4)]
    kap = dt * 2 + B
    if OPT['nost'] and it == 0: g.append([s_nop(0)])
    else: g.append([buf_store('buffer_store_dwordx4', pk, vO[qt], srdO, sOH[2 * it + kap // 4], (kap % 4) * 1024, OPT['ost'])])
    return g

def q_conv(dt, qt):
    acc = QACC(dt, qt)
    g = []
    for B in range(2):
        g += [[valu('v_mul_f32', acc[8 * B + i], sSCALE, acc[8 * B + i])] for i in range(8)]
        g += [[valu('v_cvt_pk_bf16_f32', Qreg(qt, 2 * dt + B)[i], acc[8 * B + 2 * i], acc[8 * B + 2 * i + 1])] for i in range(4)]
    return g

def qproj(it):
    o = []
    fill = {}
    if it == 0:
        for e in OPT['fill'].split(','): fill.setdefault(int(e[0]), []).append(e[1])
    nk = nv = 0
    epi = []
    if it == 1:
        rc = [V(240), V(241)]
        epi = l_final(rc)
        k = 0
        for dt in range(4):
            for qt in range(2):
                for B in range(2):
                    epi += o_piece(0, dt, qt, B, rc, V(224, 8), V(232 + (k % 2) * 4, 4)); k += 1
    for c in range(8):
        mf = []
        for ks in range(4):
            for dt in range(4):
                for qt in range(2):
                    d = QACC(dt, qt)
                    mf.append(mfma(d, Wf(ks, dt), XF(c, qt, ks), 0 if (c == 0 and ks == 0) else d))
        G = {g: [] for g in range(32)}
        RG = {1: [0, 0, 1, 2, 2, 3, 4, 4], 2: [5, 6, 6, 7, 8, 8, 9, 10], 3: [10, 11, 12, 12, 14, 14, 16, 16]}
        for ks in (1, 2, 3):
            for dt in range(4):
                for h in range(2): G[RG[ks][2 * dt + h]].append(rd_W(c, ks, dt, h))
        for ks in (1, 2): G[8 * ks - 1].append(wait(lg=[Wf(ks, dt) for dt in range(4)]))
        G[19] += [wait(vm=[WSLOT[(c + 1) % 3]], lg=[WSLOT[c % 3]]), s_barrier()]
        fl = []
        if c < 7:
            for dt in range(4):
                for h in range(2): G[20 + 2 * dt + h].append(rd_W(c + 1, 0, dt, h))
        else:
            for i in range(16):
                dt, ks = i // 4, i % 4
                if dt < 2:
                    for h in range(2): G[20 + (2 * i + h) * 12 // 16].append(rd_W(8, ks, dt, h, W8(it, ks, dt)))
        tr = chain(transit(it, c + 1), 8 if c < 7 else 1, 27 if c < 7 else 18, step=1.0 if c < 7 else 0.9)
        fl += tr
        last = None
        if it == 1 and c == 0:
            x3 = chain(load_X(1, 3), 0, 11, step=1); fl += x3
        if c + 3 <= 8:
            dw = dma_W(c + 3)
            if OPT['now'] and it == 1: dw = [[y if y.kind != 'dma' else s_nop(0) for y in x] for x in dw]
            w = chain(dw, 20, 25, step=1); fl += w; last = w[-1]
        if c == 7:
            w = chain(dma_V(2), 20, 31, step=1.5, delta=1); fl += w
        for kind in fill.get(c, []):
            if kind == 'K': grp = dma_K(nk); nk += 1
            else: grp = dma_V(nv); nv += 1
            if c + 3 <= 8 and kind == fill[c][0] and len(fill[c]) > 1: w = chain(grp, 2, 18, step=2, delta=1)
            else: w = chain(grp, 24, 31, after=[last], delta=1)
            fl += w
        nx = c + 4 if it == 0 else [4, 5, 6, 7, 8, 9, 9, 9][c]
        if nx <= 8:
            assert POS[it][nx] == POS[it][c + 1]
            lx = load_X(it, nx)
            a = chain(lx[:4], 0, 31, after=[tr[4]] + ([x3[-1]] if (it == 1 and c == 0) else []))
            fl += a + chain(lx[4:], 0, 31, after=[tr[13], a[-1]])
        if epi:
            take = 50 if c < 6 else len(epi)
            fl += chain(epi[:take], 1 if c else 3, 31, step=0.55); epi = epi[take:]
        G[31].append(wait(lg=[XF(c + 1, qt, ks) for qt in range(2) for ks in range(4)] + ([Wf(0, dt) for dt in range(4)] if c < 7 else [W8(it, ks, 0) for ks in range(4)])))
        o += schedule(mf, fixed(G) + fl, 22, REP)
    return o

def q_tail(it):
    mf = []
    for qt in range(2):
        for dt in range(4):
            for ks in range(4): mf.append(mfma(QACC(dt, qt), W8(it, ks, dt), XF(8, qt, ks), QACC(dt, qt)))
    for qt in range(2):
        for s in range(8): mf.append(mfma(Sreg(0, qt), Kf(s), Qreg(qt, s), 0 if s == 0 else Sreg(0, qt)))
    m0, g0 = period_parts(0, fin=False, first=True, dma=dma_V(3), endwait=[wait(lg=0), s_barrier()])
    mf += m0
    B0 = 48
    G = {g: [] for g in range(48)}
    for i in range(8, 16):
        dt, ks = i // 4, i % 4
        for h in range(2): G[(2 * (i - 8) + h) * 7 // 16].append(rd_W(8, ks, dt, h, W8(it, ks, dt)))
    G[3].append(wait(lg=[W8(it, ks, 1) for ks in range(4)]))
    G[7].append(wait(lg=[W8(it, ks, 2) for ks in range(4)]))
    G[11] += [wait(vm=['K0', 'V0', 'K1'], lg=0), s_barrier()]
    for s in range(8): G[12 + 2 * s].append(rd_K(0, s))
    G[31].append(wait(lg=[Kf(s) for s in range(8)]))
    for s in range(8): G[40 + s].append(rd_K(1, s))
    G[47].append(wait(lg=[Kf(s) for s in range(4)]))
    g0[3].append(wait(lg=[Kf(s) for s in range(4, 8)]))
    fl = []
    prev = None
    for qt in range(2):
        for dt in range(4):
            j = qt * 4 + dt
            lo = (7 if j == 0 else 4 * j + 5) if j < 6 else 33
            hi = 30 if qt == 0 else 38 + 2 * dt
            ch = chain(q_conv(dt, qt), lo, hi, after=[prev]); prev = ch[-1]; fl += ch
    fl += [F([valu('v_mov_b32', vM0[0], 0), valu('v_mov_b32', vM0[1], 0)], 0, 4)]
    ex, po = [], []
    for n in range(32):
        lo = 42 if n < 16 else 50
        aft = [(ex[-1], 0)] if ex else []
        if n >= 5 and po[n - 5] is not None: aft.append((po[n - 5], 0))
        if n >= 6 and po[n - 6] is not None: aft.append((po[n - 6], 0))
        if n >= 4 and (n - 5) % 2 == 0 and po[n - 4] is not None: pass
        e = F(sm_exp(0, n), lo, B0 + 12, after=aft); ex.append(e)
        p = sm_post(0, n)
        pf = F(p, lo, B0 + 13, after=[(e, 1)] + [(x, 0) for x in po[-1:] if x is not None]) if p else None
        po.append(pf)
    fl += ex + [p for p in po if p is not None]
    k = site('fbfirst')
    g0[14] += [valu('v_max_f32', vT, vLS(0, 0), vLS(0, 1)), valu('v_min_f32', vU[0], vLS(0, 0), vLS(0, 1)), v_cmp('v_cmp_lt_f32', sTHR, vT),
               I('v_cmp_gt_f32', f"v_cmp_gt_f32_e64 {sMASK}, {sLO}, {vU[0]}", 'valu', [sLO, vU[0]], [sMASK])]
    g0[15] += [I('s_or_b64', f"s_or_b64 {sMASK}, {sMASK}, vcc", 'salu', [sMASK, VCC], [sMASK, SCC]),
               s_branch('s_cbranch_scc1', f"L_tramp{k}"), label(f"L_ret{k}")]
    fl += chain([[valu('v_mov_b32', negM(0)[r], vM0[0])] for r in range(16)], B0 + 16, B0 + 30, step=0.9)
    return schedule(mf, fixed(G) + fixed(g0, B0) + fl, 26, REP)

def tile0_rest():
    e = chain([[valu('v_mov_b32', negM(1)[r], vM0[1])] for r in range(16)], 0, 6, step=0.4)
    k = chain(dma_K(0), 7, 17, step=2, delta=1)
    e += k + chain(dma_P(), 18, 31, step=2.2, after=k[-1:])
    return period(1, extra=e, endwait=tile_end(0))

def tile13():
    rd, st = pack_out()
    r = chain(rd, 16, 30, step=1.2)
    return tile(13, e0=r, e1=chain(st, 2, 30, step=4))

def next_item_regs():
    return [[salu('s_lshl_b32', sXC, sR0, 7), salu('s_lshl_b32', sWC, sR0, 19)],
            [salu('s_add_u32', srdW[0], srdW[0], 256), salu('s_addc_u32', srdW[1], srdW[1], 0), salu('s_sub_u32', srdW[2], srdW[2], 256)],
            [s_mov(sPS[0], sPS1[0]), s_mov(sPS[1], sPS1[1])], [s_mov(sPD[0], sPD1[0]), s_mov(sPD[1], sPD1[1])], [s_mov(sITEM, 1)]]

def tail_A():
    nr = chain(next_item_regs(), 0, 4, step=1)
    o = tile(14, e0=nr + chain(dma_W(0), 4, 12, step=2, after=[nr[-1]]), e1=chain(load_X(1, 0), 0, 12, step=1.4), more=['W0'])
    o += period(30, rdk=False, dma=dma_K(3), extra=chain(dma_W(1), 2, 12, step=2) + chain(load_X(1, 1), 15, 31, step=1.8))
    tr = chain(transit(1, 0), 16, 26, step=0.6)
    rw = chain([[rd_W(0, 0, dt, h)] for dt in range(4) for h in range(2)], 24, 29, after=[tr[-1]])
    bar = F([wait(lg=['V3']), s_barrier()], 24, 24, tail=True)
    lx = load_X(1, 2)
    a = chain(lx[:4], 18, 31, after=[tr[4]])
    e = tr + rw + [bar] + chain(dma_W(2), 25, 31, after=[(bar, 1)]) + a + chain(lx[4:], 18, 31, after=[tr[13], a[-1]])
    o += period(31, qk=False, rdk=False, extra=e, endwait=[wait(lg=0)])
    return o

def tail_B():
    o = tile(14, dV=False, dK=False)
    o += period(30, rdk=False)
    rc = [V(240), V(241)]
    lf = chain(l_final(rc), 18, 20)
    e, prev, k = list(lf), lf[-1], 0
    rest = []
    for dt in range(4):
        for qt in range(2):
            for B in range(2):
                g = o_piece(1, dt, qt, B, rc, V(160 + (k % 2) * 8, 8), V(176 + (k % 4) * 4, 4)); k += 1
                if dt == 0: ch = chain(g, 22, 31, after=[prev]); prev = ch[-1]; e += ch
                else: rest += flat(g)
    o += period(31, qk=False, rdk=False, dtmajor=True, extra=e, budget=32)
    return o + [s_nop(1)] + rest

def kernel1():
    head = k1_setup() + stamp(0)
    head += flat(transit(0, 0)) + flat(load_X(0, 3)) + [wait(vm=['W0']), s_barrier()]
    head += [rd_W(0, 0, dt, h) for dt in range(4) for h in range(2)] + [wait(lg=0)]
    head += qproj(0)
    loop = [label('L_tiles')]
    for t in range(1, 5): loop += tile(t)
    loop += [salu('s_sub_u32', sLOOP, sLOOP, 1), s_cmp('s_cmp_lg_u32', sLOOP, 0), s_branch('s_cbranch_scc1', 'L_tiles')]
    common = [label('L_tile0')] + stamp(2) + tile0_rest() + [s_mov(sLOOP, 3), Loop(loop, 3)] + tile13()
    common += [s_cmp('s_cmp_lg_u32', sITEM, 0), s_branch('s_cbranch_scc1', 'L_last')]
    qt0 = stamp(1) + q_tail(0)
    mid = tail_A() + stamp(3)
    if OPT['stamp']: mid += [salu('s_add_u32', S(76), S(76), 64)] + stamp(0)
    mid += qproj(1) + stamp(1) + q_tail(1) + [s_branch('s_branch', 'L_tile0')]
    last = [label('L_last')] + tail_B() + stamp(3) + [label('L_k1_end'), raw('s_endpgm')]
    static = head + qt0 + common + mid + last
    trace = head + qt0 + common + mid + common + last
    tramps = []
    for i, kind in enumerate(sites):
        tramps += [label(f"L_tramp{i}"), raw(f"s_call_b64 {sRET}, L_{kind}", 'branch', [], [sRET]), s_branch('s_branch', f"L_ret{i}")]
    return static, trace, tramps + fallback('fb0') + fallback('fb1') + fallback('fbfirst')

def descriptor(name, vgpr, accum, sgpr=96):
    return f""".amdhsa_kernel {name}
  .amdhsa_next_free_vgpr {vgpr}
  .amdhsa_next_free_sgpr {sgpr}
  .amdhsa_accum_offset {accum}
  .amdhsa_group_segment_fixed_size 0
  .amdhsa_kernarg_size 104
  .amdhsa_user_sgpr_count 2
  .amdhsa_user_sgpr_kernarg_segment_ptr 1
  .amdhsa_system_sgpr_workgroup_id_x 1
.end_amdhsa_kernel
"""

def finish(static, trace, rare, name):
    tr = expand(trace)
    resolve_waits(tr)
    errs = check(tr, name)
    if rare:
        resolve_waits(rare)
        errs += check(rare, name + "_rare")
    for e in errs[:40]: print("CHECK:", e, file=sys.stderr)
    if errs: print(f"{len(errs)} check errors in {name}", file=sys.stderr)
    return render(static) + "\n" + (render(rare) if rare else "")

def main():
    ref = open(os.path.join(os.path.dirname(os.path.abspath(__file__)), '..', 'cdna_kernels', NAME + '.s.ref')).read().splitlines()
    hdr = [l for l in ref if l.startswith(';') and '@launch' not in l and 'Override launch' not in l and 'grid=ceil' not in l]
    st, tr, rare = kernel1()
    if OPT['rep']:
        for r in REP: print(len(r), sum(max(0, x - 24) for x in r), r, file=sys.stderr)
    out = hdr[:]
    if OPT['k1']: out.append("; @launch kernel=attn_kernel grid=(256,1,1) block=(256,1,1) lds=163840")
    import gen4
    if OPT['k2']: out.append(f"; @launch kernel=oproj_kernel grid=(240,1,1) block=(256,1,1) lds={gen4.LDS}")
    out += ['.amdgcn_target "amdgcn-amd-amdhsa--gfx950"', '.text', '.globl attn_kernel', '.p2align 8', '.type attn_kernel,@function', 'attn_kernel:']
    out.append(finish(st, tr, rare, 'k1'))
    if OPT['k2']:
        k2 = gen4.kernel2(OPT)
        out += ['.globl oproj_kernel', '.p2align 8', '.type oproj_kernel,@function', 'oproj_kernel:']
        out.append(finish(k2, k2, None, 'k2'))
    out += ['.section .rodata,"a"', '.p2align 6', descriptor('attn_kernel', 512, 256)]
    if OPT['k2']:
        out += ['.p2align 6', descriptor('oproj_kernel', 512, 256)]
    open(sys.argv[1], 'w').write("\n".join(out))

if __name__ == '__main__':
    main()
```

```python
import re

class Reg:
    def __init__(self, f, i, n=1):
        self.f, self.i, self.n = f, i, n
    def __str__(self):
        if self.f in ('vcc', 'm0', 'exec', 'scc'):
            return self.f
        return f"{self.f}{self.i}" if self.n == 1 else f"{self.f}[{self.i}:{self.i+self.n-1}]"
    def regs(self):
        return [(self.f, self.i + k) for k in range(self.n)]
    def sub(self, off, n=1):
        assert off + n <= self.n, (str(self), off, n)
        return Reg(self.f, self.i + off, n)
    def __getitem__(self, k):
        return self.sub(k, 1)

def V(i, n=1): return Reg('v', i, n)
def A(i, n=1): return Reg('a', i, n)
def S(i, n=1): return Reg('s', i, n)
VCC = Reg('vcc', 0, 1)
M0 = Reg('m0', 0, 1)
EXEC = Reg('exec', 0, 1)
SCC = Reg('scc', 0, 1)

def regs_of(xs):
    out = []
    for x in xs:
        if isinstance(x, Reg):
            out += x.regs()
    return out

TRANS = ('v_exp_f32', 'v_rcp_f32', 'v_log_f32', 'v_rsq_f32', 'v_sqrt_f32')

class I:
    __slots__ = ('op', 'text', 'kind', 'rd', 'wr', 'a', 'b', 'c', 'lds_rd', 'lds_wr', 'wait', 'passes', 'val', 'wide', 'cmt', 'tag', 'key')
    def __init__(self, op, text, kind, rd=(), wr=(), **kw):
        self.op, self.text, self.kind = op, text, kind
        self.rd, self.wr = regs_of(rd), regs_of(wr)
        self.a = self.b = self.c = None
        tup = lambda x: () if x is None else (x,) if isinstance(x, str) else tuple(x)
        self.lds_rd = tup(kw.get('lds_rd'))
        self.lds_wr = tup(kw.get('lds_wr'))
        self.wait = kw.get('wait')
        self.passes = kw.get('passes', 0)
        self.val = None
        self.wide = kw.get('wide', False)
        self.cmt = kw.get('cmt')
        self.tag = None
        self.key = None
    def render(self):
        if self.kind == 'wait':
            vm, lg = self.val
            parts = []
            if vm is not None: parts.append(f"vmcnt({vm})")
            if lg is not None: parts.append(f"lgkmcnt({lg})")
            if not parts:
                return "    s_nop 0"
            return "    s_waitcnt " + " ".join(parts)
        if self.kind == 'label':
            return self.text
        t = "    " + self.text
        if self.cmt: t += "  ; " + self.cmt
        return t

class Loop:
    def __init__(self, body, count):
        self.body, self.count = body, count

def fmt(x):
    if isinstance(x, float):
        return repr(x)
    return str(x)

def label(name): return I('label', name + ":", 'label')
def raw(text, kind='salu', rd=(), wr=()): return I(text.split()[0], text, kind, rd, wr)

def salu(op, dst, *src, scc=True):
    wr = [dst] + ([SCC] if scc else [])
    return I(op, f"{op} {dst}, " + ", ".join(fmt(s) for s in src), 'salu', src, wr)
def s_mov(dst, src): return salu('s_mov_b32', dst, src, scc=False)
def s_cmp(op, a, b): return I(op, f"{op} {fmt(a)}, {fmt(b)}", 'salu', [a, b], [SCC])
def s_branch(op, target): return I(op, f"{op} {target}", 'branch', [VCC] if 'vcc' in op else [SCC] if 'scc' in op else [])
def s_nop(n):
    i = I('s_nop', f"s_nop {n}", 'nop'); i.val = n + 1; return i
def s_barrier(): return I('s_barrier', 's_barrier', 'barrier')

def valu(op, dst, *src, extra_rd=(), extra_wr=(), mods=""):
    rd = [s for s in src if isinstance(s, Reg)] + list(extra_rd)
    kind = 'trans' if op in TRANS else 'valu'
    return I(op, f"{op} {dst}, " + ", ".join(fmt(s) for s in src) + mods, kind, rd, [dst] + list(extra_wr))
class Neg:
    def __init__(self, r): self.r = r
    def __str__(self): return "-" + str(self.r)
def valu_n(op, dst, *src):
    rd = [s.r if isinstance(s, Neg) else s for s in src if isinstance(s, (Reg, Neg))]
    kind = 'trans' if op in TRANS else 'valu'
    return I(op, f"{op} {dst}, " + ", ".join(fmt(s) for s in src), kind, rd, [dst])
def v_cmp(op, a, b): return I(op, f"{op} vcc, {fmt(a)}, {fmt(b)}", 'valu', [a, b], [VCC])
def permswap(a, b): return I('v_permlane32_swap_b32', f"v_permlane32_swap_b32 {a}, {b}", 'perm', [a, b], [a, b])
def readfirstlane(dst, src): return I('v_readfirstlane_b32', f"v_readfirstlane_b32 {dst}, {src}", 'rfl', [src], [dst])

def mfma(d, a, b, c, shape='32x32x16'):
    op = f"v_mfma_f32_{shape}_bf16"
    i = I(op, f"{op} {d}, {a}, {b}, {fmt(c)}", 'mfma', [a, b, c], [d], passes=8 if shape == '32x32x16' else 4)
    i.a, i.b, i.c = a, b, (c if isinstance(c, Reg) else None)
    i.val = d
    return i

def ds_read(op, dst, addr, off, slot):
    assert 0 <= off < 65536, off
    return I(op, f"{op} {dst}, {addr} offset:{off}", 'ds', [addr], [dst], lds_rd=slot)
def ds_write(op, addr, src, off, slot):
    assert 0 <= off < 65536, off
    return I(op, f"{op} {addr}, {src} offset:{off}", 'ds', [addr, src], [], lds_wr=slot)

def buf_load(op, dst, voff, srd, soff, off, flags=""):
    assert 0 <= off < 4096, off
    return I(op, f"{op} {dst}, {voff}, {srd}, {fmt(soff)} offen offset:{off}{flags}", 'vmem', [voff, srd, soff], [dst])
def buf_dma(voff, srd, soff, off, slot, flags=""):
    assert 0 <= off < 4096, off
    return I('buffer_load_dwordx4', f"buffer_load_dwordx4 {voff}, {srd}, {fmt(soff)} offen offset:{off}{flags} lds", 'dma',
             [voff, srd, soff, M0], [], lds_wr=slot)
def buf_store(op, src, voff, srd, soff, off, flags=""):
    assert 0 <= off < 4096, off
    return I(op, f"{op} {src}, {voff}, {srd}, {fmt(soff)} offen offset:{off}{flags}", 'vstore', [src, voff, srd, soff], [],
             wide=(src.n >= 3))
def s_load(op, dst, base, off):
    return I(op, f"{op} {dst}, {base}, {off}", 'smem', [base], [dst])

def wait(vm=None, lg=None):
    return I('s_waitcnt', '', 'wait', wait=(vm, lg))

def expand(prog):
    out = []
    for x in prog:
        if isinstance(x, Loop):
            for _ in range(x.count):
                out += expand(x.body)
        else:
            out.append(x)
    return out

def flatten(prog):
    out = []
    for x in prog:
        if isinstance(x, Loop):
            out += flatten(x.body)
        else:
            out.append(x)
    return out

def _res_set(res):
    rs, slots = set(), set()
    for r in res:
        if isinstance(r, Reg): rs.update(r.regs())
        else: slots.add(r)
    return rs, slots

def _hits(op, rs, slots, counter):
    if rs & set(op.wr): return True
    if counter == 'vm':
        if slots & set(op.lds_wr): return True
        if op.kind == 'vstore' and rs & set(op.rd): return True
    else:
        if slots & (set(op.lds_rd) | set(op.lds_wr)): return True
    return False

def resolve_waits(trace):
    best = {}
    def need(q, res, counter):
        if res is None: return None
        if isinstance(res, int): return res
        rs, slots = _res_set(res)
        for k in range(len(q) - 1, -1, -1):
            if _hits(q[k], rs, slots, counter):
                return len(q) - 1 - k
        return None
    vq, lq = [], []
    for ins in trace:
        if ins.kind in ('vmem', 'dma', 'vstore'): vq.append(ins)
        elif ins.kind == 'ds': lq.append(ins)
        elif ins.kind == 'wait':
            vm, lg = need(vq, ins.wait[0], 'vm'), need(lq, ins.wait[1], 'lg')
            kk = ins.key or id(ins)
            old = best.get(kk, (None, None))
            def mn(a, b):
                if a is None: return b
                if b is None: return a
                return min(a, b)
            best[kk] = (mn(old[0], vm), mn(old[1], lg))
    for ins in trace:
        if ins.kind == 'wait':
            vm, lg = best[ins.key or id(ins)]
            if vm is not None: vm = min(vm, 63)
            if lg is not None: lg = min(lg, 15)
            ins.val = (vm, lg)

def check(trace, name="", shared_lds=True):
    errs = []
    vq, lq = [], []
    smem_pending = set()
    epoch = 0
    dma_retired_epoch = {}
    rd_retired_epoch = {}
    pos = 0
    last_valu_wr = {}; last_trans_wr = {}; last_mfma_wr = {}; last_mfma_c = {}; last_valu_sgpr = {}; last_store_rd = {}
    last_m0 = -100; m0tag = None
    def err(i, ins, msg): errs.append(f"{name}[{i}] {ins.text or ins.op}: {msg}")
    for i, ins in enumerate(trace):
        k = ins.kind
        if k == 'label': continue
        if k == 'wait':
            vm, lg = ins.val
            if vm is not None:
                while len(vq) > vm:
                    o = vq.pop(0)
                    for x in o.lds_wr: dma_retired_epoch[x] = epoch
            if lg is not None:
                while len(lq) > lg:
                    o = lq.pop(0)
                    for x in o.lds_rd: rd_retired_epoch[x] = epoch
                    for x in o.lds_wr: dma_retired_epoch[x] = epoch
                if lg == 0: smem_pending.clear()
            pos += 1
            continue
        if k == 'barrier':
            epoch += 1; pos += 1
            continue
        if k == 'nop':
            pos += ins.val
            continue
        touched = set(ins.rd) | set(ins.wr)
        for o in vq + lq:
            if set(o.wr) & touched: err(i, ins, f"touches pending load dest of: {o.text}")
        for o in vq:
            if o.kind == 'vstore' and ins.kind in ('vmem', 'ds') and set(o.rd) & set(ins.wr) and False:
                pass
        for o in lq:
            if o.lds_wr and o.op.startswith('ds_write') and False: pass
        if smem_pending & touched: err(i, ins, "touches pending s_load dest")
        if len(vq) > 63: err(i, ins, "more than 63 vmem outstanding")
        for s in ins.lds_rd:
            if any(s in o.lds_wr for o in vq + ([] if s.startswith('priv') else lq)): err(i, ins, f"reads slot {s} with own pending write")
            elif shared_lds and not s.startswith('priv') and dma_retired_epoch.get(s, -1) >= epoch: err(i, ins, f"reads slot {s} without barrier after write retire")
        for s in ins.lds_wr:
            if any(s in o.lds_rd for o in lq) and not (k == 'ds' and s.startswith('priv')): err(i, ins, f"writes slot {s} with own pending read")
            elif shared_lds and not s.startswith('priv') and rd_retired_epoch.get(s, -1) >= epoch: err(i, ins, f"writes slot {s} without barrier after read retire")
        def dist(d, r): return pos - d.get(r, -1000) - 1
        if k == 'mfma':
            for r in ins.rd:
                if dist(last_valu_wr, r) < 2: err(i, ins, f"VALU->MFMA {r} dist {dist(last_valu_wr, r)}")
            for part in (ins.a, ins.b):
                for r in part.regs():
                    if r in last_mfma_wr and pos - last_mfma_wr[r][0] - 1 < last_mfma_wr[r][1] + 4: err(i, ins, f"MFMA->MFMA AB {r}")
            if ins.c is not None:
                for r in ins.c.regs():
                    if r in last_mfma_wr:
                        p, passes, d = last_mfma_wr[r]
                        same = (d.f, d.i, d.n) == (ins.c.f, ins.c.i, ins.c.n) and passes == ins.passes
                        if not same and pos - p - 1 < passes + 2: err(i, ins, f"MFMA->MFMA C overlap {r}")
            for r in ins.wr:
                if r in last_mfma_wr:
                    p, passes, d = last_mfma_wr[r]
                    same = ins.c is not None and (d.f, d.i, d.n) == (ins.c.f, ins.c.i, ins.c.n)
                    if not same and pos - p - 1 < passes + 2: err(i, ins, f"MFMA WAW {r}")
        else:
            chk = touched if k in ('valu', 'trans', 'perm', 'rfl') else (set(ins.rd) | set(ins.wr))
            for r in chk:
                if r in last_mfma_wr and pos - last_mfma_wr[r][0] - 1 < last_mfma_wr[r][1] + 4:
                    err(i, ins, f"MFMA->use {r} dist {pos - last_mfma_wr[r][0] - 1}")
        if k in ('valu', 'trans', 'perm', 'rfl'):
            for r in ins.wr:
                if r in last_mfma_c and pos - last_mfma_c[r][0] - 1 < last_mfma_c[r][1] - 1: err(i, ins, f"MFMA C WAR {r}")
                if dist(last_store_rd, r) < 2: err(i, ins, f"store data WAR {r}")
            for r in ins.rd:
                if r[0] in ('s', 'vcc') and dist(last_valu_sgpr, r) < 2: err(i, ins, f"VALU sgpr->VALU {r}")
            if k != 'trans':
                for r in ins.rd:
                    if dist(last_trans_wr, r) < 1: err(i, ins, f"trans->VALU {r}")
            if k == 'perm':
                for r in ins.rd:
                    if dist(last_valu_wr, r) < 2: err(i, ins, f"VALU->permlane {r}")
            if k == 'rfl':
                for r in ins.rd:
                    if dist(last_valu_wr, r) < 1: err(i, ins, f"VALU->readfirstlane {r}")
        if k in ('vmem', 'ds') :
            for r in ins.wr:
                if dist(last_store_rd, r) < 1: err(i, ins, f"store data WAR(load) {r}")
        if k in ('vmem', 'dma', 'vstore'):
            for r in ins.rd:
                if r[0] == 's' and dist(last_valu_sgpr, r) < 5: err(i, ins, f"VALU sgpr->VMEM {r}")
        if k == 'dma' and pos - last_m0 - 1 < 1: err(i, ins, "M0->DMA")
        if k == 'dma' and ins.tag is not None and ins.tag is not m0tag: err(i, ins, "M0 belongs to another DMA group")
        if k == 'salu':
            for r in ins.rd:
                if r[0] == 's' and dist(last_valu_sgpr, r) < 1: err(i, ins, f"VALU sgpr->SALU {r} (pad)")
        if k in ('valu', 'trans', 'perm', 'rfl'):
            for r in ins.wr:
                if r[0] in ('s', 'vcc'): last_valu_sgpr[r] = pos
                else: last_valu_wr[r] = pos
                if k == 'trans': last_trans_wr[r] = pos
                last_mfma_wr.pop(r, None)
        if k == 'mfma':
            for r in ins.wr: last_mfma_wr[r] = (pos, ins.passes, ins.val)
            if ins.c is not None:
                for r in ins.c.regs(): last_mfma_c[r] = (pos, ins.passes)
        if k == 'vstore' and ins.wide:
            for r in ins.rd:
                if r[0] in ('v', 'a'): last_store_rd[r] = pos
        if ('m0', 0) in ins.wr: last_m0 = pos; m0tag = ins
        if k in ('vmem', 'dma', 'vstore'): vq.append(ins)
        if k == 'ds': lq.append(ins)
        if k == 'smem': smem_pending.update(ins.wr)
        pos += 1
    return errs

def render(prog):
    return "\n".join(x.render() for x in flatten(prog))


COST = {'trans': 8, 'label': 0, 'dma': 12, 'vmem': 8, 'vstore': 8}
def cost_of(ins):
    if ins.op.startswith('v_pk_'): return 8
    if ins.op.startswith('ds_write'): return 8
    return COST.get(ins.kind, 4)

class F:
    n = 0
    def __init__(self, ins, lo=0, hi=None, after=(), tail=False):
        self.ins = ins if isinstance(ins, list) else [ins]
        self.lo, self.hi, self.tail = lo, hi, tail
        self.after = [(a, 0) if isinstance(a, F) else a for a in after if a is not None]
        self.cost = sum(cost_of(i) for i in self.ins)
        self.gap = None
        F.n += 1; self.seq = F.n

def chain(groups, lo=0, hi=None, delta=0, after=(), step=0, slack=None, per=16):
    out = []
    for i, g in enumerate(groups):
        out.append(F(g, lo + int(i * step), hi, list(after) + ([(out[-1], delta)] if out else [])))
        if slack is not None: out[-1].hi = min(hi, out[-1].lo + slack)
    if hi is not None and per:
        rem = 0
        for f in reversed(out):
            f.hi = max(f.lo, min(f.hi, hi - rem // per)); rem += f.cost
    return out

def schedule(mf, fillers, budget=24, report=None):
    n = len(mf)
    for f in fillers:
        if f.hi is None: f.hi = n - 1
    for _ in range(3):
        for f in reversed(fillers):
            for a, d in f.after:
                if a.gap is None and a.hi is not None: a.hi = min(a.hi, f.hi - d)
    todo = list(fillers)
    pinned = [0] * (n + 1)
    for f in fillers:
        if f.lo == f.hi: pinned[f.lo] += f.cost
    out, loads = [], []
    for g in range(n):
        body, tail, used = [], [], 0
        while True:
            ready = [f for f in todo if f.lo <= g and all(a.gap is not None and a.gap + d <= g for a, d in f.after)]
            if not ready: break
            f = min(ready, key=lambda f: (f.hi, f.seq))
            if f.hi > g and used + f.cost > budget:
                fit = [x for x in ready if used + x.cost <= budget or used <= min(pinned[g + 1:x.hi + 1] or [99])]
                if not fit: break
                f = min(fit, key=lambda f: (f.hi, f.seq))
            assert f.hi >= g, ("missed deadline", f.ins[0].text or f.ins[0].op, f.lo, f.hi, g)
            f.gap = g; todo.remove(f); used += f.cost
            (tail if f.tail else body).extend(f.ins)
        if mf[g] is not None: out.append(mf[g])
        elif not out or out[-1].kind == 'trans': out.append(s_nop(0))
        out += body + tail
        loads.append(used)
    assert not todo, [(f.ins[0].text or f.ins[0].op, f.lo, f.hi) for f in todo]
    if report is not None: report.append(loads)
    return out

def tag_m0(groups):
    cur = None
    for g in groups:
        for x in g:
            if ('m0', 0) in x.wr: cur = x
            if x.kind == 'dma': x.tag = cur
    return groups


def smfmac(d, a, b, idx):
    i = I('v_smfmac', f"v_smfmac_f32_16x16x64_bf16 {d}, {a}, {b}, {idx}", 'mfma', [a, b, d, idx], [d], passes=8)
    i.a, i.b, i.c, i.val = a, b, d, d
    return i
def perm16(a, b): return I('v_permlane16_swap_b32', f"v_permlane16_swap_b32 {a}, {b}", 'perm', [a, b], [a, b])
def pk_mul_s(d, s): return I('v_pk_mul_f32', f"v_pk_mul_f32 {d}, {s}, {d} op_sel_hi:[0,1]", 'valu', [s, d], [d])
def pk_mul_v(d, pair, k):
    m = "op_sel_hi:[1,0]" if k == 0 else "op_sel:[0,1]"
    return I('v_pk_mul_f32', f"v_pk_mul_f32 {d}, {d}, {pair} {m}", 'valu', [pair, d], [d])
def rolled(name, bodies):
    for b in bodies:
        assert len(b) == len(bodies[0]), (name, len(b), len(bodies[0]))
        for k, (x, y) in enumerate(zip(b, bodies[0])):
            assert x.text == y.text and x.kind == y.kind, (name, k, x.text, y.text)
            if x.kind == 'wait': x.key = (name, k)
    return bodies
```

```python
import sys, os, math, struct
from asmlib import *
import asmlib

NAME = "concat_heads__mha_block_cached__gqa_block_cached__near_ridge"
OPT = dict(stamp=0, k2=1, k1=1, ost=' sc1', pst=' sc1', xf='', wf='', pf=' nt', kvf=' nt', rot=1, rep=0,
           depth=5, rot2=0, of='', wof='', kv0=5, pk0=0, cinit=1, al=6, dc=8, forcefb=0, nodma=0, dg=0, nost=0)
STR = ('ost', 'pst', 'xf', 'wf', 'pf', 'kvf', 'of', 'wof')
for a in sys.argv[2:]:
    k, v = a.split('=')
    OPT[k] = ((' ' + v.replace('+', ' ')) if v != '-' else '') if k in STR else int(v)
asmlib.COST['dma'] = OPT['dc']

def f2u(x): return struct.unpack('<I', struct.pack('<f', x))[0]
O_BYTES = 60 * 262144
PACK_OFF = 32 * 1024 * 1024
PACK_BYTES = 4096 * 1152
HUGE = 0x7f000000
SH = '16x16x32'

pX, pK, pV, pWQ, pWO, pWS = S(4, 2), S(6, 2), S(8, 2), S(10, 2), S(12, 2), S(14, 2)
srdP, srdQ = S(16, 4), S(20, 4)
sPS, sPD = [S(24), S(25)], [S(26), S(27)]
sPS1, sPD1 = [S(28), S(29)], [S(30), S(31)]
srdK, srdV, srdO = S(32, 4), S(36, 4), S(40, 4)
srdX, srdW = [S(44, 4), S(48, 4)], [S(52, 4), S(56, 4)]
sSCALE = S(60, 2)
sRET = S(62, 2)
sW, sB, sH, sP, sW4K, sT0, sT1, sT2 = S(64), S(65), S(66), S(67), S(68), S(3), S(69), S(80)
sSTAMP = S(70, 2)
sKOFF, sVOFF, sKM, sTG, sEND, sITEM = S(81), S(82), S(83), S(84), S(85), S(86)
sXC, sWC, sXM, sWM, sCNT = S(87), [S(88), S(89)], [S(90), S(91)], S(92), S(93)
sHI, sLO, sPM0, sPAD, sFH = S(94), S(95), S(96), S(97), S(98)
sOA = [S(99), S(100)]
sMASK = S(4, 2)
sF, sF2, sFC = S(6), S(7), S(8)
sR0 = S(101)
vKr = [V(1 + i) for i in range(4)]
vVr = [V(5 + i) for i in range(8)]
vKd = [V(13 + i) for i in range(4)]
vVd = [V(17), V(18)]
vIDX = V(19)
vCI = V(20, 4)
vO = [V(24 + i) for i in range(4)]
vRC = V(28, 4)
vT = V(0)
def Sreg(qt, kt): return V(32 + qt * 8 + (4 * kt if qt % 2 else 4 - 4 * kt), 4)
def Preg(qt): return Sreg(qt, 0)
def Qreg(qt, s): return V(64 + qt * 16 + s * 4, 4)
def Oacc(dt, qt): return V(128 + qt * 32 + dt * 4, 4)
def QACC(h, s, tt, qt): return (V(128 + qt * 32 + s * 8 + tt * 4, 4) if h == 0 else A(qt * 32 + s * 8 + tt * 4, 4))
vXg = [V(32 + i) for i in range(8)]
vWd = [[V(40 + i) for i in range(4)], [V(44 + i) for i in range(4)]]
vXr = [[V(48), V(49)], [V(50), V(51)]]
vWr = [V(52 + i) for i in range(8)]
def Kf(kt, s): return A(128 + (kt * 4 + s) * 4, 4)
def Vf(dt): return A(160 + dt * 4, 4)
def Wf(p): return A(160 + (p % 8) * 4, 4)
def XF(ks, qt): return A(192 + (ks * 4 + qt) * 4, 4)
def PKf(s, nt): return A(192 + (s * 3 + nt) * 4, 4)
def Lacc(i): return A(224 + 4 * i, 4)
aONE = A(232, 4)
aPd, aPr, aPs = [A(236), A(237), A(238)], A(239), A(240)
GRAY = [0, 1, 3, 2]
def Kn(t): return f"K{GRAY[t % 4]}"
def Vn(t): return f"V{GRAY[t % 4]}"
WN = ['E1', 'E0', 'V3', 'V2']
def Xn(c, part): return f"privX{c % 2}{part}"
XBASE = [[32768, 49152], [16384, 81920]]

def stamp(idx, t0=V(28), t1=V(29)):
    if not OPT['stamp']: return []
    return [raw(f"s_memtime {sSTAMP}", 'salu', [], [sSTAMP]), raw("s_memrealtime s[78:79]"), raw("s_waitcnt lgkmcnt(0)", 'salu'),
            valu('v_mov_b32', t0, sSTAMP[0]), valu('v_mov_b32', t1, idx * 4), raw(f"s_nop 0", 'salu'),
            raw(f"buffer_store_dword {t0}, {t1}, s[72:75], s76 offen", 'vstore'),
            raw("s_nop 1"), valu('v_mov_b32', t0, S(78)), raw("s_nop 0"),
            raw(f"buffer_store_dword {t0}, {t1}, s[72:75], s76 offen offset:32", 'vstore'), raw("s_nop 1")]

def set_srd(srd, base, off_lo, nbytes):
    return [salu('s_add_u32', srd[0], base[0], off_lo), salu('s_addc_u32', srd[1], base[1], 0),
            s_mov(srd[2], nbytes), s_mov(srd[3], 0x20000)]
def smul(d, a, b): return salu('s_mul_i32', d, a, b, scc=False)
def flat(groups): return [x for g in groups for x in g]
def csel(d, a, b): return I('s_cselect_b32', f"s_cselect_b32 {d}, {a}, {b}", 'salu', [SCC, a, b], [d])
def advance(reg, step, first=0):
    return [salu('s_add_u32', reg, reg, step), s_cmp('s_cmp_eq_u32', reg, 9 * step + first), csel(reg, first, reg)]
def at(groups, gaps):
    assert len(groups) == len(gaps), (len(groups), len(gaps))
    return [F(g, p, p, tail=all(x.kind in ('wait', 'barrier') for x in g)) for g, p in zip(groups, gaps)]

def dma_K(name, m0, soff=sKOFF, adv=True):
    d = [[m0]] + [[buf_dma(vKd[n], srdK, soff, 1024 * n, name, OPT['kvf'])] for n in range(4)]
    if OPT['nodma']: d = [[m0]] + [[s_nop(0)] for n in range(4)]
    return tag_m0(d + ([[salu('s_add_u32', sKOFF, sKOFF, 16384)]] if adv else []))
def dma_V(name, m0, soff=sVOFF, adv=True):
    d = [[m0]] + [[buf_dma(vVd[n % 2], srdV, soff, 1024 * n, name, OPT['kvf'])] for n in range(4)]
    if OPT['nodma']: d = [[m0]] + [[s_nop(0)] for n in range(4)]
    return tag_m0(d + ([[salu('s_add_u32', sVOFF, sVOFF, 16384)]] if adv else []))
def dma_X(part, name):
    return tag_m0([[s_mov(M0, sXM[part])]] + [[buf_dma(vXg[4 * part + n], srdX[part], sXC, 1024 * n, name, OPT['xf'])] for n in range(4)])
def dma_W(i, name, m0):
    return tag_m0([[m0]] + [[buf_dma(vWd[i][n], srdW[i], sWC[i], 1024 * n, name, OPT['wf'])] for n in range(4)])
def dma_P():
    t = [vRC[0], vRC[1], vRC[2]]
    out = [[valu('v_accvgpr_read_b32', t[u], aPd[u])] for u in range(3)]
    for s in range(2):
        out.append([salu('s_add_u32', M0, sPM0, s * 3072), s_nop(0)])
        out += [[buf_dma(t[u], srdP, sPS[s], 1024 * u, ('privP', 'E0', 'E1'), OPT['pf'])] for u in range(3)]
    return tag_m0(out)
def pack_out():
    ra, sa = vRC[0], vRC[1]
    rd = [[valu('v_accvgpr_read_b32', ra, aPr), valu('v_accvgpr_read_b32', sa, aPs)]]
    for s in range(2):
        for nt in range(3):
            rd.append([ds_read('ds_read_b64_tr_b16', PKf(s, nt).sub(2 * h, 2), ra, s * 3072 + h * 1536 + 8 * nt, 'privP') for h in range(2)])
    st = [[buf_store('buffer_store_dwordx4', PKf(s, nt), sa, srdQ, sPD[s], nt * 1024, OPT['pst'])] for s in range(2) for nt in range(3)]
    return rd, st

def rd_K(name, half, kt, s): return ds_read('ds_read_b128', Kf(kt, s), vKr[s], half * 8192 + kt * 4096, name)
def rd_V(name, half, dt): return [ds_read('ds_read_b64_tr_b16', Vf(dt).sub(2 * h, 2), vVr[dt], half * 8192 + h * 4096, name) for h in range(2)]
def rd_W(p, h, head, i):
    return [ds_read('ds_read_b64_tr_b16', Wf(p).sub(2 * j, 2), vWr[i], (1 - h % 2) * 16384 + j * 2048 + head * 256, WN[h % 4]) for j in range(2)]
def rd_X(c, ks, qt): return ds_read('ds_read_b128', XF(ks, qt), vXr[qt // 2][ks], (qt % 2) * 2048, Xn(c, qt // 2))

ST = [32, 40, 49, 57]
NP = 66
DG = [[[54, 55, 57, 59, 61, 62], [54, 55, 57, 59, 61, 62]], [[38, 39, 48, 55, 60, 62], [15, 16, 30, 45, 58, 60]]][OPT['dg']]
REP = []
def period_parts(j, B=0, first=False, nxt=True, kg=None):
    t, odd = j // 2, j % 2
    mf = []
    for qt in range(4):
        for kt in range(2):
            for s in range(4):
                c = Sreg(qt, kt) if s else (vCI if (qt == 3 and OPT['cinit']) else 0)
                mf.append(mfma(Sreg(qt, kt), Kf(kt, s), Qreg(qt, s), c, SH))
    for qt in range(4):
        if qt % 2: mf.append(smfmac(Lacc(qt // 2), aONE, V(Preg(qt - 1).i, 8), vIDX))
        for dt in range(8): mf.append(mfma(Oacc(dt, qt), Vf(dt), Preg(qt), 0 if first else Oacc(dt, qt), SH))
    fl = []
    prev = None
    for qt in range(4):
        dl = B + ST[qt] - 3
        pc = None
        for kt in range(2):
            lo = B + 8 * qt + 4 * kt + 3 + 4
            ex = []
            for r in range(4):
                prev = F(valu('v_exp_f32', Sreg(qt, kt)[r], Sreg(qt, kt)[r]), lo, dl - 1, after=[prev]); ex.append(prev)
            fl += ex
            for h in range(2):
                pc = F(valu('v_cvt_pk_bf16_f32', Preg(qt)[2 * kt + h], Sreg(qt, kt)[2 * h], Sreg(qt, kt)[2 * h + 1]), lo, dl,
                       after=[(ex[2 * h + 1], 1), pc]); fl.append(pc)
    vr = at([rd_V(Vn(t), odd, dt) for dt in range(8)], [B + g for g in range(8)]); fl += vr
    fl += at([[wait(lg=[Vf(dt) for dt in range(8)])]], [B + 31])
    if nxt:
        kg = kg or [37, 37, 46, 46, 47, 47, 53, 53]
        fl += at([[rd_K(Kn(t + odd), 1 - odd, i // 4, i % 4)] for i in range(8)], [B + g for g in kg])
        fl += at([[wait(lg=0)]], [B + 65])
        if odd:
            fl += at([[wait(vm=[Kn(t + 1), Vn(t + 1)]), s_barrier()]], [B + 36])
            fl += at(dma_K(Kn(t + 4), s_mov(M0, sKM)), [B + g for g in DG[0]])
            fl += [F(valu('v_xor_b32', vVr[dt], sTG, vVr[dt]), B + 31, B + 65) for dt in range(8)]
        else:
            fl += at(dma_V(Vn(t + 3), salu('s_add_u32', M0, sKM, 65536)), [B + g for g in DG[1]])
            x = F([salu('s_xor_b32', sKM, sKM, sTG), salu('s_xor_b32', sTG, sTG, 49152)], B + DG[1][0] + 1, B + 60)
            fl += [x] + [F(valu('v_xor_b32', vKr[s], sTG, vKr[s]), B + 54, B + 65, after=[x]) for s in range(4)]
    return mf, fl
def period(j, extra=(), **kw):
    mf, fl = period_parts(j, **kw)
    return schedule(mf, fl + list(extra), 8, REP)

def q_half(c, hf, last):
    h = 2 * c + hf
    mf = [mfma(QACC(i // 8, (i % 8) // 2, i % 2, qt), Wf(i), XF(hf, qt), QACC(i // 8, (i % 8) // 2, i % 2, qt), SH)
          for i in range(16) for qt in range(4)]
    fl = []
    for i in range(16):
        p = i + 4
        fl += at([rd_W(p, h, p // 8, p % 8) if p < 16 else rd_W(p, h + 1, 0, p - 16)], [4 * i])
    for i in range(2, 18, 2):
        w = [Wf(i), Wf(i + 1)] + ([XF(1 - hf, qt) for qt in range(4)] if i == 16 else [])
        fl += at([[wait(lg=w)]], [4 * i - 1])
    fl += at([[wait(vm=[WN[(h + 1) % 4]]), s_barrier()]], [46])
    if hf == 0:
        fl += at([[rd_X(c, 1, 0), rd_X(c, 1, 2)], [rd_X(c, 1, 1), rd_X(c, 1, 3)],
                  [valu('v_xor_b32', vXr[0][1], 0xC000, vXr[0][1]), valu('v_xor_b32', vXr[1][1], 0x18000, vXr[1][1])]], [1, 2, 5])
        fl += at(dma_X(0, (Xn(c, 0), Kn(1)) if last else Xn(c, 0)), [17, 18, 22, 26, 30])
        fl += at([[salu('s_xor_b32', sXM[0], sXM[0], 0xC000)]], [33])
        fl += at(dma_W(0, WN[(h + 3) % 4], salu('s_xor_b32', M0, sWM, 0x38000)) + [advance(sWC[0], 524288, 262144)], [49, 50, 53, 57, 61, 62])
    else:
        fl += at(dma_X(1, (Xn(c, 1), Vn(1)) if last else Xn(c, 1)), [1, 2, 6, 10, 14])
        fl += at([[salu('s_xor_b32', sXM[1], sXM[1], 0x18000)], advance(sXC, 128)], [17, 18])
        fl += at([[wait(vm=[Xn(c + 1, 0), Xn(c + 1, 1)])], [rd_X(c + 1, 0, 0), rd_X(c + 1, 0, 2)], [rd_X(c + 1, 0, 1), rd_X(c + 1, 0, 3)],
                  [valu('v_xor_b32', vXr[0][0], 0xC000, vXr[0][0]), valu('v_xor_b32', vXr[1][0], 0x18000, vXr[1][0])]], [37, 38, 41, 42])
        fl += at([[valu('v_xor_b32', vWr[i], 0x38000, vWr[i])] for i in range(8)], [19, 21, 25, 29, 33, 37, 43, 45])
        fl += at(dma_W(1, WN[(h + 3) % 4], salu('s_add_u32', M0, sWM, 16384)) + [advance(sWC[1], 524288)], [49, 50, 53, 57, 61, 62])
        fl += at([[salu('s_xor_b32', sWM, sWM, 0x38000)]], [51])
    return schedule(mf, fl, 8, REP)

def q_loop():
    bodies = []
    for c in range(8):
        b = [label('L_q')] + q_half(c, 0, c == 7) + q_half(c, 1, c == 7)
        b += [salu('s_add_u32', sCNT, sCNT, 1), s_cmp('s_cmp_lt_u32', sCNT, OPT['kv0'] + 1), s_branch('s_cbranch_scc1', 'L_q')]
        bodies.append(b)
    rolled('q', bodies)
    t8 = [s_cmp('s_cmp_eq_u32', sCNT, 8), s_branch('s_cbranch_scc1', 'L_qtail')]
    ta = [s_cmp('s_cmp_lg_u32', sCNT, OPT['kv0'] + 1), s_branch('s_cbranch_scc1', 'L_q1')]
    a = flat(dma_K(Kn(0), s_mov(M0, sW4K), 0, False)); a.insert(1, s_nop(0))
    b = flat(dma_V(Vn(0), salu('s_add_u32', M0, sW4K, 65536), 0, False)); b.insert(1, s_nop(0))
    kv0 = a + b
    tb = [label('L_q1'), s_cmp('s_cmp_lg_u32', sCNT, 7), s_branch('s_cbranch_scc1', 'L_q')]
    sw = []
    for d, s in ((srdX[0], srdK), (srdX[1], srdV), (srdW[1], srdV)):
        sw += [s_mov(d[k], s[k]) for k in range(3)]
    sw += [s_mov(sXC, 16384), s_mov(sWC[1], 32768)]
    for n in range(4):
        sw += [valu('v_mov_b32', vXg[n], vKd[n]), valu('v_mov_b32', vXg[4 + n], vVd[n % 2]), valu('v_mov_b32', vWd[1][n], vVd[n % 2])]
    sw += [s_branch('s_branch', 'L_q')]
    static = bodies[0] + t8 + ta + kv0 + tb + sw
    trace = []
    for c in range(8):
        trace += bodies[c]
        if c + 1 >= OPT['kv0'] + 1:
            trace += t8
            if c < 7:
                trace += ta + (kv0 if c == OPT['kv0'] else []) + tb + (sw if c == 6 else [])
    return static, trace

def conv(h, qt, s, tmp=None, pk=True):
    q = Qreg(qt, s)
    g = []
    src = V(QACC(0, s, 0, qt).i, 8) if h == 0 else tmp
    if h == 1: g += [[valu('v_accvgpr_read_b32', tmp[i], A(QACC(1, s, 0, qt).i + i))] for i in range(8)]
    if pk: g += [[pk_mul_s(src.sub(2 * i, 2), sSCALE)] for i in range(4)]
    else: g += [[valu('v_mul_f32', src[i], sSCALE[0], src[i])] for i in range(8)]
    g += [[valu('v_cvt_pk_bf16_f32', q[i], src[2 * i], src[2 * i + 1])] for i in range(4)]
    return g, [[perm16(q[0], q[2])], [perm16(q[1], q[3])]]
def l_init():
    return [[valu('v_accvgpr_write_b32', Lacc(i // 4)[i % 4], sPAD if i == 6 else 0)] for i in range(8)]

def q_tail():
    seq = [(hd, ks, i) for hd in range(2) for ks in range(2) for i in range(8)]
    mf = [mfma(QACC(hd, i // 2, i % 2, qt), Wf(p), XF(ks, qt), QACC(hd, i // 2, i % 2, qt), SH)
          for p, (hd, ks, i) in enumerate(seq) for qt in range(4)]
    B = 128
    m0, fl = period_parts(0, B, first=True)
    mf += m0
    for p in range(4, 32): fl += at([rd_W(p, 16 + seq[p][1], seq[p][0], seq[p][2])], [4 * (p - 4)])
    for p in range(2, 32, 2): fl += at([[wait(lg=[Wf(p), Wf(p + 1)] + ([XF(1, qt) for qt in range(4)] if p == 8 else []))]], [4 * p - 1])
    fl += at([[rd_X(8, 1, 0), rd_X(8, 1, 2)], [rd_X(8, 1, 1), rd_X(8, 1, 3)], [wait(vm=['E0']), s_barrier()]], [1, 2, 14])
    fl += at(dma_K((Kn(2), Xn(8, 1)), salu('s_add_u32', M0, sW4K, 49152)), [17, 18, 21, 22, 25, 26])
    fl += at(dma_K((Kn(3), Xn(8, 0)), s_mov(M0, sKM)), [29, 30, 33, 34, 37, 38])
    fl += chain(l_init(), 5, 40, step=1)
    fl += at([[wait(vm=[Kn(0), Vn(0)], lg=0), s_barrier()]], [119])
    fl += at([[rd_K(Kn(0), 0, i // 4, i % 4)] for i in range(8)], [120, 120, 121, 121, 122, 122, 123, 123])
    fl += at([[wait(lg=[Kf(0, s) for s in range(4)])], [wait(lg=[Kf(1, s) for s in range(4)])]], [127, B + 3])
    prev, sw = None, []
    order = [(qt, s) for s in range(3) for qt in range(4)] + [(qt, 3) for qt in range(4)]
    order.sort(key=lambda x: (x[1] if x[1] < 2 else 2, x[0]))
    for qt, s in order:
        g, p16 = conv(0, qt, s, pk=OPT['pk0'])
        lo = 4 * (9 + 2 * s) + qt + 5
        hi = B + 8 * qt - 2
        ch = chain(g + [[s_nop(0)]] + p16[:1] + p16[1:], lo, hi, after=[prev], per=0); prev = ch[-1]; fl += ch
    fl += chain(dma_P(), B + DG[1][0] - 12, B + DG[1][0] - 1, per=0) if DG[1][0] > 40 else chain(dma_P(), B + 61, B + 65, per=0)
    return schedule(mf, fl, 8, REP)

sites = []
def check_parts():
    t = [V(32 + i) for i in range(8)]
    g = [[valu('v_accvgpr_read_b32', t[i], Lacc(i // 4)[i % 4])] for i in range(8)]
    g += [[valu('v_add_f32', vRC[q], t[2 * q], t[2 * q + 1])] for q in range(4)]
    g += [[valu('v_add_f32', t[0], vRC[0], vRC[1])], [valu('v_add_f32', t[1], vRC[2], vRC[3])], [valu('v_min3_f32', t[2], vRC[0], vRC[1], vRC[2])],
          [valu('v_add_f32', t[0], t[0], t[1])], [valu('v_min_f32', t[2], t[2], vRC[3])], [v_cmp('v_cmp_ngt_f32', sHI, t[0])],
          [I('v_cmp_gt_f32', f"v_cmp_gt_f32_e64 {sMASK}, {sLO}, {t[2]}", 'valu', [sLO, t[2]], [sMASK])]]
    k = len(sites); sites.append(k)
    br = [s_nop(0), I('s_or_b64', f"s_or_b64 {sMASK}, {sMASK}, vcc", 'salu', [sMASK, VCC], [sMASK, SCC]),
          s_branch('s_cbranch_scc0' if OPT['forcefb'] else 's_cbranch_scc1', f"L_tramp{k}"), label(f"L_ret{k}")]
    return g, br
def last_period(j, nxt):
    rd, st = pack_out()
    ck, br = check_parts()
    r = chain(rd, 16, 36, step=2, per=0)
    w = F(wait(lg=[PKf(s, nt) for s in range(2) for nt in range(3)]), 38, 44, after=[r[-1]])
    e = r + [w] + chain(st, 39, 56, step=2.5, after=[w], per=0)
    c1 = chain(ck[:4], 50, 62, per=0)
    e += c1 + chain([[s_nop(1)]] + ck[4:], 64, 65, per=0, after=c1[-1:])
    return period(j, extra=e, nxt=nxt) + br
def epilogue(qt, mid=False):
    g = []
    for m in range(4):
        o = V(Oacc(2 * m, qt).i, 8)
        g += [[pk_mul_v(o.sub(2 * i, 2), vRC.sub(qt & 2, 2), qt & 1)] for i in range(4)]
        g += [[valu('v_cvt_pk_bf16_f32', o[i], o[2 * i], o[2 * i + 1])] for i in range(4)]
        if not (OPT['nost'] and mid): g += [[buf_store('buffer_store_dwordx4', o.sub(0, 4), vO[qt], srdO, sOA[m // 2], (m % 2) * 2048, OPT['ost'])]]
    return g
def rcp(): return [valu('v_rcp_f32', vRC[q], vRC[q]) for q in range(4)]

def boundary():
    o = [label('L_mid')] + last_period(31, True) + stamp(4, V(32), V(33)) + stamp(16, V(32), V(33)) + stamp(17, V(32), V(33))
    o += rcp() + flat(l_init())
    o += [s_mov(sPS[0], sPS1[0]), s_mov(sPS[1], sPS1[1]), s_mov(sPD[0], sPD1[0]), s_mov(sPD[1], sPD1[1]), s_mov(sITEM, 1),
          s_mov(sFH, 262144), salu('s_add_u32', sEND, sEND, 262144)]
    tmp = V(56, 8)
    def cv(qt):
        out, pend = [], []
        for s in range(4):
            g, p = conv(1, qt, s, tmp)
            out += g[:2] + pend + g[2:]; pend = p
        return out + [[s_nop(1)]] + pend
    o += flat(epilogue(0, True)) + flat(cv(0)) + [s_nop(1)]
    e, prev = [], None
    for qt in range(1, 4):
        ch = chain(cv(qt), 8 * qt - 8, 8 * qt - 2, after=[prev], per=0); prev = ch[-1]; e += ch
    for qt in range(1, 4):
        ch = chain(epilogue(qt, True), 20, ST[qt] - 3, after=[prev], per=0); prev = ch[-1]; e += ch
    e += chain([[salu('s_add_u32', sOA[0], sOA[0], 8192), salu('s_add_u32', sOA[1], sOA[1], 8192)]] + dma_P(), 40 if DG[1][0] > 40 else 61, 53 if DG[1][0] > 40 else 65, after=[prev], per=0)
    return o + period(32, extra=e, first=True)
def final():
    o = [label('L_last')] + last_period(63, False) + rcp()
    for qt in range(4): o += flat(epilogue(qt))
    return o + stamp(20, V(32), V(33))

def fallback():
    vk, vv, ad, f, t, t2 = V(32), [V(33), V(34)], V(35), V(36), V(37), V(38)
    m, s8 = [V(40 + q) for q in range(4)], V(48, 8)
    l = [vRC[q] for q in range(4)]
    def FK(kt, s): return A(192 + (kt * 4 + s) * 4, 4)
    def xmax(op, x):
        return [valu('v_mov_b32', t2, x), s_nop(1), perm16(x, t2), valu(op, x, x, t2), valu('v_mov_b32', t2, x), s_nop(1), permswap(x, t2), valu(op, x, x, t2)]
    o = [label('L_fb'), s_nop(15), raw('s_waitcnt vmcnt(0) lgkmcnt(0)')]
    o += [raw(f"v_mbcnt_lo_u32_b32 {t}, -1, 0", 'valu', [], [t]), raw(f"v_mbcnt_hi_u32_b32 {t}, -1, {t}", 'valu', [t], [t]),
          valu('v_and_b32', t2, 15, t), valu('v_lshrrev_b32', t, 4, t), valu('v_lshlrev_b32', t2, 8, t2), valu('v_lshl_add_u32', vk, t, 4, t2),
          valu('v_subrev_u32', vv[0], sW4K, vVd[0]), valu('v_subrev_u32', vv[1], sW4K, vVd[1])]
    for q in range(4): o += [valu('v_mov_b32', m[q], f2u(-3.0e38)), valu('v_mov_b32', l[q], 0)]
    for i in range(128): o.append(valu('v_mov_b32', V(128 + i), 0))
    o += [s_mov(sF, sFH), s_mov(sFC, 32), label('L_fb_loop'), salu('s_add_u32', sF2, sF, 4096)]
    for kt in range(2):
        o += [buf_load('buffer_load_dwordx4', FK(kt, s), vk, srdK, [sF, sF2][kt], 64 * s) for s in range(4)]
        o += [salu('s_add_u32', M0, sPM0, 4096 * kt), s_nop(0)] + [buf_dma(vv[n % 2], srdV, [sF, sF2][kt], 1024 * n, 'privF') for n in range(4)]
    o += [wait(vm=0)]
    for dt in range(8):
        o += [valu('v_and_b32', ad, 0x1fff, vVr[dt]), valu('v_add_u32', ad, sPM0, ad), s_nop(0)]
        o += [ds_read('ds_read_b64_tr_b16', Vf(dt).sub(2 * h, 2), ad, h * 4096, 'privF') for h in range(2)]
    o += [wait(lg=0)]
    for q in range(4):
        for kt in range(2):
            d = s8.sub(4 * kt, 4)
            o += [mfma(d, FK(kt, s), Qreg(q, s), d if s else 0, SH) for s in range(4)]
        o += [s_nop(9), valu('v_max3_f32', t, s8[0], s8[1], s8[2]), valu('v_max3_f32', t, t, s8[3], s8[4]), valu('v_max3_f32', t, t, s8[5], s8[6]),
              valu('v_max3_f32', t, t, s8[7], m[q])] + xmax('v_max_f32', t)
        o += [valu('v_sub_f32', f, m[q], t), valu('v_exp_f32', f, f), valu('v_mov_b32', m[q], t)]
        for i in range(8): o += [valu('v_sub_f32', s8[i], s8[i], t), valu('v_exp_f32', s8[i], s8[i])]
        o += [valu('v_mul_f32', l[q], l[q], f)]
        o += [valu('v_cvt_pk_bf16_f32', s8[i], s8[2 * i], s8[2 * i + 1]) for i in range(4)]
        for i in range(4):
            o += [valu('v_lshlrev_b32', t, 16, s8[i]), valu('v_and_b32', t2, 0xffff0000, s8[i]), valu('v_add_f32', l[q], l[q], t), valu('v_add_f32', l[q], l[q], t2)]
        o += [valu('v_mul_f32', V(128 + 32 * q + i), V(128 + 32 * q + i), f) for i in range(32)]
        o += [s_nop(1)] + [mfma(Oacc(dt, q), Vf(dt), s8.sub(0, 4), Oacc(dt, q), SH) for dt in range(8)] + [s_nop(7)]
    o += [salu('s_add_u32', sF, sF, 8192), salu('s_sub_u32', sFC, sFC, 1), s_cmp('s_cmp_lg_u32', sFC, 0), s_branch('s_cbranch_scc1', 'L_fb_loop')]
    for q in range(4): o += xmax('v_add_f32', l[q])
    o += [s_nop(9), raw(f"s_setpc_b64 {sRET}", 'branch', [sRET])]
    return o

def k1_setup():
    u = [V(64 + i) for i in range(12)]
    l, g, q, t0, t1, t2, t3, r, c = u[:9]
    o = [s_cmp('s_cmp_ge_u32', S(2), 256), s_branch('s_cbranch_scc1', 'L_k1_end')]
    o += [s_load('s_load_dwordx8', S(4, 8), S(0, 2), 0), s_load('s_load_dwordx2', pWO, S(0, 2), 32),
          s_load('s_load_dwordx8', S(32, 8), S(0, 2), 40), s_load('s_load_dwordx2', S(40, 2), S(0, 2), 72),
          s_load('s_load_dwordx2', pWS, S(0, 2), 96)]
    o += [salu('s_bfe_u32', sP, S(2), 0x10002), salu('s_and_b32', sT0, S(2), 1), salu('s_lshl_b32', sT0, sT0, 2), salu('s_bfe_u32', sT1, S(2), 0x20003),
          salu('s_add_u32', sB, sT0, sT1), salu('s_lshl_b32', sT1, sT1, 1),
          salu('s_lshr_b32', sT2, S(2), 5), salu('s_add_u32', sR0, sT1, sT2), s_cmp('s_cmp_ge_u32', sR0, 9),
          csel(sT1, 9, 0), salu('s_sub_u32', sR0, sR0, sT1),
          salu('s_and_b32', sT0, S(2), 2), salu('s_lshl_b32', sT0, sT0, 2), salu('s_add_u32', sH, sT0, sT2), salu('s_lshl_b32', sH, sH, 1)]
    if not OPT['rot']: o.append(s_mov(sR0, 0))
    o += [salu('s_lshl_b32', sXC, sR0, 7), salu('s_lshl_b32', sWC[1], sR0, 19), salu('s_add_u32', sWC[0], sWC[1], 262144)]
    o += [valu('v_lshrrev_b32', t0, 6, vT), valu('v_and_b32', l, 63, vT), readfirstlane(sW, t0),
          valu('v_lshrrev_b32', g, 4, l), valu('v_and_b32', q, 15, l), valu('v_lshrrev_b32', t1, 3, l), salu('s_lshl_b32', sW4K, sW, 12)]
    o += [smul(sT0, sW, 64 * 1152), valu('v_mul_u32_u24', t0, 1152, t1), valu('v_and_b32', t2, 7, l), valu('v_xor_b32', t2, t2, g),
          valu('v_add_u32', t0, sT0, t0), valu('v_lshl_add_u32', vXg[0], t2, 4, t0), valu('v_xor_b32', t2, 4, t2), valu('v_lshl_add_u32', t3, t2, 4, t0)]
    for n in range(1, 8): o.append(valu('v_add_u32', vXg[n], n * 9216 - 1024 * (n % 4), t3 if n % 2 else vXg[0]))
    o += [valu('v_lshrrev_b32', t1, 5, l), valu('v_and_b32', t2, 31, l), valu('v_xor_b32', t2, t2, t1), salu('s_and_b32', sT0, sW, 1),
          salu('s_lshl_b32', sT0, sT0, 3), valu('v_xor_b32', t2, sT0, t2), salu('s_lshl_b32', sT1, sW, 16), valu('v_lshlrev_b32', t1, 13, t1),
          valu('v_add_u32', t0, sT1, t1), valu('v_lshl_add_u32', vWd[0][0], t2, 4, t0), valu('v_xor_b32', t2, 4, t2), valu('v_lshl_add_u32', t3, t2, 4, t0)]
    for n in range(1, 4): o.append(valu('v_add_u32', vWd[0][n], n * (16384 - 1024), t3 if n % 2 else vWd[0][0]))
    for n in range(4): o.append(valu('v_mov_b32', vWd[1][n], vWd[0][n]))
    o += [salu('s_add_u32', sXM[0], sW4K, XBASE[0][0]), salu('s_add_u32', sXM[1], sW4K, XBASE[0][1]), salu('s_add_u32', sWM, sW4K, 131072)]
    o += [wait(lg=0), s_cmp('s_cmp_eq_u32', sP, 0)]
    for d, s1 in ((pX, S(32, 2)), (pWQ, S(38, 2)), (pK, S(34, 2)), (pV, S(36, 2)), (pWO, S(40, 2))):
        o.append(I('s_cselect_b64', f"s_cselect_b64 {d}, {d}, {s1}", 'salu', [d, s1, SCC], [d]))
    o += [smul(sT0, sB, 276480)] + set_srd(srdX[0], pX, sT0, 276480) + set_srd(srdX[1], pX, sT0, 276480)
    o += [salu('s_lshl_b32', sT0, sH, 8), salu('s_sub_u32', sT1, 576 * 8192, sT0)] + set_srd(srdW[0], pWQ, sT0, sT1) + set_srd(srdW[1], pWQ, sT0, sT1)
    def nop1(x): x = flat(x); x.insert(1, s_nop(0)); return x
    def xload(c):
        return nop1(dma_X(0, Xn(c, 0))) + nop1(dma_X(1, Xn(c, 1))) + advance(sXC, 128) + \
               [salu('s_xor_b32', sXM[0], sXM[0], 0xC000), salu('s_xor_b32', sXM[1], sXM[1], 0x18000)]
    o += xload(0) + nop1(dma_W(1, 'E1', salu('s_add_u32', M0, sWM, 16384))) + advance(sWC[1], 524288)
    o += nop1(dma_W(0, 'E0', s_mov(M0, sWM))) + advance(sWC[0], 524288, 262144) + xload(1)
    o += nop1(dma_W(1, 'V3', salu('s_add_u32', M0, sW4K, 114688))) + advance(sWC[1], 524288)
    o += [salu('s_lshl_b32', sT0, sB, 5), salu('s_add_u32', sT0, sT0, sH), salu('s_lshl_b32', sT0, sT0, 18)]
    o += set_srd(srdK, pK, sT0, 524288) + set_srd(srdV, pV, sT0, 524288)
    o += [smul(sT0, sP, O_BYTES)] + set_srd(srdO, pWS, sT0, O_BYTES)
    o += set_srd(srdP, pWO, 0, PACK_BYTES)
    o += [smul(sT0, sP, PACK_BYTES), salu('s_add_u32', sT0, sT0, PACK_OFF)] + set_srd(srdQ, pWS, sT0, PACK_BYTES)
    if OPT['stamp']:
        o += set_srd(S(72, 4), pWS, 200 * 1024 * 1024, 1024 * 1024)
        o += [salu('s_lshl_b32', S(76), S(2), 2), salu('s_add_u32', S(76), S(76), sW), salu('s_lshl_b32', S(76), S(76), 8)]
    o += [s_mov(sKOFF, 32768), s_mov(sVOFF, 49152), s_mov(sITEM, 0), s_mov(sFH, 0), s_mov(sCNT, 0), s_mov(sTG, 32768), s_mov(sEND, 19 * 16384),
          salu('s_add_u32', sKM, sW4K, 32768), salu('s_lshl_b32', sOA[0], sH, 13), salu('s_add_u32', sOA[1], sOA[0], 4096)]
    c_scale = math.log2(math.e) / math.sqrt(128.0)
    o += [s_mov(sHI, f2u(2.0 ** 40)), s_mov(sLO, f2u(2.0 ** -40)), s_mov(sSCALE[0], f2u(c_scale)), s_mov(sSCALE[1], f2u(c_scale))]
    o += [s_cmp('s_cmp_eq_u32', sW, 3), csel(sT0, f2u(-1.0e30), 0), csel(sPAD, f2u(1.0), 0)] + [valu('v_mov_b32', vCI[i], sT0) for i in range(4)]
    o += [valu('v_lshlrev_b32', t0, 8, g), valu('v_add_u32', t0, sW4K, t0)]
    for n in range(4): o += [valu('v_add_u32', t3, 4 * n, g), valu('v_xor_b32', t3, t3, q), valu('v_lshl_add_u32', vKd[n], t3, 4, t0)]
    o += [valu('v_lshlrev_b32', t3, 1, g), valu('v_xor_b32', t3, t3, q), valu('v_lshl_add_u32', vVd[0], t3, 4, t0), valu('v_xor_b32', vVd[1], 128, vVd[0])]
    o += [valu('v_lshrrev_b32', t2, 1, q), valu('v_xor_b32', t2, t2, g), valu('v_lshlrev_b32', t1, 7, q), valu('v_add_u32', t1, sW4K, t1),
          valu('v_lshl_add_u32', t1, t2, 4, t1), valu('v_xor_b32', t3, 64, t1)]
    for part in range(2): o += [valu('v_add_u32', vXr[part][0], XBASE[0][part], t1), valu('v_add_u32', vXr[part][1], XBASE[0][part], t3)]
    o += [valu('v_xor_b32', t2, g, q), valu('v_lshlrev_b32', t1, 8, q), valu('v_lshl_add_u32', vKr[0], t2, 4, t1)]
    for s in range(1, 4): o.append(valu('v_xor_b32', vKr[s], 64 * s, vKr[0]))
    o += [valu('v_lshrrev_b32', r, 2, q), valu('v_and_b32', c, 3, l), valu('v_lshl_add_u32', t0, g, 2, r), valu('v_and_b32', t2, 7, t0),
          valu('v_lshlrev_b32', t1, 8, t0), valu('v_lshl_add_u32', t1, t2, 5, t1), valu('v_lshl_add_u32', t1, c, 3, t1), valu('v_add_u32', vVr[0], 65536, t1)]
    for dt in range(1, 8): o.append(valu('v_xor_b32', vVr[dt], 32 * dt, vVr[0]))
    o += [valu('v_lshl_add_u32', t0, g, 3, r), valu('v_lshlrev_b32', t0, 9, t0), valu('v_and_b32', t1, 1, c), valu('v_lshl_add_u32', t0, t1, 3, t0),
          valu('v_and_b32', t1, 2, c), valu('v_and_b32', t2, 1, r), valu('v_or_b32', t1, t1, t2), valu('v_and_b32', t2, 2, r), valu('v_lshl_or_b32', t1, t2, 1, t1),
          valu('v_and_b32', t2, 1, g), valu('v_lshl_or_b32', t1, t2, 3, t1), valu('v_lshl_add_u32', t0, t1, 4, t0), valu('v_add_u32', vWr[0], 131072, t0)]
    for i in range(1, 8): o.append(valu('v_xor_b32', vWr[i], (4 * (i // 2) + i % 2) * 16, vWr[0]))
    o += [valu('v_lshrrev_b32', t0, 5, l), valu('v_bfe_u32', t1, l, 1, 1), v_cmp('v_cmp_eq_u32', t0, t1), valu('v_mov_b32', t2, 0x3f803f80), valu('v_and_b32', t3, 1, l),
          valu('v_cndmask_b32', t2, 0, t2, VCC), valu('v_mul_u32_u24', t3, 0xaaaa, t3), valu('v_add_u32', vIDX, 0x4444, t3)]
    o += [valu('v_accvgpr_write_b32', aONE[i], t2) for i in range(4)]
    o += [salu('s_lshl_b32', sPM0, sW, 13), salu('s_add_u32', sPM0, sPM0, 131072), valu('v_lshl_add_u32', t0, t0, 2, r), valu('v_mul_u32_u24', t0, 192, t0),
          valu('v_and_b32', t1, 1, g), valu('v_lshl_add_u32', t1, t1, 2, c), valu('v_mul_u32_u24', t1, 24, t1), valu('v_add3_u32', t0, t0, t1, sPM0),
          valu('v_lshlrev_b32', t1, 4, l), valu('v_accvgpr_write_b32', aPr, t0), valu('v_accvgpr_write_b32', aPs, t1)]
    for k in range(3):
        o += [valu('v_add_u32', t0, 64 * k, l), valu('v_mul_u32_u24', t1, 171, t0), valu('v_lshrrev_b32', t1, 11, t1),
              valu('v_mul_u32_u24', t2, 12, t1), valu('v_sub_u32', t2, t0, t2), valu('v_and_b32', t3, 8, t1), valu('v_add_u32', t1, t1, t3),
              valu('v_mul_u32_u24', t1, 1152, t1), valu('v_lshl_add_u32', t1, t2, 4, t1), valu('v_subrev_u32', t1, 1024 * k, t1),
              valu('v_accvgpr_write_b32', aPd[k], t1)]
    o += [salu('s_lshl_b32', sT0, sW, 6), valu('v_add_u32', t0, sT0, q), smul(sT1, sB, 240)]
    for qt in range(4):
        o += [valu('v_add_u32', t1, 16 * qt, t0),
              valu('v_add_u32', t2, sT1, t1), valu('v_lshrrev_b32', t3, 5, t2), valu('v_lshlrev_b32', t3, 18, t3),
              valu('v_and_b32', t2, 31, t2), valu('v_lshl_add_u32', t3, t2, 4, t3), valu('v_lshl_add_u32', t3, g, 9, t3),
              v_cmp('v_cmp_gt_u32', 240, t1), valu('v_mov_b32', t2, HUGE), s_nop(0),
              valu('v_cndmask_b32', vO[qt], t2, t3, VCC)]
    o += [salu('s_and_b32', sT0, S(2), 3), salu('s_lshl_b32', sT0, sT0, 5), salu('s_lshr_b32', sT1, S(2), 3), salu('s_add_u32', sT0, sT0, sT1)]
    for it in range(2):
        for s in range(2):
            ps, pd = ([sPS, sPS1][it][s], [sPD, sPD1][it][s])
            o += [salu('s_lshl_b32', sT1, sW, 1), salu('s_add_u32', sT1, sT1, 8 * it + s), s_cmp('s_cmp_ge_u32', sT1, 6),
                  csel(sT2, 1, 0), smul(pd, sT2, 6), salu('s_sub_u32', sT1, sT1, pd),
                  smul(ps, sT0, 32 * 1152), smul(pd, sT2, 8 * 1152), salu('s_add_u32', ps, ps, pd), smul(pd, sT1, 192), salu('s_add_u32', ps, ps, pd),
                  salu('s_lshl1_add_u32', sT2, sT0, sT2),
                  smul(pd, sT1, 786432), smul(sT2, sT2, 3072), salu('s_add_u32', pd, pd, sT2), s_cmp('s_cmp_ge_u32', sT1, 6),
                  csel(ps, HUGE, ps), csel(pd, HUGE, pd)]
    for i in range(128): o += [valu('v_mov_b32', V(128 + i), 0), valu('v_accvgpr_write_b32', A(i), 0)]
    return o

def kernel1():
    head = k1_setup() + stamp(0)
    head += [wait(vm=[Xn(0, 0), Xn(0, 1)])] + [rd_X(0, 0, qt) for qt in range(4)]
    head += [valu('v_xor_b32', vXr[0][0], 0xC000, vXr[0][0]), valu('v_xor_b32', vXr[1][0], 0x18000, vXr[1][0])]
    head += [wait(vm=['E1']), s_barrier()] + flat([rd_W(p, 0, 0, p) for p in range(4)]) + [wait(lg=[Wf(0), Wf(1)])]
    qs, qtr = q_loop()
    tail = [label('L_qtail')] + stamp(1) + q_tail() + stamp(2)
    bodies = []
    for hd in range(2):
        for t in range(15):
            j = 32 * hd + 2 * t + 1
            bodies.append([label('L_att')] + period(j) + period(j + 1) + [s_cmp('s_cmp_lg_u32', sKOFF, sEND), s_branch('s_cbranch_scc1', 'L_att')])
            if len(bodies) > 1: del REP[-2:]
    rolled('att', bodies)
    after = [s_cmp('s_cmp_lg_u32', sITEM, 0), s_branch('s_cbranch_scc1', 'L_last')]
    mid = boundary()
    mid = mid[:1] + stamp(3) + mid[1:] + stamp(18) + [s_branch('s_branch', 'L_att')]
    last = final()
    last = last[:1] + stamp(19) + last[1:] + [label('L_k1_end'), raw('s_endpgm')]
    al = [raw(f".p2align {OPT['al']}", 'label')] if OPT['al'] else []
    static = head + al + qs + tail + al + bodies[0] + after + mid + last
    trace = head + qtr + tail + flat(bodies[:15]) + after + mid + flat(bodies[15:]) + after + last
    tramps = []
    for i in sites:
        tramps += [label(f"L_tramp{i}"), raw(f"s_call_b64 {sRET}, L_fb", 'branch', [], [sRET]), s_branch('s_branch', f"L_ret{i}")]
    return static, trace, tramps + fallback()

def descriptor(name, vgpr, accum, sgpr=96):
    return f""".amdhsa_kernel {name}
  .amdhsa_next_free_vgpr {vgpr}
  .amdhsa_next_free_sgpr {sgpr}
  .amdhsa_accum_offset {accum}
  .amdhsa_group_segment_fixed_size 0
  .amdhsa_kernarg_size 104
  .amdhsa_user_sgpr_count 2
  .amdhsa_user_sgpr_kernarg_segment_ptr 1
  .amdhsa_system_sgpr_workgroup_id_x 1
.end_amdhsa_kernel
"""

def finish(static, trace, rare, name):
    tr = expand(trace)
    resolve_waits(tr)
    errs = check(tr, name)
    if rare:
        resolve_waits(rare)
        errs += check(rare, name + "_rare")
    seen = set()
    for e in errs:
        k = e.split('] ', 1)[1]
        if k not in seen and len(seen) < 40: print("CHECK:", e, file=sys.stderr)
        seen.add(k)
    if errs: print(f"{len(errs)} check errors in {name}", file=sys.stderr)
    return render(static) + "\n" + (render(rare) if rare else "")

def main():
    ref = open(os.path.join(os.path.dirname(os.path.abspath(__file__)), '..', 'cdna_kernels', NAME + '.s.ref')).read().splitlines()
    hdr = [l for l in ref if l.startswith(';') and '@launch' not in l and 'Override launch' not in l and 'grid=ceil' not in l]
    st, tr, rare = kernel1()
    if OPT['rep']:
        for r in REP: print(len(r), sum(max(0, x - 8) for x in r), r, file=sys.stderr)
    out = hdr[:]
    out.append("; OLAY=16")
    if OPT['k1']: out.append("; @launch kernel=attn_kernel grid=(256,1,1) block=(256,1,1) lds=163840")
    import gen4
    if OPT['k2']: out.append(f"; @launch kernel=oproj_kernel grid=(240,1,1) block=(256,1,1) lds={gen4.LDS}")
    out += ['.amdgcn_target "amdgcn-amd-amdhsa--gfx950"', '.text', '.globl attn_kernel', '.p2align 8', '.type attn_kernel,@function', 'attn_kernel:']
    out.append(finish(st, tr, rare, 'k1'))
    if OPT['k2']:
        k2 = gen4.kernel2(OPT)
        out += ['.globl oproj_kernel', '.p2align 8', '.type oproj_kernel,@function', 'oproj_kernel:']
        out.append(finish(k2, k2, None, 'k2'))
    out += ['.section .rodata,"a"', '.p2align 6', descriptor('attn_kernel', 512, 256, 102)]
    if OPT['k2']:
        out += ['.p2align 6', descriptor('oproj_kernel', 512, 256)]
    open(sys.argv[1], 'w').write("\n".join(out))

if __name__ == '__main__':
    main()
```

```python
import sys, os, math, struct
from asmlib import *
import asmlib

NAME = "concat_heads__mha_block_cached__gqa_block_cached__near_ridge"
OPT = dict(stamp=0, k2=1, k1=1, ost=' sc1', pst=' sc1', xf='', wf='', pf=' nt', kvf=' nt', rot=1, rep=0,
           depth=5, rot2=0, of='', wof='', kv0=5, pk0=0, cinit=1, al=6, dc=8, forcefb=0, nodma=0, dg=0, nost=0)
STR = ('ost', 'pst', 'xf', 'wf', 'pf', 'kvf', 'of', 'wof')
for a in sys.argv[2:]:
    k, v = a.split('=')
    OPT[k] = ((' ' + v.replace('+', ' ')) if v != '-' else '') if k in STR else int(v)
asmlib.COST['dma'] = OPT['dc']

def f2u(x): return struct.unpack('<I', struct.pack('<f', x))[0]
O_BYTES = 60 * 262144
PACK_OFF = 32 * 1024 * 1024
PACK_BYTES = 4096 * 1152
HUGE = 0x7f000000
SH = '16x16x32'

pX, pK, pV, pWQ, pWO, pWS = S(4, 2), S(6, 2), S(8, 2), S(10, 2), S(12, 2), S(14, 2)
srdP, srdQ = S(16, 4), S(20, 4)
sPS, sPD = [S(24), S(25)], [S(26), S(27)]
sPS1, sPD1 = [S(28), S(29)], [S(30), S(31)]
srdK, srdV, srdO = S(32, 4), S(36, 4), S(40, 4)
srdX, srdW = [S(44, 4), S(48, 4)], [S(52, 4), S(56, 4)]
sSCALE = S(60, 2)
sRET = S(62, 2)
sW, sB, sH, sP, sW4K, sT0, sT1, sT2 = S(64), S(65), S(66), S(67), S(68), S(3), S(69), S(80)
sSTAMP = S(70, 2)
sKOFF, sVOFF, sKM, sTG, sEND, sITEM = S(81), S(82), S(83), S(84), S(85), S(86)
sXC, sWC, sXM, sWM, sCNT = S(87), [S(88), S(89)], [S(90), S(91)], S(92), S(93)
sHI, sLO, sPM0, sPAD, sFH = S(94), S(95), S(96), S(97), S(98)
sOA = [S(99), S(100)]
sMASK = S(4, 2)
sF, sF2, sFC = S(6), S(7), S(8)
sR0 = S(101)
vKr = [V(1 + i) for i in range(4)]
vVr = [V(5 + i) for i in range(8)]
vKd = [V(13 + i) for i in range(4)]
vVd = [V(17), V(18)]
vIDX = V(19)
vCI = V(20, 4)
vO = [V(24 + i) for i in range(4)]
vRC = V(28, 4)
vT = V(0)
def Sreg(qt, kt): return V(32 + qt * 8 + (4 * kt if qt % 2 else 4 - 4 * kt), 4)
def Preg(qt): return Sreg(qt, 0)
def Qreg(qt, s): return V(64 + qt * 16 + s * 4, 4)
def Oacc(dt, qt): return V(128 + qt * 32 + dt * 4, 4)
def QACC(h, s, tt, qt): return (V(128 + qt * 32 + s * 8 + tt * 4, 4) if h == 0 else A(qt * 32 + s * 8 + tt * 4, 4))
vXg = [V(32 + i) for i in range(8)]
vWd = [[V(40 + i) for i in range(4)], [V(44 + i) for i in range(4)]]
vXr = [[V(48), V(49)], [V(50), V(51)]]
vWr = [V(52 + i) for i in range(8)]
def Kf(kt, s): return A(128 + (kt * 4 + s) * 4, 4)
def Vf(dt): return A(160 + dt * 4, 4)
def Wf(p): return A(160 + (p % 8) * 4, 4)
def XF(ks, qt): return A(192 + (ks * 4 + qt) * 4, 4)
def PKf(s, nt): return A(192 + (s * 3 + nt) * 4, 4)
def Lacc(i): return A(224 + 4 * i, 4)
aONE = A(232, 4)
aPd, aPr, aPs = [A(236), A(237), A(238)], A(239), A(240)
GRAY = [0, 1, 3, 2]
def Kn(t): return f"K{GRAY[t % 4]}"
def Vn(t): return f"V{GRAY[t % 4]}"
WN = ['E1', 'E0', 'V3', 'V2']
def Xn(c, part): return f"privX{c % 2}{part}"
XBASE = [[32768, 49152], [16384, 81920]]

def stamp(idx, t0=V(28), t1=V(29)):
    if not OPT['stamp']: return []
    return [raw(f"s_memtime {sSTAMP}", 'salu', [], [sSTAMP]), raw("s_memrealtime s[78:79]"), raw("s_waitcnt lgkmcnt(0)", 'salu'),
            valu('v_mov_b32', t0, sSTAMP[0]), valu('v_mov_b32', t1, idx * 4), raw(f"s_nop 0", 'salu'),
            raw(f"buffer_store_dword {t0}, {t1}, s[72:75], s76 offen", 'vstore'),
            raw("s_nop 1"), valu('v_mov_b32', t0, S(78)), raw("s_nop 0"),
            raw(f"buffer_store_dword {t0}, {t1}, s[72:75], s76 offen offset:32", 'vstore'), raw("s_nop 1")]

def istamp(base, reg, shift):
    if OPT['stamp'] < 2: return []
    t0, t1 = V(30), V(31)
    return [raw(f"s_memtime {sSTAMP}", 'salu', [], [sSTAMP]), raw(f"s_lshr_b32 s77, {reg}, {shift}"), raw("s_and_b32 s77, s77, 15"), raw(f"s_add_u32 s77, s77, {base}"),
            raw("s_lshl_b32 s77, s77, 2"), raw("s_waitcnt lgkmcnt(0)", 'salu'),
            valu('v_mov_b32', t0, sSTAMP[0]), valu('v_mov_b32', t1, S(77)), raw(f"s_nop 0", 'salu'),
            raw(f"buffer_store_dword {t0}, {t1}, s[72:75], s76 offen", 'vstore'), raw("s_nop 1")]

def set_srd(srd, base, off_lo, nbytes):
    return [salu('s_add_u32', srd[0], base[0], off_lo), salu('s_addc_u32', srd[1], base[1], 0),
            s_mov(srd[2], nbytes), s_mov(srd[3], 0x20000)]
def smul(d, a, b): return salu('s_mul_i32', d, a, b, scc=False)
def flat(groups): return [x for g in groups for x in g]
def csel(d, a, b): return I('s_cselect_b32', f"s_cselect_b32 {d}, {a}, {b}", 'salu', [SCC, a, b], [d])
def advance(reg, step, first=0):
    return [salu('s_add_u32', reg, reg, step), s_cmp('s_cmp_eq_u32', reg, 9 * step + first), csel(reg, first, reg)]
def at(groups, gaps):
    assert len(groups) == len(gaps), (len(groups), len(gaps))
    return [F(g, p, p, tail=all(x.kind in ('wait', 'barrier') for x in g)) for g, p in zip(groups, gaps)]

def dma_K(name, m0, soff=sKOFF, adv=True):
    d = [[m0]] + [[buf_dma(vKd[n], srdK, soff, 1024 * n, name, OPT['kvf'])] for n in range(4)]
    if OPT['nodma']: d = [[m0]] + [[s_nop(0)] for n in range(4)]
    return tag_m0(d + ([[salu('s_add_u32', sKOFF, sKOFF, 16384)]] if adv else []))
def dma_V(name, m0, soff=sVOFF, adv=True):
    d = [[m0]] + [[buf_dma(vVd[n % 2], srdV, soff, 1024 * n, name, OPT['kvf'])] for n in range(4)]
    if OPT['nodma']: d = [[m0]] + [[s_nop(0)] for n in range(4)]
    return tag_m0(d + ([[salu('s_add_u32', sVOFF, sVOFF, 16384)]] if adv else []))
def dma_X(part, name):
    return tag_m0([[s_mov(M0, sXM[part])]] + [[buf_dma(vXg[4 * part + n], srdX[part], sXC, 1024 * n, name, OPT['xf'])] for n in range(4)])
def dma_W(i, name, m0):
    return tag_m0([[m0]] + [[buf_dma(vWd[i][n], srdW[i], sWC[i], 1024 * n, name, OPT['wf'])] for n in range(4)])
def dma_P():
    t = [vRC[0], vRC[1], vRC[2]]
    out = [[valu('v_accvgpr_read_b32', t[u], aPd[u])] for u in range(3)]
    for s in range(2):
        out.append([salu('s_add_u32', M0, sPM0, s * 3072), s_nop(0)])
        out += [[buf_dma(t[u], srdP, sPS[s], 1024 * u, ('privP', 'E0', 'E1'), OPT['pf'])] for u in range(3)]
    return tag_m0(out)
def pack_out():
    ra, sa = vRC[0], vRC[1]
    rd = [[valu('v_accvgpr_read_b32', ra, aPr), valu('v_accvgpr_read_b32', sa, aPs)]]
    for s in range(2):
        for nt in range(3):
            rd.append([ds_read('ds_read_b64_tr_b16', PKf(s, nt).sub(2 * h, 2), ra, s * 3072 + h * 1536 + 8 * nt, 'privP') for h in range(2)])
    st = [[buf_store('buffer_store_dwordx4', PKf(s, nt), sa, srdQ, sPD[s], nt * 1024, OPT['pst'])] for s in range(2) for nt in range(3)]
    return rd, st

def rd_K(name, half, kt, s): return ds_read('ds_read_b128', Kf(kt, s), vKr[s], half * 8192 + kt * 4096, name)
def rd_V(name, half, dt): return [ds_read('ds_read_b64_tr_b16', Vf(dt).sub(2 * h, 2), vVr[dt], half * 8192 + h * 4096, name) for h in range(2)]
def rd_W(p, h, head, i):
    return [ds_read('ds_read_b64_tr_b16', Wf(p).sub(2 * j, 2), vWr[i], (1 - h % 2) * 16384 + j * 2048 + head * 256, WN[h % 4]) for j in range(2)]
def rd_X(c, ks, qt): return ds_read('ds_read_b128', XF(ks, qt), vXr[qt // 2][ks], (qt % 2) * 2048, Xn(c, qt // 2))

ST = [32, 40, 49, 57]
NP = 66
DG = [[[54, 55, 57, 59, 61, 62], [54, 55, 57, 59, 61, 62]], [[38, 39, 48, 55, 60, 62], [15, 16, 30, 45, 58, 60]]][OPT['dg']]
REP = []
def period_parts(j, B=0, first=False, nxt=True, kg=None):
    t, odd = j // 2, j % 2
    mf = []
    for qt in range(4):
        for kt in range(2):
            for s in range(4):
                c = Sreg(qt, kt) if s else (vCI if (qt == 3 and OPT['cinit']) else 0)
                mf.append(mfma(Sreg(qt, kt), Kf(kt, s), Qreg(qt, s), c, SH))
    for qt in range(4):
        if qt % 2: mf.append(smfmac(Lacc(qt // 2), aONE, V(Preg(qt - 1).i, 8), vIDX))
        for dt in range(8): mf.append(mfma(Oacc(dt, qt), Vf(dt), Preg(qt), 0 if first else Oacc(dt, qt), SH))
    fl = []
    prev = None
    for qt in range(4):
        dl = B + ST[qt] - 3
        pc = None
        for kt in range(2):
            lo = B + 8 * qt + 4 * kt + 3 + 4
            ex = []
            for r in range(4):
                prev = F(valu('v_exp_f32', Sreg(qt, kt)[r], Sreg(qt, kt)[r]), lo, dl - 1, after=[prev]); ex.append(prev)
            fl += ex
            for h in range(2):
                pc = F(valu('v_cvt_pk_bf16_f32', Preg(qt)[2 * kt + h], Sreg(qt, kt)[2 * h], Sreg(qt, kt)[2 * h + 1]), lo, dl,
                       after=[(ex[2 * h + 1], 1), pc]); fl.append(pc)
    vr = at([rd_V(Vn(t), odd, dt) for dt in range(8)], [B + g for g in range(8)]); fl += vr
    fl += at([[wait(lg=[Vf(dt) for dt in range(8)])]], [B + 31])
    if nxt:
        kg = kg or [37, 37, 46, 46, 47, 47, 53, 53]
        fl += at([[rd_K(Kn(t + odd), 1 - odd, i // 4, i % 4)] for i in range(8)], [B + g for g in kg])
        fl += at([[wait(lg=0)]], [B + 65])
        if odd:
            fl += at([[wait(vm=[Kn(t + 1), Vn(t + 1)]), s_barrier()]], [B + 36])
            fl += at(dma_K(Kn(t + 4), s_mov(M0, sKM)), [B + g for g in DG[0]])
            fl += [F(valu('v_xor_b32', vVr[dt], sTG, vVr[dt]), B + 31, B + 65) for dt in range(8)]
        else:
            fl += at(dma_V(Vn(t + 3), salu('s_add_u32', M0, sKM, 65536)), [B + g for g in DG[1]])
            x = F([salu('s_xor_b32', sKM, sKM, sTG), salu('s_xor_b32', sTG, sTG, 49152)], B + DG[1][0] + 1, B + 60)
            fl += [x] + [F(valu('v_xor_b32', vKr[s], sTG, vKr[s]), B + 54, B + 65, after=[x]) for s in range(4)]
    return mf, fl
def period(j, extra=(), **kw):
    mf, fl = period_parts(j, **kw)
    return schedule(mf, fl + list(extra), 8, REP)

def q_half(c, hf, last):
    h = 2 * c + hf
    mf = [mfma(QACC(i // 8, (i % 8) // 2, i % 2, qt), Wf(i), XF(hf, qt), QACC(i // 8, (i % 8) // 2, i % 2, qt), SH)
          for i in range(16) for qt in range(4)]
    fl = []
    for i in range(16):
        p = i + 4
        fl += at([rd_W(p, h, p // 8, p % 8) if p < 16 else rd_W(p, h + 1, 0, p - 16)], [4 * i])
    for i in range(2, 18, 2):
        w = [Wf(i), Wf(i + 1)] + ([XF(1 - hf, qt) for qt in range(4)] if i == 16 else [])
        fl += at([[wait(lg=w)]], [4 * i - 1])
    fl += at([[wait(vm=[WN[(h + 1) % 4]]), s_barrier()]], [46])
    if hf == 0:
        fl += at([[rd_X(c, 1, 0), rd_X(c, 1, 2)], [rd_X(c, 1, 1), rd_X(c, 1, 3)],
                  [valu('v_xor_b32', vXr[0][1], 0xC000, vXr[0][1]), valu('v_xor_b32', vXr[1][1], 0x18000, vXr[1][1])]], [1, 2, 5])
        fl += at(dma_X(0, (Xn(c, 0), Kn(1)) if last else Xn(c, 0)), [17, 18, 22, 26, 30])
        fl += at([[salu('s_xor_b32', sXM[0], sXM[0], 0xC000)]], [33])
        fl += at(dma_W(0, WN[(h + 3) % 4], salu('s_xor_b32', M0, sWM, 0x38000)) + [advance(sWC[0], 524288, 262144)], [49, 50, 53, 57, 61, 62])
    else:
        fl += at(dma_X(1, (Xn(c, 1), Vn(1)) if last else Xn(c, 1)), [1, 2, 6, 10, 14])
        fl += at([[salu('s_xor_b32', sXM[1], sXM[1], 0x18000)], advance(sXC, 128)], [17, 18])
        fl += at([[wait(vm=[Xn(c + 1, 0), Xn(c + 1, 1)])], [rd_X(c + 1, 0, 0), rd_X(c + 1, 0, 2)], [rd_X(c + 1, 0, 1), rd_X(c + 1, 0, 3)],
                  [valu('v_xor_b32', vXr[0][0], 0xC000, vXr[0][0]), valu('v_xor_b32', vXr[1][0], 0x18000, vXr[1][0])]], [37, 38, 41, 42])
        fl += at([[valu('v_xor_b32', vWr[i], 0x38000, vWr[i])] for i in range(8)], [19, 21, 25, 29, 33, 37, 43, 45])
        fl += at(dma_W(1, WN[(h + 3) % 4], salu('s_add_u32', M0, sWM, 16384)) + [advance(sWC[1], 524288)], [49, 50, 53, 57, 61, 62])
        fl += at([[salu('s_xor_b32', sWM, sWM, 0x38000)]], [51])
    return schedule(mf, fl, 8, REP)

def q_loop():
    bodies = []
    for c in range(8):
        b = [label('L_q')] + istamp(32, sCNT, 0) + q_half(c, 0, c == 7) + q_half(c, 1, c == 7)
        b += [salu('s_add_u32', sCNT, sCNT, 1), s_cmp('s_cmp_lt_u32', sCNT, OPT['kv0'] + 1), s_branch('s_cbranch_scc1', 'L_q')]
        bodies.append(b)
    rolled('q', bodies)
    t8 = [s_cmp('s_cmp_eq_u32', sCNT, 8), s_branch('s_cbranch_scc1', 'L_qtail')]
    ta = [s_cmp('s_cmp_lg_u32', sCNT, OPT['kv0'] + 1), s_branch('s_cbranch_scc1', 'L_q1')]
    a = flat(dma_K(Kn(0), s_mov(M0, sW4K), 0, False)); a.insert(1, s_nop(0))
    b = flat(dma_V(Vn(0), salu('s_add_u32', M0, sW4K, 65536), 0, False)); b.insert(1, s_nop(0))
    kv0 = a + b
    tb = [label('L_q1'), s_cmp('s_cmp_lg_u32', sCNT, 7), s_branch('s_cbranch_scc1', 'L_q')]
    sw = []
    for d, s in ((srdX[0], srdK), (srdX[1], srdV), (srdW[1], srdV)):
        sw += [s_mov(d[k], s[k]) for k in range(3)]
    sw += [s_mov(sXC, 16384), s_mov(sWC[1], 32768)]
    for n in range(4):
        sw += [valu('v_mov_b32', vXg[n], vKd[n]), valu('v_mov_b32', vXg[4 + n], vVd[n % 2]), valu('v_mov_b32', vWd[1][n], vVd[n % 2])]
    sw += [s_branch('s_branch', 'L_q')]
    static = bodies[0] + t8 + ta + kv0 + tb + sw
    trace = []
    for c in range(8):
        trace += bodies[c]
        if c + 1 >= OPT['kv0'] + 1:
            trace += t8
            if c < 7:
                trace += ta + (kv0 if c == OPT['kv0'] else []) + tb + (sw if c == 6 else [])
    return static, trace

def conv(h, qt, s, tmp=None, pk=True):
    q = Qreg(qt, s)
    g = []
    src = V(QACC(0, s, 0, qt).i, 8) if h == 0 else tmp
    if h == 1: g += [[valu('v_accvgpr_read_b32', tmp[i], A(QACC(1, s, 0, qt).i + i))] for i in range(8)]
    if pk: g += [[pk_mul_s(src.sub(2 * i, 2), sSCALE)] for i in range(4)]
    else: g += [[valu('v_mul_f32', src[i], sSCALE[0], src[i])] for i in range(8)]
    g += [[valu('v_cvt_pk_bf16_f32', q[i], src[2 * i], src[2 * i + 1])] for i in range(4)]
    return g, [[perm16(q[0], q[2])], [perm16(q[1], q[3])]]
def l_init():
    return [[valu('v_accvgpr_write_b32', Lacc(i // 4)[i % 4], sPAD if i == 6 else 0)] for i in range(8)]

def q_tail():
    seq = [(hd, ks, i) for hd in range(2) for ks in range(2) for i in range(8)]
    mf = [mfma(QACC(hd, i // 2, i % 2, qt), Wf(p), XF(ks, qt), QACC(hd, i // 2, i % 2, qt), SH)
          for p, (hd, ks, i) in enumerate(seq) for qt in range(4)]
    B = 128
    m0, fl = period_parts(0, B, first=True)
    mf += m0
    for p in range(4, 32): fl += at([rd_W(p, 16 + seq[p][1], seq[p][0], seq[p][2])], [4 * (p - 4)])
    for p in range(2, 32, 2): fl += at([[wait(lg=[Wf(p), Wf(p + 1)] + ([XF(1, qt) for qt in range(4)] if p == 8 else []))]], [4 * p - 1])
    fl += at([[rd_X(8, 1, 0), rd_X(8, 1, 2)], [rd_X(8, 1, 1), rd_X(8, 1, 3)], [wait(vm=['E0']), s_barrier()]], [1, 2, 14])
    fl += at(dma_K((Kn(2), Xn(8, 1)), salu('s_add_u32', M0, sW4K, 49152)), [17, 18, 21, 22, 25, 26])
    fl += at(dma_K((Kn(3), Xn(8, 0)), s_mov(M0, sKM)), [29, 30, 33, 34, 37, 38])
    fl += chain(l_init(), 5, 40, step=1)
    fl += at([[wait(vm=[Kn(0), Vn(0)], lg=0), s_barrier()]], [119])
    fl += at([[rd_K(Kn(0), 0, i // 4, i % 4)] for i in range(8)], [120, 120, 121, 121, 122, 122, 123, 123])
    fl += at([[wait(lg=[Kf(0, s) for s in range(4)])], [wait(lg=[Kf(1, s) for s in range(4)])]], [127, B + 3])
    prev, sw = None, []
    order = [(qt, s) for s in range(3) for qt in range(4)] + [(qt, 3) for qt in range(4)]
    order.sort(key=lambda x: (x[1] if x[1] < 2 else 2, x[0]))
    for qt, s in order:
        g, p16 = conv(0, qt, s, pk=OPT['pk0'])
        lo = 4 * (9 + 2 * s) + qt + 5
        hi = B + 8 * qt - 2
        ch = chain(g + [[s_nop(0)]] + p16[:1] + p16[1:], lo, hi, after=[prev], per=0); prev = ch[-1]; fl += ch
    fl += chain(dma_P(), B + DG[1][0] - 12, B + DG[1][0] - 1, per=0) if DG[1][0] > 40 else chain(dma_P(), B + 61, B + 65, per=0)
    return schedule(mf, fl, 8, REP)

sites = []
def check_parts():
    t = [V(32 + i) for i in range(8)]
    g = [[valu('v_accvgpr_read_b32', t[i], Lacc(i // 4)[i % 4])] for i in range(8)]
    g += [[valu('v_add_f32', vRC[q], t[2 * q], t[2 * q + 1])] for q in range(4)]
    g += [[valu('v_add_f32', t[0], vRC[0], vRC[1])], [valu('v_add_f32', t[1], vRC[2], vRC[3])], [valu('v_min3_f32', t[2], vRC[0], vRC[1], vRC[2])],
          [valu('v_add_f32', t[0], t[0], t[1])], [valu('v_min_f32', t[2], t[2], vRC[3])], [v_cmp('v_cmp_ngt_f32', sHI, t[0])],
          [I('v_cmp_gt_f32', f"v_cmp_gt_f32_e64 {sMASK}, {sLO}, {t[2]}", 'valu', [sLO, t[2]], [sMASK])]]
    k = len(sites); sites.append(k)
    br = [s_nop(0), I('s_or_b64', f"s_or_b64 {sMASK}, {sMASK}, vcc", 'salu', [sMASK, VCC], [sMASK, SCC]),
          s_branch('s_cbranch_scc0' if OPT['forcefb'] else 's_cbranch_scc1', f"L_tramp{k}"), label(f"L_ret{k}")]
    return g, br
def last_period(j, nxt):
    rd, st = pack_out()
    ck, br = check_parts()
    r = chain(rd, 16, 36, step=2, per=0)
    w = F(wait(lg=[PKf(s, nt) for s in range(2) for nt in range(3)]), 38, 44, after=[r[-1]])
    e = r + [w] + chain(st, 39, 56, step=2.5, after=[w], per=0)
    c1 = chain(ck[:4], 50, 62, per=0)
    e += c1 + chain([[s_nop(1)]] + ck[4:], 64, 65, per=0, after=c1[-1:])
    return period(j, extra=e, nxt=nxt) + br
def epilogue(qt, mid=False):
    g = []
    for m in range(4):
        o = V(Oacc(2 * m, qt).i, 8)
        g += [[pk_mul_v(o.sub(2 * i, 2), vRC.sub(qt & 2, 2), qt & 1)] for i in range(4)]
        g += [[valu('v_cvt_pk_bf16_f32', o[i], o[2 * i], o[2 * i + 1])] for i in range(4)]
        if not (OPT['nost'] and mid): g += [[buf_store('buffer_store_dwordx4', o.sub(0, 4), vO[qt], srdO, sOA[m // 2], (m % 2) * 2048, OPT['ost'])]]
    return g
def rcp(): return [valu('v_rcp_f32', vRC[q], vRC[q]) for q in range(4)]

def boundary():
    o = [label('L_mid')] + last_period(31, True) + stamp(4, V(32), V(33)) + stamp(16, V(32), V(33)) + stamp(17, V(32), V(33))
    o += rcp() + flat(l_init())
    o += [s_mov(sPS[0], sPS1[0]), s_mov(sPS[1], sPS1[1]), s_mov(sPD[0], sPD1[0]), s_mov(sPD[1], sPD1[1]), s_mov(sITEM, 1),
          s_mov(sFH, 262144), salu('s_add_u32', sEND, sEND, 262144)]
    tmp = V(56, 8)
    def cv(qt):
        out, pend = [], []
        for s in range(4):
            g, p = conv(1, qt, s, tmp)
            out += g[:2] + pend + g[2:]; pend = p
        return out + [[s_nop(1)]] + pend
    o += flat(epilogue(0, True)) + flat(cv(0)) + [s_nop(1)]
    e, prev = [], None
    for qt in range(1, 4):
        ch = chain(cv(qt), 8 * qt - 8, 8 * qt - 2, after=[prev], per=0); prev = ch[-1]; e += ch
    for qt in range(1, 4):
        ch = chain(epilogue(qt, True), 20, ST[qt] - 3, after=[prev], per=0); prev = ch[-1]; e += ch
    e += chain([[salu('s_add_u32', sOA[0], sOA[0], 8192), salu('s_add_u32', sOA[1], sOA[1], 8192)]] + dma_P(), 40 if DG[1][0] > 40 else 61, 53 if DG[1][0] > 40 else 65, after=[prev], per=0)
    return o + period(32, extra=e, first=True)
def final():
    o = [label('L_last')] + last_period(63, False) + rcp()
    for qt in range(4): o += flat(epilogue(qt))
    return o + stamp(20, V(32), V(33))

def fallback():
    vk, vv, ad, f, t, t2 = V(32), [V(33), V(34)], V(35), V(36), V(37), V(38)
    m, s8 = [V(40 + q) for q in range(4)], V(48, 8)
    l = [vRC[q] for q in range(4)]
    def FK(kt, s): return A(192 + (kt * 4 + s) * 4, 4)
    def xmax(op, x):
        return [valu('v_mov_b32', t2, x), s_nop(1), perm16(x, t2), valu(op, x, x, t2), valu('v_mov_b32', t2, x), s_nop(1), permswap(x, t2), valu(op, x, x, t2)]
    o = [label('L_fb'), s_nop(15), raw('s_waitcnt vmcnt(0) lgkmcnt(0)')]
    o += [raw(f"v_mbcnt_lo_u32_b32 {t}, -1, 0", 'valu', [], [t]), raw(f"v_mbcnt_hi_u32_b32 {t}, -1, {t}", 'valu', [t], [t]),
          valu('v_and_b32', t2, 15, t), valu('v_lshrrev_b32', t, 4, t), valu('v_lshlrev_b32', t2, 8, t2), valu('v_lshl_add_u32', vk, t, 4, t2),
          valu('v_subrev_u32', vv[0], sW4K, vVd[0]), valu('v_subrev_u32', vv[1], sW4K, vVd[1])]
    for q in range(4): o += [valu('v_mov_b32', m[q], f2u(-3.0e38)), valu('v_mov_b32', l[q], 0)]
    for i in range(128): o.append(valu('v_mov_b32', V(128 + i), 0))
    o += [s_mov(sF, sFH), s_mov(sFC, 32), label('L_fb_loop'), salu('s_add_u32', sF2, sF, 4096)]
    for kt in range(2):
        o += [buf_load('buffer_load_dwordx4', FK(kt, s), vk, srdK, [sF, sF2][kt], 64 * s) for s in range(4)]
        o += [salu('s_add_u32', M0, sPM0, 4096 * kt), s_nop(0)] + [buf_dma(vv[n % 2], srdV, [sF, sF2][kt], 1024 * n, 'privF') for n in range(4)]
    o += [wait(vm=0)]
    for dt in range(8):
        o += [valu('v_and_b32', ad, 0x1fff, vVr[dt]), valu('v_add_u32', ad, sPM0, ad), s_nop(0)]
        o += [ds_read('ds_read_b64_tr_b16', Vf(dt).sub(2 * h, 2), ad, h * 4096, 'privF') for h in range(2)]
    o += [wait(lg=0)]
    for q in range(4):
        for kt in range(2):
            d = s8.sub(4 * kt, 4)
            o += [mfma(d, FK(kt, s), Qreg(q, s), d if s else 0, SH) for s in range(4)]
        o += [s_nop(9), valu('v_max3_f32', t, s8[0], s8[1], s8[2]), valu('v_max3_f32', t, t, s8[3], s8[4]), valu('v_max3_f32', t, t, s8[5], s8[6]),
              valu('v_max3_f32', t, t, s8[7], m[q])] + xmax('v_max_f32', t)
        o += [valu('v_sub_f32', f, m[q], t), valu('v_exp_f32', f, f), valu('v_mov_b32', m[q], t)]
        for i in range(8): o += [valu('v_sub_f32', s8[i], s8[i], t), valu('v_exp_f32', s8[i], s8[i])]
        o += [valu('v_mul_f32', l[q], l[q], f)]
        o += [valu('v_cvt_pk_bf16_f32', s8[i], s8[2 * i], s8[2 * i + 1]) for i in range(4)]
        for i in range(4):
            o += [valu('v_lshlrev_b32', t, 16, s8[i]), valu('v_and_b32', t2, 0xffff0000, s8[i]), valu('v_add_f32', l[q], l[q], t), valu('v_add_f32', l[q], l[q], t2)]
        o += [valu('v_mul_f32', V(128 + 32 * q + i), V(128 + 32 * q + i), f) for i in range(32)]
        o += [s_nop(1)] + [mfma(Oacc(dt, q), Vf(dt), s8.sub(0, 4), Oacc(dt, q), SH) for dt in range(8)] + [s_nop(7)]
    o += [salu('s_add_u32', sF, sF, 8192), salu('s_sub_u32', sFC, sFC, 1), s_cmp('s_cmp_lg_u32', sFC, 0), s_branch('s_cbranch_scc1', 'L_fb_loop')]
    for q in range(4): o += xmax('v_add_f32', l[q])
    o += [s_nop(9), raw(f"s_setpc_b64 {sRET}", 'branch', [sRET])]
    return o

def k1_setup():
    u = [V(64 + i) for i in range(12)]
    l, g, q, t0, t1, t2, t3, r, c = u[:9]
    o = [s_cmp('s_cmp_ge_u32', S(2), 256), s_branch('s_cbranch_scc1', 'L_k1_end')]
    o += [s_load('s_load_dwordx8', S(4, 8), S(0, 2), 0), s_load('s_load_dwordx2', pWO, S(0, 2), 32),
          s_load('s_load_dwordx8', S(32, 8), S(0, 2), 40), s_load('s_load_dwordx2', S(40, 2), S(0, 2), 72),
          s_load('s_load_dwordx2', pWS, S(0, 2), 96)]
    o += [salu('s_bfe_u32', sP, S(2), 0x10002), salu('s_and_b32', sT0, S(2), 1), salu('s_lshl_b32', sT0, sT0, 2), salu('s_bfe_u32', sT1, S(2), 0x20003),
          salu('s_add_u32', sB, sT0, sT1), salu('s_lshl_b32', sT1, sT1, 1),
          salu('s_lshr_b32', sT2, S(2), 5), salu('s_add_u32', sR0, sT1, sT2), s_cmp('s_cmp_ge_u32', sR0, 9),
          csel(sT1, 9, 0), salu('s_sub_u32', sR0, sR0, sT1),
          salu('s_and_b32', sT0, S(2), 2), salu('s_lshl_b32', sT0, sT0, 2), salu('s_add_u32', sH, sT0, sT2), salu('s_lshl_b32', sH, sH, 1)]
    if not OPT['rot']: o.append(s_mov(sR0, 0))
    o += [salu('s_lshl_b32', sXC, sR0, 7), salu('s_lshl_b32', sWC[1], sR0, 19), salu('s_add_u32', sWC[0], sWC[1], 262144)]
    o += [valu('v_lshrrev_b32', t0, 6, vT), valu('v_and_b32', l, 63, vT), readfirstlane(sW, t0),
          valu('v_lshrrev_b32', g, 4, l), valu('v_and_b32', q, 15, l), valu('v_lshrrev_b32', t1, 3, l), salu('s_lshl_b32', sW4K, sW, 12)]
    o += [smul(sT0, sW, 64 * 1152), valu('v_mul_u32_u24', t0, 1152, t1), valu('v_and_b32', t2, 7, l), valu('v_xor_b32', t2, t2, g),
          valu('v_add_u32', t0, sT0, t0), valu('v_lshl_add_u32', vXg[0], t2, 4, t0), valu('v_xor_b32', t2, 4, t2), valu('v_lshl_add_u32', t3, t2, 4, t0)]
    for n in range(1, 8): o.append(valu('v_add_u32', vXg[n], n * 9216 - 1024 * (n % 4), t3 if n % 2 else vXg[0]))
    o += [valu('v_lshrrev_b32', t1, 5, l), valu('v_and_b32', t2, 31, l), valu('v_xor_b32', t2, t2, t1), salu('s_and_b32', sT0, sW, 1),
          salu('s_lshl_b32', sT0, sT0, 3), valu('v_xor_b32', t2, sT0, t2), salu('s_lshl_b32', sT1, sW, 16), valu('v_lshlrev_b32', t1, 13, t1),
          valu('v_add_u32', t0, sT1, t1), valu('v_lshl_add_u32', vWd[0][0], t2, 4, t0), valu('v_xor_b32', t2, 4, t2), valu('v_lshl_add_u32', t3, t2, 4, t0)]
    for n in range(1, 4): o.append(valu('v_add_u32', vWd[0][n], n * (16384 - 1024), t3 if n % 2 else vWd[0][0]))
    for n in range(4): o.append(valu('v_mov_b32', vWd[1][n], vWd[0][n]))
    o += [salu('s_add_u32', sXM[0], sW4K, XBASE[0][0]), salu('s_add_u32', sXM[1], sW4K, XBASE[0][1]), salu('s_add_u32', sWM, sW4K, 131072)]
    o += [wait(lg=0), s_cmp('s_cmp_eq_u32', sP, 0)]
    for d, s1 in ((pX, S(32, 2)), (pWQ, S(38, 2)), (pK, S(34, 2)), (pV, S(36, 2)), (pWO, S(40, 2))):
        o.append(I('s_cselect_b64', f"s_cselect_b64 {d}, {d}, {s1}", 'salu', [d, s1, SCC], [d]))
    o += [smul(sT0, sB, 276480)] + set_srd(srdX[0], pX, sT0, 276480) + set_srd(srdX[1], pX, sT0, 276480)
    o += [salu('s_lshl_b32', sT0, sH, 8), salu('s_sub_u32', sT1, 576 * 8192, sT0)] + set_srd(srdW[0], pWQ, sT0, sT1) + set_srd(srdW[1], pWQ, sT0, sT1)
    def nop1(x): x = flat(x); x.insert(1, s_nop(0)); return x
    def xload(c):
        return nop1(dma_X(0, Xn(c, 0))) + nop1(dma_X(1, Xn(c, 1))) + advance(sXC, 128) + \
               [salu('s_xor_b32', sXM[0], sXM[0], 0xC000), salu('s_xor_b32', sXM[1], sXM[1], 0x18000)]
    o += xload(0) + nop1(dma_W(1, 'E1', salu('s_add_u32', M0, sWM, 16384))) + advance(sWC[1], 524288)
    o += nop1(dma_W(0, 'E0', s_mov(M0, sWM))) + advance(sWC[0], 524288, 262144) + xload(1)
    o += nop1(dma_W(1, 'V3', salu('s_add_u32', M0, sW4K, 114688))) + advance(sWC[1], 524288)
    o += [salu('s_lshl_b32', sT0, sB, 5), salu('s_add_u32', sT0, sT0, sH), salu('s_lshl_b32', sT0, sT0, 18)]
    o += set_srd(srdK, pK, sT0, 524288) + set_srd(srdV, pV, sT0, 524288)
    o += [smul(sT0, sP, O_BYTES)] + set_srd(srdO, pWS, sT0, O_BYTES)
    o += set_srd(srdP, pWO, 0, PACK_BYTES)
    o += [smul(sT0, sP, PACK_BYTES), salu('s_add_u32', sT0, sT0, PACK_OFF)] + set_srd(srdQ, pWS, sT0, PACK_BYTES)
    if OPT['stamp']:
        o += set_srd(S(72, 4), pWS, 200 * 1024 * 1024, 1024 * 1024)
        o += [salu('s_lshl_b32', S(76), S(2), 2), salu('s_add_u32', S(76), S(76), sW), salu('s_lshl_b32', S(76), S(76), 8)]
    o += [s_mov(sKOFF, 32768), s_mov(sVOFF, 49152), s_mov(sITEM, 0), s_mov(sFH, 0), s_mov(sCNT, 0), s_mov(sTG, 32768), s_mov(sEND, 19 * 16384),
          salu('s_add_u32', sKM, sW4K, 32768), salu('s_lshl_b32', sOA[0], sH, 13), salu('s_add_u32', sOA[1], sOA[0], 4096)]
    c_scale = math.log2(math.e) / math.sqrt(128.0)
    o += [s_mov(sHI, f2u(2.0 ** 40)), s_mov(sLO, f2u(2.0 ** -40)), s_mov(sSCALE[0], f2u(c_scale)), s_mov(sSCALE[1], f2u(c_scale))]
    o += [s_cmp('s_cmp_eq_u32', sW, 3), csel(sT0, f2u(-1.0e30), 0), csel(sPAD, f2u(1.0), 0)] + [valu('v_mov_b32', vCI[i], sT0) for i in range(4)]
    o += [valu('v_lshlrev_b32', t0, 8, g), valu('v_add_u32', t0, sW4K, t0)]
    for n in range(4): o += [valu('v_add_u32', t3, 4 * n, g), valu('v_xor_b32', t3, t3, q), valu('v_lshl_add_u32', vKd[n], t3, 4, t0)]
    o += [valu('v_lshlrev_b32', t3, 1, g), valu('v_xor_b32', t3, t3, q), valu('v_lshl_add_u32', vVd[0], t3, 4, t0), valu('v_xor_b32', vVd[1], 128, vVd[0])]
    o += [valu('v_lshrrev_b32', t2, 1, q), valu('v_xor_b32', t2, t2, g), valu('v_lshlrev_b32', t1, 7, q), valu('v_add_u32', t1, sW4K, t1),
          valu('v_lshl_add_u32', t1, t2, 4, t1), valu('v_xor_b32', t3, 64, t1)]
    for part in range(2): o += [valu('v_add_u32', vXr[part][0], XBASE[0][part], t1), valu('v_add_u32', vXr[part][1], XBASE[0][part], t3)]
    o += [valu('v_xor_b32', t2, g, q), valu('v_lshlrev_b32', t1, 8, q), valu('v_lshl_add_u32', vKr[0], t2, 4, t1)]
    for s in range(1, 4): o.append(valu('v_xor_b32', vKr[s], 64 * s, vKr[0]))
    o += [valu('v_lshrrev_b32', r, 2, q), valu('v_and_b32', c, 3, l), valu('v_lshl_add_u32', t0, g, 2, r), valu('v_and_b32', t2, 7, t0),
          valu('v_lshlrev_b32', t1, 8, t0), valu('v_lshl_add_u32', t1, t2, 5, t1), valu('v_lshl_add_u32', t1, c, 3, t1), valu('v_add_u32', vVr[0], 65536, t1)]
    for dt in range(1, 8): o.append(valu('v_xor_b32', vVr[dt], 32 * dt, vVr[0]))
    o += [valu('v_lshl_add_u32', t0, g, 3, r), valu('v_lshlrev_b32', t0, 9, t0), valu('v_and_b32', t1, 1, c), valu('v_lshl_add_u32', t0, t1, 3, t0),
          valu('v_and_b32', t1, 2, c), valu('v_and_b32', t2, 1, r), valu('v_or_b32', t1, t1, t2), valu('v_and_b32', t2, 2, r), valu('v_lshl_or_b32', t1, t2, 1, t1),
          valu('v_and_b32', t2, 1, g), valu('v_lshl_or_b32', t1, t2, 3, t1), valu('v_lshl_add_u32', t0, t1, 4, t0), valu('v_add_u32', vWr[0], 131072, t0)]
    for i in range(1, 8): o.append(valu('v_xor_b32', vWr[i], (4 * (i // 2) + i % 2) * 16, vWr[0]))
    o += [valu('v_lshrrev_b32', t0, 5, l), valu('v_bfe_u32', t1, l, 1, 1), v_cmp('v_cmp_eq_u32', t0, t1), valu('v_mov_b32', t2, 0x3f803f80), valu('v_and_b32', t3, 1, l),
          valu('v_cndmask_b32', t2, 0, t2, VCC), valu('v_mul_u32_u24', t3, 0xaaaa, t3), valu('v_add_u32', vIDX, 0x4444, t3)]
    o += [valu('v_accvgpr_write_b32', aONE[i], t2) for i in range(4)]
    o += [salu('s_lshl_b32', sPM0, sW, 13), salu('s_add_u32', sPM0, sPM0, 131072), valu('v_lshl_add_u32', t0, t0, 2, r), valu('v_mul_u32_u24', t0, 192, t0),
          valu('v_and_b32', t1, 1, g), valu('v_lshl_add_u32', t1, t1, 2, c), valu('v_mul_u32_u24', t1, 24, t1), valu('v_add3_u32', t0, t0, t1, sPM0),
          valu('v_lshlrev_b32', t1, 4, l), valu('v_accvgpr_write_b32', aPr, t0), valu('v_accvgpr_write_b32', aPs, t1)]
    for k in range(3):
        o += [valu('v_add_u32', t0, 64 * k, l), valu('v_mul_u32_u24', t1, 171, t0), valu('v_lshrrev_b32', t1, 11, t1),
              valu('v_mul_u32_u24', t2, 12, t1), valu('v_sub_u32', t2, t0, t2), valu('v_and_b32', t3, 8, t1), valu('v_add_u32', t1, t1, t3),
              valu('v_mul_u32_u24', t1, 1152, t1), valu('v_lshl_add_u32', t1, t2, 4, t1), valu('v_subrev_u32', t1, 1024 * k, t1),
              valu('v_accvgpr_write_b32', aPd[k], t1)]
    o += [salu('s_lshl_b32', sT0, sW, 6), valu('v_add_u32', t0, sT0, q), smul(sT1, sB, 240)]
    for qt in range(4):
        o += [valu('v_add_u32', t1, 16 * qt, t0),
              valu('v_add_u32', t2, sT1, t1), valu('v_lshrrev_b32', t3, 5, t2), valu('v_lshlrev_b32', t3, 18, t3),
              valu('v_and_b32', t2, 31, t2), valu('v_lshl_add_u32', t3, t2, 4, t3), valu('v_lshl_add_u32', t3, g, 9, t3),
              v_cmp('v_cmp_gt_u32', 240, t1), valu('v_mov_b32', t2, HUGE), s_nop(0),
              valu('v_cndmask_b32', vO[qt], t2, t3, VCC)]
    o += [salu('s_and_b32', sT0, S(2), 3), salu('s_lshl_b32', sT0, sT0, 5), salu('s_lshr_b32', sT1, S(2), 3), salu('s_add_u32', sT0, sT0, sT1)]
    for it in range(2):
        for s in range(2):
            ps, pd = ([sPS, sPS1][it][s], [sPD, sPD1][it][s])
            o += [salu('s_lshl_b32', sT1, sW, 1), salu('s_add_u32', sT1, sT1, 8 * it + s), s_cmp('s_cmp_ge_u32', sT1, 6),
                  csel(sT2, 1, 0), smul(pd, sT2, 6), salu('s_sub_u32', sT1, sT1, pd),
                  smul(ps, sT0, 32 * 1152), smul(pd, sT2, 8 * 1152), salu('s_add_u32', ps, ps, pd), smul(pd, sT1, 192), salu('s_add_u32', ps, ps, pd),
                  salu('s_lshl1_add_u32', sT2, sT0, sT2),
                  smul(pd, sT1, 786432), smul(sT2, sT2, 3072), salu('s_add_u32', pd, pd, sT2), s_cmp('s_cmp_ge_u32', sT1, 6),
                  csel(ps, HUGE, ps), csel(pd, HUGE, pd)]
    for i in range(128): o += [valu('v_mov_b32', V(128 + i), 0), valu('v_accvgpr_write_b32', A(i), 0)]
    return o

def kernel1():
    head = k1_setup() + stamp(0)
    head += [wait(vm=[Xn(0, 0), Xn(0, 1)])] + [rd_X(0, 0, qt) for qt in range(4)]
    head += [valu('v_xor_b32', vXr[0][0], 0xC000, vXr[0][0]), valu('v_xor_b32', vXr[1][0], 0x18000, vXr[1][0])]
    head += [wait(vm=['E1']), s_barrier()] + flat([rd_W(p, 0, 0, p) for p in range(4)]) + [wait(lg=[Wf(0), Wf(1)])]
    qs, qtr = q_loop()
    tail = [label('L_qtail')] + stamp(1) + q_tail() + stamp(2)
    bodies = []
    for hd in range(2):
        for t in range(15):
            j = 32 * hd + 2 * t + 1
            bodies.append([label('L_att')] + istamp(48, sKOFF, 14) + period(j) + period(j + 1) + [s_cmp('s_cmp_lg_u32', sKOFF, sEND), s_branch('s_cbranch_scc1', 'L_att')])
            if len(bodies) > 1: del REP[-2:]
    rolled('att', bodies)
    after = [s_cmp('s_cmp_lg_u32', sITEM, 0), s_branch('s_cbranch_scc1', 'L_last')]
    mid = boundary()
    mid = mid[:1] + stamp(3) + mid[1:] + stamp(18) + [s_branch('s_branch', 'L_att')]
    last = final()
    last = last[:1] + stamp(19) + last[1:] + [label('L_k1_end'), raw('s_endpgm')]
    al = [raw(f".p2align {OPT['al']}", 'label')] if OPT['al'] else []
    static = head + al + qs + tail + al + bodies[0] + after + mid + last
    trace = head + qtr + tail + flat(bodies[:15]) + after + mid + flat(bodies[15:]) + after + last
    tramps = []
    for i in sites:
        tramps += [label(f"L_tramp{i}"), raw(f"s_call_b64 {sRET}, L_fb", 'branch', [], [sRET]), s_branch('s_branch', f"L_ret{i}")]
    return static, trace, tramps + fallback()

def descriptor(name, vgpr, accum, sgpr=96):
    return f""".amdhsa_kernel {name}
  .amdhsa_next_free_vgpr {vgpr}
  .amdhsa_next_free_sgpr {sgpr}
  .amdhsa_accum_offset {accum}
  .amdhsa_group_segment_fixed_size 0
  .amdhsa_kernarg_size 104
  .amdhsa_user_sgpr_count 2
  .amdhsa_user_sgpr_kernarg_segment_ptr 1
  .amdhsa_system_sgpr_workgroup_id_x 1
.end_amdhsa_kernel
"""

def finish(static, trace, rare, name):
    tr = expand(trace)
    resolve_waits(tr)
    errs = check(tr, name)
    if rare:
        resolve_waits(rare)
        errs += check(rare, name + "_rare")
    seen = set()
    for e in errs:
        k = e.split('] ', 1)[1]
        if k not in seen and len(seen) < 40: print("CHECK:", e, file=sys.stderr)
        seen.add(k)
    if errs: print(f"{len(errs)} check errors in {name}", file=sys.stderr)
    return render(static) + "\n" + (render(rare) if rare else "")

def main():
    ref = open(os.path.join(os.path.dirname(os.path.abspath(__file__)), '..', 'cdna_kernels', NAME + '.s.ref')).read().splitlines()
    hdr = [l for l in ref if l.startswith(';') and '@launch' not in l and 'Override launch' not in l and 'grid=ceil' not in l]
    st, tr, rare = kernel1()
    if OPT['rep']:
        for r in REP: print(len(r), sum(max(0, x - 8) for x in r), r, file=sys.stderr)
    out = hdr[:]
    out.append("; OLAY=16")
    if OPT['k1']: out.append("; @launch kernel=attn_kernel grid=(256,1,1) block=(256,1,1) lds=163840")
    import gen4
    if OPT['k2']: out.append(f"; @launch kernel=oproj_kernel grid=(240,1,1) block=(256,1,1) lds={gen4.LDS}")
    out += ['.amdgcn_target "amdgcn-amd-amdhsa--gfx950"', '.text', '.globl attn_kernel', '.p2align 8', '.type attn_kernel,@function', 'attn_kernel:']
    out.append(finish(st, tr, rare, 'k1'))
    if OPT['k2']:
        k2 = gen4.kernel2(OPT)
        out += ['.globl oproj_kernel', '.p2align 8', '.type oproj_kernel,@function', 'oproj_kernel:']
        out.append(finish(k2, k2, None, 'k2'))
    out += ['.section .rodata,"a"', '.p2align 6', descriptor('attn_kernel', 512, 256, 102)]
    if OPT['k2']:
        out += ['.p2align 6', descriptor('oproj_kernel', 512, 256)]
    open(sys.argv[1], 'w').write("\n".join(out))

if __name__ == '__main__':
    main()
```

```python
import sys, os, math, struct
from asmlib import *
import asmlib

NAME = "concat_heads__mha_block_cached__gqa_block_cached__near_ridge"
OPT = dict(stamp=0, k2=1, k1=1, ost=' sc1', pst=' sc1', xf='', wf='', pf=' nt', kvf=' nt', rot=0, rep=0,
           depth=5, rot2=0, of='', wof='', kv0=5, pk0=0, cinit=1, al=6, dc=8, forcefb=0, nodma=0, dg=1, nost=0,
           xr=3, pl=1, e0=1, npl=2, st0=14, st1=-8, prd=80, nopk=0, la=4, g2=17, g3=29, gv=0)
STR = ('ost', 'pst', 'xf', 'wf', 'pf', 'kvf', 'of', 'wof')
for a in sys.argv[2:]:
    k, v = a.split('=')
    OPT[k] = ((' ' + v.replace('+', ' ')) if v != '-' else '') if k in STR else int(v)
asmlib.COST['dma'] = OPT['dc']

def f2u(x): return struct.unpack('<I', struct.pack('<f', x))[0]
O_BYTES = 60 * 262144
PACK_OFF = 32 * 1024 * 1024
PACK_BYTES = 4096 * 1152
HUGE = 0x7f000000
SH = '16x16x32'

pX, pK, pV, pWQ, pWO, pWS = S(4, 2), S(6, 2), S(8, 2), S(10, 2), S(12, 2), S(14, 2)
srdP, srdQ = S(16, 4), S(20, 4)
sPU, sPV = [S(24), S(25), S(26)], [S(27), S(28), S(29)]
sLIM, sXR, sXK, sXV = S(30), S(31), S(12), S(13)
srdK, srdV, srdO = S(32, 4), S(36, 4), S(40, 4)
srdX, srdW = [S(44, 4), S(48, 4)], [S(52, 4), S(56, 4)]
sSCALE = S(60, 2)
sRET = S(62, 2)
sW, sB, sH, sP, sW4K, sT0, sT1, sT2 = S(64), S(65), S(66), S(67), S(68), S(3), S(69), S(80)
sSTAMP = S(70, 2)
sKOFF, sVOFF, sKM, sTG, sEND, sITEM = S(81), S(82), S(83), S(84), S(85), S(86)
sXC, sWC, sXM, sWM, sCNT = S(87), [S(88), S(89)], [S(90), S(91)], S(92), S(93)
sHI, sLO, sPM0, sPAD, sFH = S(94), S(95), S(96), S(97), S(98)
sOA = [S(99), S(100)]
sOB = [S(10), S(11)]
sMASK = S(4, 2)
sF, sF2, sFC = S(6), S(7), S(8)
sR0 = S(101)
vKr = [V(1 + i) for i in range(4)]
vVr = [V(5 + i) for i in range(8)]
vKd = [V(13 + i) for i in range(4)]
vVd = [V(17), V(18)]
vIDX = V(19)
vCI = V(20, 4)
vO = [V(24 + i) for i in range(4)]
vRC = V(28, 4)
vT = V(0)
def Sreg(qt, kt): return V(32 + qt * 8 + (4 * kt if qt % 2 else 4 - 4 * kt), 4)
def Preg(qt): return Sreg(qt, 0)
def Qreg(qt, s): return V(64 + qt * 16 + s * 4, 4)
def Oacc(dt, qt): return V(128 + qt * 32 + dt * 4, 4)
def QACC(h, s, tt, qt): return (V(128 + qt * 32 + s * 8 + tt * 4, 4) if h == 0 else A(qt * 32 + s * 8 + tt * 4, 4))
vXg = [V(32 + i) for i in range(8)]
vWd = [[V(40 + i) for i in range(4)], [V(44 + i) for i in range(4)]]
vXr = [[V(48), V(49)], [V(50), V(51)]]
vWr = [V(52 + i) for i in range(8)]
def Kf(kt, s): return A(128 + (kt * 4 + s) * 4, 4)
def Vf(dt): return A(160 + dt * 4, 4)
def Wf(p): return A(160 + (p % 8) * 4, 4)
def XF(ks, qt): return A(192 + (ks * 4 + qt) * 4, 4)
def PKf(s, nt): return A(192 + (s * 3 + nt) * 4, 4)
def Lacc(i): return A(224 + 4 * i, 4)
aONE = A(232, 4)
aPd, aPr, aPq = [A(236), A(237), A(238)], A(239), A(240)
GRAY = [0, 1, 3, 2]
def Kn(t): return f"K{GRAY[t % 4]}"
def Vn(t): return f"V{GRAY[t % 4]}"
WN = ['E1', 'E0', 'V3', 'V2']
def Xn(c, part): return f"privX{c % 2}{part}"
XBASE = [[32768, 49152], [16384, 81920]]

def stamp(idx, t0=V(28), t1=V(29)):
    if not OPT['stamp']: return []
    return [raw(f"s_memtime {sSTAMP}", 'salu', [], [sSTAMP]), raw("s_memrealtime s[78:79]"), raw("s_waitcnt lgkmcnt(0)", 'salu'),
            valu('v_mov_b32', t0, sSTAMP[0]), valu('v_mov_b32', t1, idx * 4), raw(f"s_nop 0", 'salu'),
            raw(f"buffer_store_dword {t0}, {t1}, s[72:75], s76 offen", 'vstore'),
            raw("s_nop 1"), valu('v_mov_b32', t0, S(78)), raw("s_nop 0"),
            raw(f"buffer_store_dword {t0}, {t1}, s[72:75], s76 offen offset:32", 'vstore'), raw("s_nop 1")]

def istamp(base, reg, shift):
    if OPT['stamp'] != 2: return []
    t0, t1 = V(30), V(31)
    return [raw(f"s_memtime {sSTAMP}", 'salu', [], [sSTAMP]), raw(f"s_lshr_b32 s77, {reg}, {shift}"), raw("s_and_b32 s77, s77, 15"), raw(f"s_add_u32 s77, s77, {base}"),
            raw("s_lshl_b32 s77, s77, 2"), raw("s_waitcnt lgkmcnt(0)", 'salu'),
            valu('v_mov_b32', t0, sSTAMP[0]), valu('v_mov_b32', t1, S(77)), raw(f"s_nop 0", 'salu'),
            raw(f"buffer_store_dword {t0}, {t1}, s[72:75], s76 offen", 'vstore'), raw("s_nop 1")]

def probe(k):
    if OPT['stamp'] != 3: return []
    return [raw("s_memrealtime s[78:79]"), raw("s_waitcnt lgkmcnt(0)"), valu('v_mov_b32', V(120 + k), S(78))]
def probes_out(n):
    if OPT['stamp'] != 3: return []
    o = []
    for k in range(n): o += [valu('v_mov_b32', V(29), 4 * (48 + k)), raw("s_nop 0"), raw(f"buffer_store_dword v{120 + k}, v29, s[72:75], s76 offen", 'vstore'), raw("s_nop 1")]
    return o

def set_srd(srd, base, off_lo, nbytes):
    return [salu('s_add_u32', srd[0], base[0], off_lo), salu('s_addc_u32', srd[1], base[1], 0),
            s_mov(srd[2], nbytes), s_mov(srd[3], 0x20000)]
def smul(d, a, b): return salu('s_mul_i32', d, a, b, scc=False)
def flat(groups): return [x for g in groups for x in g]
def csel(d, a, b): return I('s_cselect_b32', f"s_cselect_b32 {d}, {a}, {b}", 'salu', [SCC, a, b], [d])
def advance(reg, step, first=0):
    return [salu('s_add_u32', reg, reg, step), s_cmp('s_cmp_eq_u32', reg, 9 * step + first), csel(reg, first, reg)]
def at(groups, gaps):
    assert len(groups) == len(gaps), (len(groups), len(gaps))
    return [F(g, p, p, tail=all(x.kind in ('wait', 'barrier') for x in g)) for g, p in zip(groups, gaps)]

def dma_K(name, m0, soff=sKOFF, adv=True):
    d = [[m0]] + [[buf_dma(vKd[n], srdK, soff, 1024 * n, name, OPT['kvf'])] for n in range(4)]
    if OPT['xr'] or (isinstance(soff, int) and soff): d = [[salu('s_xor_b32', sXK, soff, sXR), m0]] + [[buf_dma(vKd[n], srdK, sXK, 1024 * n, name, OPT['kvf'])] for n in range(4)]
    if OPT['nodma']: d = [[m0]] + [[s_nop(0)] for n in range(4)]
    return tag_m0(d + ([[salu('s_add_u32', sKOFF, sKOFF, 16384)]] if adv else []))
def dma_V(name, m0, soff=sVOFF, adv=True):
    d = [[m0]] + [[buf_dma(vVd[n % 2], srdV, soff, 1024 * n, name, OPT['kvf'])] for n in range(4)]
    if OPT['xr'] or (isinstance(soff, int) and soff): d = [[salu('s_xor_b32', sXV, soff, sXR), m0]] + [[buf_dma(vVd[n % 2], srdV, sXV, 1024 * n, name, OPT['kvf'])] for n in range(4)]
    if OPT['nodma']: d = [[m0]] + [[s_nop(0)] for n in range(4)]
    return tag_m0(d + ([[salu('s_add_u32', sVOFF, sVOFF, 16384)]] if adv else []))
def dma_X(part, name):
    return tag_m0([[s_mov(M0, sXM[part])]] + [[buf_dma(vXg[4 * part + n], srdX[part], sXC, 1024 * n, name, OPT['xf'])] for n in range(4)])
def dma_W(i, name, m0):
    return tag_m0([[m0]] + [[buf_dma(vWd[i][n], srdW[i], sWC[i], 1024 * n, name, OPT['wf'])] for n in range(4)])
def PK(s, nt): return A(192 + (s * 3 + nt) * 4, 4) if s * 3 + nt < 8 else A(244, 4)
def pack_in():
    t = [vRC[0], vRC[1], vRC[2]]
    out = [[valu('v_accvgpr_read_b32', t[u], aPd[u])] for u in range(3)]
    for s in range(3):
        out.append([salu('s_add_u32', M0, sPM0, s * 3072) if s < 2 else s_mov(M0, sW4K), s_nop(0)])
        out += [[buf_dma(t[u], srdP, sPU[s], 1024 * u, 'privP' if s < 2 else ('privP', Kn(28)), OPT['pf'])] for u in range(3)]
    return tag_m0(out)
def pack_rd():
    ra, rb = vRC[3], vRC[2]
    o = [[valu('v_accvgpr_read_b32', ra, aPr)], [valu('v_accvgpr_read_b32', rb, aPq), wait(vm=['privP'])]]
    for s in range(3):
        o += [[ds_read('ds_read_b64_tr_b16', PK(s, nt).sub(2 * h, 2), ra if s < 2 else rb, (s % 2) * 3072 + h * 1536 + 8 * nt, 'privP') for h in range(2)] for nt in range(3)]
    return o
def pack_st(units): return [[buf_store('buffer_store_dwordx4', PK(s, nt), vT, srdQ, sPV[s], nt * 1024, OPT['pst'])] for s in units for nt in range(3)]

def rd_K(name, half, kt, s): return ds_read('ds_read_b128', Kf(kt, s), vKr[s], half * 8192 + kt * 4096, name)
def rd_V(name, half, dt): return [ds_read('ds_read_b64_tr_b16', Vf(dt).sub(2 * h, 2), vVr[dt], half * 8192 + h * 4096, name) for h in range(2)]
def rd_W(p, h, head, i):
    return [ds_read('ds_read_b64_tr_b16', Wf(p).sub(2 * j, 2), vWr[i], (1 - h % 2) * 16384 + j * 2048 + head * 256, WN[h % 4]) for j in range(2)]
def rd_X(c, ks, qt): return ds_read('ds_read_b128', XF(ks, qt), vXr[qt // 2][ks], (qt % 2) * 2048, Xn(c, qt // 2))

ST = [32, 40, 49, 57]
NP = 66
DG = [[[54, 55, 57, 59, 61, 62], [54, 55, 57, 59, 61, 62]], [[38, 39, 48, 55, 60, 62], [15, 16, 30, 45, 58, 60]]][OPT['dg']]
REP = []
def period_parts(j, B=0, first=False, nxt=True, kg=None, dma=True):
    t, odd = j // 2, j % 2
    mf = []
    for qt in range(4):
        for kt in range(2):
            for s in range(4):
                c = Sreg(qt, kt) if s else (vCI if (qt == 3 and OPT['cinit']) else 0)
                mf.append(mfma(Sreg(qt, kt), Kf(kt, s), Qreg(qt, s), c, SH))
    for qt in range(4):
        if qt % 2: mf.append(smfmac(Lacc(qt // 2), aONE, V(Preg(qt - 1).i, 8), vIDX))
        for dt in range(8): mf.append(mfma(Oacc(dt, qt), Vf(dt), Preg(qt), 0 if first else Oacc(dt, qt), SH))
    fl = []
    prev = None
    for qt in range(4):
        dl = B + ST[qt] - 3
        pc = None
        for kt in range(2):
            lo = B + 8 * qt + 4 * kt + 3 + 4
            ex = []
            for r in range(4):
                prev = F(valu('v_exp_f32', Sreg(qt, kt)[r], Sreg(qt, kt)[r]), lo, dl - 1, after=[prev]); ex.append(prev)
            fl += ex
            for h in range(2):
                pc = F(valu('v_cvt_pk_bf16_f32', Preg(qt)[2 * kt + h], Sreg(qt, kt)[2 * h], Sreg(qt, kt)[2 * h + 1]), lo, dl,
                       after=[(ex[2 * h + 1], 1), pc]); fl.append(pc)
    vr = at([rd_V(Vn(t), odd, dt) for dt in range(8)], [B + g for g in range(8)]); fl += vr
    fl += at([[wait(lg=[Vf(dt) for dt in range(8)])]], [B + 31])
    if nxt:
        kg = kg or [37, 37, 46, 46, 47, 47, 53, 53]
        fl += at([[rd_K(Kn(t + odd), 1 - odd, i // 4, i % 4)] for i in range(8)], [B + g for g in kg])
        fl += at([[wait(lg=0)]], [B + 65])
        if odd:
            fl += at([[wait(vm=[Kn(t + 1), Vn(t + 1)]), s_barrier()]], [B + 36])
            if dma: fl += at(dma_K(Kn(t + OPT['la']), s_mov(M0, sKM)), [B + g for g in DG[0]])
            fl += [F(valu('v_xor_b32', vVr[dt], sTG, vVr[dt]), B + 31, B + 65) for dt in range(8)]
        else:
            if dma: fl += at(dma_V(Vn(t + OPT['la'] - 1), salu('s_add_u32', M0, sKM, 65536)), [B + g for g in DG[1]])
            x = F([salu('s_xor_b32', sKM, sKM, sTG), salu('s_xor_b32', sTG, sTG, 49152)][::1 if OPT['la'] == 4 else -1], B + DG[1][0] + 1, B + 60)
            fl += [x] + [F(valu('v_xor_b32', vKr[s], sTG, vKr[s]), B + 54, B + 65, after=[x]) for s in range(4)]
    return mf, fl
def period(j, extra=(), **kw):
    mf, fl = period_parts(j, **kw)
    return schedule(mf, fl + list(extra), 8, REP)

def q_half(c, hf, last):
    h = 2 * c + hf
    mf = [mfma(QACC(i // 8, (i % 8) // 2, i % 2, qt), Wf(i), XF(hf, qt), QACC(i // 8, (i % 8) // 2, i % 2, qt), SH)
          for i in range(16) for qt in range(4)]
    fl = []
    for i in range(16):
        p = i + 4
        fl += at([rd_W(p, h, p // 8, p % 8) if p < 16 else rd_W(p, h + 1, 0, p - 16)], [4 * i])
    for i in range(2, 18, 2):
        w = [Wf(i), Wf(i + 1)] + ([XF(1 - hf, qt) for qt in range(4)] if i == 16 else [])
        fl += at([[wait(lg=w)]], [4 * i - 1])
    fl += at([[wait(vm=[WN[(h + 1) % 4]]), s_barrier()]], [46])
    if hf == 0:
        fl += at([[rd_X(c, 1, 0), rd_X(c, 1, 2)], [rd_X(c, 1, 1), rd_X(c, 1, 3)],
                  [valu('v_xor_b32', vXr[0][1], 0xC000, vXr[0][1]), valu('v_xor_b32', vXr[1][1], 0x18000, vXr[1][1])]], [1, 2, 5])
        if last and OPT['pl']: fl += at(dma_K((Xn(c, 0), Kn(1)), salu('s_add_u32', M0, sW4K, 16384), 16384, False), [17, 18, 22, 26, 30])
        else:
            fl += at(dma_X(0, (Xn(c, 0), Kn(1)) if last else Xn(c, 0)), [17, 18, 22, 26, 30])
            fl += at([[salu('s_xor_b32', sXM[0], sXM[0], 0xC000)]], [33])
        fl += at(dma_W(0, WN[(h + 3) % 4], salu('s_xor_b32', M0, sWM, 0x38000)) + [advance(sWC[0], 524288, 262144)], [49, 50, 53, 57, 61, 62])
    else:
        if last and OPT['pl']: fl += at(dma_V((Xn(c, 1), Vn(1)), salu('s_add_u32', M0, sW4K, 81920), 16384, False), [1, 2, 6, 10, 14])
        else:
            fl += at(dma_X(1, (Xn(c, 1), Vn(1)) if last else Xn(c, 1)), [1, 2, 6, 10, 14])
            fl += at([[salu('s_xor_b32', sXM[1], sXM[1], 0x18000)], advance(sXC, 128)], [17, 18])
        fl += at([[wait(vm=[Xn(c + 1, 0), Xn(c + 1, 1)])], [rd_X(c + 1, 0, 0), rd_X(c + 1, 0, 2)], [rd_X(c + 1, 0, 1), rd_X(c + 1, 0, 3)],
                  [valu('v_xor_b32', vXr[0][0], 0xC000, vXr[0][0]), valu('v_xor_b32', vXr[1][0], 0x18000, vXr[1][0])]], [37, 38, 41, 42])
        fl += at([[valu('v_xor_b32', vWr[i], 0x38000, vWr[i])] for i in range(8)], [19, 21, 25, 29, 33, 37, 43, 45])
        if last and OPT['pl']:
            if OPT['la'] == 4 and not OPT['gv']: fl += at(dma_V(Vn(2), salu('s_add_u32', M0, sW4K, 114688), 32768, False), [49, 50, 53, 57, 61])
        else:
            fl += at(dma_W(1, WN[(h + 3) % 4], salu('s_add_u32', M0, sWM, 16384)) + [advance(sWC[1], 524288)], [49, 50, 53, 57, 61, 62])
            fl += at([[salu('s_xor_b32', sWM, sWM, 0x38000)]], [51])
    return schedule(mf, fl, 8, REP)

def q_loop():
    NR = 7 if OPT['pl'] else 8
    bodies = []
    for c in range(NR):
        b = [label('L_q')] + istamp(32, sCNT, 0) + q_half(c, 0, c == 7) + q_half(c, 1, c == 7)
        b += [salu('s_add_u32', sCNT, sCNT, 1), s_cmp('s_cmp_lg_u32', sCNT, sLIM), s_branch('s_cbranch_scc1', 'L_q')]
        bodies.append(b)
    rolled('q', bodies)
    blk = {}
    a = flat(dma_K(Kn(0), s_mov(M0, sW4K), 0, False)); a.insert(1 + bool(OPT['xr']), s_nop(0))
    b = flat(dma_V(Vn(0), salu('s_add_u32', M0, sW4K, 65536), 0, False)); b.insert(1 + bool(OPT['xr']), s_nop(0))
    blk.setdefault(OPT['kv0'], []).extend(a + b)
    if not OPT['pl']:
        sw = []
        for d, s in ((srdX[0], srdK), (srdX[1], srdV), (srdW[1], srdV)):
            sw += [s_mov(d[k], s[k]) for k in range(3)]
        sw += [salu('s_xor_b32', sXC, sXR, 16384), salu('s_xor_b32', sWC[1], sXR, 32768)]
        for n in range(4):
            sw += [valu('v_mov_b32', vXg[n], vKd[n]), valu('v_mov_b32', vXg[4 + n], vVd[n % 2]), valu('v_mov_b32', vWd[1][n], vVd[n % 2])]
        blk.setdefault(6, []).extend(sw)
    cs = sorted(blk)
    static, trace = bodies[0][:], []
    full = {}
    for k, c in enumerate(cs):
        hd = [label(f'L_q{k}'), s_cmp('s_cmp_lg_u32', sCNT, c + 1), s_branch('s_cbranch_scc1', f'L_q{k + 1}' if k + 1 < len(cs) else 'L_qtail')]
        full[c] = hd + blk[c] + [s_mov(sLIM, (cs + [NR - 1])[k + 1] + 1), s_branch('s_branch', 'L_q')]
        static += full[c]
    for c in range(NR): trace += bodies[c] + full.get(c, [])
    return static, trace, cs[0] + 1

def conv(h, qt, s, tmp=None, pk=True):
    q = Qreg(qt, s)
    g = []
    src = V(QACC(0, s, 0, qt).i, 8) if h == 0 else tmp
    if h == 1: g += [[valu('v_accvgpr_read_b32', tmp[i], A(QACC(1, s, 0, qt).i + i))] for i in range(8)]
    if pk: g += [[pk_mul_s(src.sub(2 * i, 2), sSCALE)] for i in range(4)]
    else: g += [[valu('v_mul_f32', src[i], sSCALE[0], src[i])] for i in range(8)]
    g += [[valu('v_cvt_pk_bf16_f32', q[i], src[2 * i], src[2 * i + 1])] for i in range(4)]
    return g, [[perm16(q[0], q[2])], [perm16(q[1], q[3])]]
def l_init():
    return [[valu('v_accvgpr_write_b32', Lacc(i // 4)[i % 4], sPAD if i == 6 else 0)] for i in range(8)]

def q_tail():
    seq = [(hd, ks, i) for hd in range(2) for ks in range(2) for i in range(8)]
    mf = [mfma(QACC(hd, i // 2, i % 2, qt), Wf(p), XF(ks, qt), QACC(hd, i // 2, i % 2, qt), SH)
          for p, (hd, ks, i) in enumerate(seq) for qt in range(4)]
    B = 128
    m0, fl = period_parts(0, B, first=True)
    mf += m0
    for p in range(4, 32): fl += at([rd_W(p, 16 + seq[p][1], seq[p][0], seq[p][2])], [4 * (p - 4)])
    for p in range(2, 32, 2): fl += at([[wait(lg=[Wf(p), Wf(p + 1)] + ([XF(1, qt) for qt in range(4)] if p == 8 else []))]], [4 * p - 1])
    fl += at([[rd_X(8, 1, 0), rd_X(8, 1, 2)], [rd_X(8, 1, 1), rd_X(8, 1, 3)], [wait(vm=['E0']), s_barrier()]], [1, 2, 14])
    fl += at(dma_K((Kn(2), Xn(8, 1)), salu('s_add_u32', M0, sW4K, 49152)), [OPT['g2'] + g for g in (0, 1, 4, 5, 8, 9)])
    if OPT['la'] == 4:
        fl += at(dma_K((Kn(3), Xn(8, 0)), s_mov(M0, sKM)), [OPT['g3'] + g for g in (0, 1, 4, 5, 8, 9)])
        if OPT['gv']: fl += at(dma_V(Vn(2), salu('s_add_u32', M0, sW4K, 114688), 32768, False), [OPT['gv'] + g for g in (0, 1, 4, 5, 8)])
    fl += chain(l_init(), 5, 40, step=1)
    fl += at([[wait(vm=[Kn(0), Vn(0)], lg=0), s_barrier()]], [119])
    fl += at([[rd_K(Kn(0), 0, i // 4, i % 4)] for i in range(8)], [120, 120, 121, 121, 122, 122, 123, 123])
    fl += at([[wait(lg=[Kf(0, s) for s in range(4)])], [wait(lg=[Kf(1, s) for s in range(4)])]], [127, B + 3])
    prev, sw = None, []
    order = [(qt, s) for s in range(3) for qt in range(4)] + [(qt, 3) for qt in range(4)]
    order.sort(key=lambda x: (x[1] if x[1] < 2 else 2, x[0]))
    for qt, s in order:
        g, p16 = conv(0, qt, s, pk=OPT['pk0'])
        lo = 4 * (9 + 2 * s) + qt + 5
        hi = B + 8 * qt - 2
        ch = chain(g + [[s_nop(0)]] + p16[:1] + p16[1:], lo, hi, after=[prev], per=0); prev = ch[-1]; fl += ch
    return schedule(mf, fl, 8, REP)

sites = []
def check_parts():
    t = [V(32 + i) for i in range(8)]
    g = [[valu('v_accvgpr_read_b32', t[i], Lacc(i // 4)[i % 4])] for i in range(8)]
    g += [[valu('v_add_f32', vRC[q], t[2 * q], t[2 * q + 1])] for q in range(4)]
    g += [[valu('v_add_f32', t[0], vRC[0], vRC[1])], [valu('v_add_f32', t[1], vRC[2], vRC[3])], [valu('v_min3_f32', t[2], vRC[0], vRC[1], vRC[2])],
          [valu('v_add_f32', t[0], t[0], t[1])], [valu('v_min_f32', t[2], t[2], vRC[3])], [v_cmp('v_cmp_ngt_f32', sHI, t[0])],
          [I('v_cmp_gt_f32', f"v_cmp_gt_f32_e64 {sMASK}, {sLO}, {t[2]}", 'valu', [sLO, t[2]], [sMASK])]]
    k = len(sites); sites.append(k)
    br = [s_nop(0), I('s_or_b64', f"s_or_b64 {sMASK}, {sMASK}, vcc", 'salu', [sMASK, VCC], [sMASK, SCC]),
          s_branch('s_cbranch_scc0' if OPT['forcefb'] else 's_cbranch_scc1', f"L_tramp{k}"), label(f"L_ret{k}")]
    return g, br
def with_check(mf, fl, B, pad):
    ck, br = check_parts()
    c1 = chain(ck[:4], B + 50, B + 62, per=0)
    return schedule(mf, fl + c1 + chain([[s_nop(pad)]] + ck[4:], B + 64, B + 65, per=0, after=c1[-1:]), 8, REP) + br
def parked(qt):
    return [buf_store('buffer_store_dwordx4', A(32 * qt + 4 * m, 4), vO[qt], srdO, sOB[m // 2], (m % 2) * 2048, OPT['ost']) for m in range(4)]
def epilogue(qt, mid=False):
    g = []
    for m in range(4):
        o = V(Oacc(2 * m, qt).i, 8)
        g += [[pk_mul_v(o.sub(2 * i, 2), vRC.sub(qt & 2, 2), qt & 1)] for i in range(4)]
        g += [[valu('v_cvt_pk_bf16_f32', o[i], o[2 * i], o[2 * i + 1])] for i in range(4)]
        if mid: g += [[valu('v_accvgpr_write_b32', A(32 * qt + 4 * m + i), o[i])] for i in range(4)]
        else: g += [[buf_store('buffer_store_dwordx4', o.sub(0, 4), vO[qt], srdO, sOA[m // 2], (m % 2) * 2048, OPT['ost'])]]
    return g
def rcp(): return [valu('v_rcp_f32', vRC[q], vRC[q]) for q in range(4)]

def boundary():
    o = [label('L_mid')] + with_check(*period_parts(31), 0, 1) + stamp(4, V(32), V(33)) + stamp(16, V(32), V(33)) + stamp(17, V(32), V(33))
    o += rcp() + flat(l_init())
    o += [s_mov(sITEM, 1), s_mov(sFH, 262144), salu('s_add_u32', sEND, sEND, 262144 - 16384 * OPT['npl']), s_mov(sOB[0], sOA[0]), s_mov(sOB[1], sOA[1])]
    tmp = V(56, 8)
    def cv(qt):
        out, pend = [], []
        for s in range(4):
            g, p = conv(1, qt, s, tmp)
            out += g[:2] + pend + g[2:]; pend = p
        return out + [[s_nop(1)]] + pend
    o += flat(cv(0)) + flat(epilogue(0, True)) + [s_nop(1)]
    e, prev = [], None
    for qt in range(1, 4):
        ch = chain(cv(qt), 8 * qt - 8, 8 * qt - 2, after=[prev], per=0); prev = ch[-1]; e += ch
    for qt in range(1, 4):
        ch = chain(epilogue(qt, True), 20, ST[qt] - 3, after=[prev], per=0); prev = ch[-1]; e += ch
    e += chain([[salu('s_add_u32', sOA[0], sOA[0], 8192), salu('s_add_u32', sOA[1], sOA[1], 8192)]], 40, 65, after=[prev], per=0)
    return o + period(32, extra=e, first=True)
def final():
    mf, fl = [], []
    n = 2 * OPT['npl'] + 1
    for k in range(n):
        m, f = period_parts(64 - n + k, NP * k, nxt=k < n - 1, dma=False)
        mf += m; fl += f
    B = NP * (n - 1)
    pi = chain(pack_in(), 0, 13, per=0)
    pr = chain(pack_rd(), OPT['prd'], OPT['prd'] + 40, step=3, per=0)
    pw = F(wait(lg=[PK(s, nt) for s in range(3) for nt in range(3)]), OPT['prd'] + 40, OPT['prd'] + 60, after=[pr[-1]])
    st = [[x] for qt in range(4) for x in parked(qt)] + pack_st(range(3))
    lo, hi = OPT['st0'], NP * n + OPT['st1']
    st = chain(st, lo, hi, step=(hi - lo) / len(st), per=0, slack=6, after=pi[-1:])
    st[16].after.append((pw, 0))
    if OPT['nopk'] == 1: st = st[:16]
    if OPT['nopk'] == 2: st = []
    o = [label('L_last')] + with_check(mf, fl + pi + pr + [pw] + st, B, 4) + stamp(21, V(40), V(41)) + rcp()
    for qt in range(4): o += flat(epilogue(qt))
    return o + stamp(20, V(32), V(33))

def fallback():
    vk, vv, ad, f, t, t2 = V(32), [V(33), V(34)], V(35), V(36), V(37), V(38)
    m, s8 = [V(40 + q) for q in range(4)], V(48, 8)
    l = [vRC[q] for q in range(4)]
    def FK(kt, s): return A(192 + (kt * 4 + s) * 4, 4)
    def xmax(op, x):
        return [valu('v_mov_b32', t2, x), s_nop(1), perm16(x, t2), valu(op, x, x, t2), valu('v_mov_b32', t2, x), s_nop(1), permswap(x, t2), valu(op, x, x, t2)]
    o = [label('L_fb'), s_nop(15), raw('s_waitcnt vmcnt(0) lgkmcnt(0)')]
    o += [raw(f"v_mbcnt_lo_u32_b32 {t}, -1, 0", 'valu', [], [t]), raw(f"v_mbcnt_hi_u32_b32 {t}, -1, {t}", 'valu', [t], [t]),
          valu('v_and_b32', t2, 15, t), valu('v_lshrrev_b32', t, 4, t), valu('v_lshlrev_b32', t2, 8, t2), valu('v_lshl_add_u32', vk, t, 4, t2),
          valu('v_subrev_u32', vv[0], sW4K, vVd[0]), valu('v_subrev_u32', vv[1], sW4K, vVd[1])]
    for q in range(4): o += [valu('v_mov_b32', m[q], f2u(-3.0e38)), valu('v_mov_b32', l[q], 0)]
    for i in range(128): o.append(valu('v_mov_b32', V(128 + i), 0))
    o += [s_mov(sF, sFH), s_mov(sFC, 32), label('L_fb_loop'), salu('s_add_u32', sF2, sF, 4096)]
    for kt in range(2):
        o += [buf_load('buffer_load_dwordx4', FK(kt, s), vk, srdK, [sF, sF2][kt], 64 * s) for s in range(4)]
        o += [salu('s_add_u32', M0, sPM0, 4096 * kt), s_nop(0)] + [buf_dma(vv[n % 2], srdV, [sF, sF2][kt], 1024 * n, 'privF') for n in range(4)]
    o += [wait(vm=0)]
    for dt in range(8):
        o += [valu('v_and_b32', ad, 0x1fff, vVr[dt]), valu('v_add_u32', ad, sPM0, ad), s_nop(0)]
        o += [ds_read('ds_read_b64_tr_b16', Vf(dt).sub(2 * h, 2), ad, h * 4096, 'privF') for h in range(2)]
    o += [wait(lg=0)]
    for q in range(4):
        for kt in range(2):
            d = s8.sub(4 * kt, 4)
            o += [mfma(d, FK(kt, s), Qreg(q, s), d if s else 0, SH) for s in range(4)]
        o += [s_nop(9), valu('v_max3_f32', t, s8[0], s8[1], s8[2]), valu('v_max3_f32', t, t, s8[3], s8[4]), valu('v_max3_f32', t, t, s8[5], s8[6]),
              valu('v_max3_f32', t, t, s8[7], m[q])] + xmax('v_max_f32', t)
        o += [valu('v_sub_f32', f, m[q], t), valu('v_exp_f32', f, f), valu('v_mov_b32', m[q], t)]
        for i in range(8): o += [valu('v_sub_f32', s8[i], s8[i], t), valu('v_exp_f32', s8[i], s8[i])]
        o += [valu('v_mul_f32', l[q], l[q], f)]
        o += [valu('v_cvt_pk_bf16_f32', s8[i], s8[2 * i], s8[2 * i + 1]) for i in range(4)]
        for i in range(4):
            o += [valu('v_lshlrev_b32', t, 16, s8[i]), valu('v_and_b32', t2, 0xffff0000, s8[i]), valu('v_add_f32', l[q], l[q], t), valu('v_add_f32', l[q], l[q], t2)]
        o += [valu('v_mul_f32', V(128 + 32 * q + i), V(128 + 32 * q + i), f) for i in range(32)]
        o += [s_nop(1)] + [mfma(Oacc(dt, q), Vf(dt), s8.sub(0, 4), Oacc(dt, q), SH) for dt in range(8)] + [s_nop(7)]
    o += [salu('s_add_u32', sF, sF, 8192), salu('s_sub_u32', sFC, sFC, 1), s_cmp('s_cmp_lg_u32', sFC, 0), s_branch('s_cbranch_scc1', 'L_fb_loop')]
    for q in range(4): o += xmax('v_add_f32', l[q])
    o += [s_nop(9), raw(f"s_setpc_b64 {sRET}", 'branch', [sRET])]
    return o

def k1_setup():
    u = [V(64 + i) for i in range(12)]
    l, g, q, t0, t1, t2, t3, r, c = u[:9]
    o = [s_cmp('s_cmp_ge_u32', S(2), 256), s_branch('s_cbranch_scc1', 'L_k1_end')]
    o += [s_load('s_load_dwordx8', S(4, 8), S(0, 2), 0), s_load('s_load_dwordx2', pWO, S(0, 2), 32),
          s_load('s_load_dwordx8', S(32, 8), S(0, 2), 40), s_load('s_load_dwordx2', S(40, 2), S(0, 2), 72),
          s_load('s_load_dwordx2', pWS, S(0, 2), 96)]
    o += [salu('s_bfe_u32', sP, S(2), 0x10002), salu('s_and_b32', sT0, S(2), 1), salu('s_lshl_b32', sT0, sT0, 2), salu('s_bfe_u32', sT1, S(2), 0x20003),
          salu('s_add_u32', sB, sT0, sT1), salu('s_lshl_b32', sT1, sT1, 1),
          salu('s_lshr_b32', sT2, S(2), 5), salu('s_add_u32', sR0, sT1, sT2), s_cmp('s_cmp_ge_u32', sR0, 9),
          csel(sT1, 9, 0), salu('s_sub_u32', sR0, sR0, sT1),
          salu('s_and_b32', sT0, S(2), 2), salu('s_lshl_b32', sT0, sT0, 2), salu('s_add_u32', sH, sT0, sT2), salu('s_lshl_b32', sH, sH, 1)]
    if not OPT['rot']: o.append(s_mov(sR0, 0))
    o += [salu('s_lshl_b32', sXC, sR0, 7), salu('s_lshl_b32', sWC[1], sR0, 19), salu('s_add_u32', sWC[0], sWC[1], 262144)]
    o += [valu('v_lshrrev_b32', t0, 6, vT), valu('v_and_b32', l, 63, vT), readfirstlane(sW, t0),
          valu('v_lshrrev_b32', g, 4, l), valu('v_and_b32', q, 15, l), valu('v_lshrrev_b32', t1, 3, l), salu('s_lshl_b32', sW4K, sW, 12)]
    o += [smul(sT0, sW, 64 * 1152), valu('v_mul_u32_u24', t0, 1152, t1), valu('v_and_b32', t2, 7, l), valu('v_xor_b32', t2, t2, g),
          valu('v_add_u32', t0, sT0, t0), valu('v_lshl_add_u32', vXg[0], t2, 4, t0), valu('v_xor_b32', t2, 4, t2), valu('v_lshl_add_u32', t3, t2, 4, t0)]
    for n in range(1, 8): o.append(valu('v_add_u32', vXg[n], n * 9216 - 1024 * (n % 4), t3 if n % 2 else vXg[0]))
    o += [valu('v_lshrrev_b32', t1, 5, l), valu('v_and_b32', t2, 31, l), valu('v_xor_b32', t2, t2, t1), salu('s_and_b32', sT0, sW, 1),
          salu('s_lshl_b32', sT0, sT0, 3), valu('v_xor_b32', t2, sT0, t2), salu('s_lshl_b32', sT1, sW, 16), valu('v_lshlrev_b32', t1, 13, t1),
          valu('v_add_u32', t0, sT1, t1), valu('v_lshl_add_u32', vWd[0][0], t2, 4, t0), valu('v_xor_b32', t2, 4, t2), valu('v_lshl_add_u32', t3, t2, 4, t0)]
    for n in range(1, 4): o.append(valu('v_add_u32', vWd[0][n], n * (16384 - 1024), t3 if n % 2 else vWd[0][0]))
    for n in range(4): o.append(valu('v_mov_b32', vWd[1][n], vWd[0][n]))
    o += [salu('s_add_u32', sXM[0], sW4K, XBASE[0][0]), salu('s_add_u32', sXM[1], sW4K, XBASE[0][1]), salu('s_add_u32', sWM, sW4K, 131072)]
    o += [wait(lg=0)] + probe(0) + [s_cmp('s_cmp_eq_u32', sP, 0)]
    for d, s1 in ((pX, S(32, 2)), (pWQ, S(38, 2)), (pK, S(34, 2)), (pV, S(36, 2)), (pWO, S(40, 2))):
        o.append(I('s_cselect_b64', f"s_cselect_b64 {d}, {d}, {s1}", 'salu', [d, s1, SCC], [d]))
    o += [smul(sT0, sB, 276480)] + set_srd(srdX[0], pX, sT0, 276480) + set_srd(srdX[1], pX, sT0, 276480)
    o += [salu('s_lshl_b32', sT0, sH, 8), salu('s_sub_u32', sT1, 576 * 8192, sT0)] + set_srd(srdW[0], pWQ, sT0, sT1) + set_srd(srdW[1], pWQ, sT0, sT1)
    def nop1(x): x = flat(x); x.insert(1, s_nop(0)); return x
    def xload(c):
        return nop1(dma_X(0, Xn(c, 0))) + nop1(dma_X(1, Xn(c, 1))) + advance(sXC, 128) + \
               [salu('s_xor_b32', sXM[0], sXM[0], 0xC000), salu('s_xor_b32', sXM[1], sXM[1], 0x18000)]
    o += xload(0) + nop1(dma_W(1, 'E1', salu('s_add_u32', M0, sWM, 16384))) + advance(sWC[1], 524288)
    if OPT['e0']: o += nop1(dma_W(0, 'E0', s_mov(M0, sWM))) + advance(sWC[0], 524288, 262144)
    o += probe(1)
    late = [] if OPT['e0'] else nop1(dma_W(0, 'E0', s_mov(M0, sWM))) + advance(sWC[0], 524288, 262144)
    late += xload(1) + nop1(dma_W(1, 'V3', salu('s_add_u32', M0, sW4K, 114688))) + advance(sWC[1], 524288)
    z = V(60, 4)
    o += [valu('v_mov_b32', z[i], 0) for i in range(4)] + [s_nop(1)]
    zero = [mfma(r, z, z, 0) for i in range(8) for r in (V(128 + 16 * i, 16), A(16 * i, 16))]
    mark = len(o)
    o += [salu('s_lshl_b32', sT0, sB, 5), salu('s_add_u32', sT0, sT0, sH), salu('s_lshl_b32', sT0, sT0, 18)]
    o += set_srd(srdK, pK, sT0, 524288) + set_srd(srdV, pV, sT0, 524288)
    o += [smul(sT0, sP, O_BYTES)] + set_srd(srdO, pWS, sT0, O_BYTES)
    o += set_srd(srdP, pWO, 0, PACK_BYTES)
    o += [smul(sT0, sP, PACK_BYTES), salu('s_add_u32', sT0, sT0, PACK_OFF)] + set_srd(srdQ, pWS, sT0, PACK_BYTES)
    if OPT['stamp']:
        o += set_srd(S(72, 4), pWS, 200 * 1024 * 1024, 1024 * 1024)
        o += [salu('s_lshl_b32', S(76), S(2), 2), salu('s_add_u32', S(76), S(76), sW), salu('s_lshl_b32', S(76), S(76), 8)]
    if OPT['xr'] == 0: o += [s_mov(sXR, 0)]
    if OPT['xr'] == 1: o += [salu('s_bfe_u32', sXR, S(2), 0x40003), salu('s_lshl_b32', sXR, sXR, 14)]
    if OPT['xr'] == 2: o += [salu('s_and_b32', sXR, S(2), 15), salu('s_lshl_b32', sXR, sXR, 14)]
    if OPT['xr'] == 3: o += [salu('s_lshr_b32', sXR, S(2), 4), salu('s_xor_b32', sXR, sXR, S(2)), salu('s_and_b32', sXR, sXR, 15), salu('s_lshl_b32', sXR, sXR, 14)]
    o += [s_mov(sKOFF, 32768), s_mov(sVOFF, 16384 * (OPT['la'] - 1)), s_mov(sITEM, 0), s_mov(sFH, 0), s_mov(sCNT, 0), s_mov(sTG, 32768), s_mov(sEND, (15 + OPT['la']) * 16384),
          salu('s_add_u32', sKM, sW4K, 32768 if OPT['la'] == 4 else 49152), salu('s_lshl_b32', sOA[0], sH, 13), salu('s_add_u32', sOA[1], sOA[0], 4096)]
    c_scale = math.log2(math.e) / math.sqrt(128.0)
    o += [s_mov(sHI, f2u(2.0 ** 40)), s_mov(sLO, f2u(2.0 ** -40)), s_mov(sSCALE[0], f2u(c_scale)), s_mov(sSCALE[1], f2u(c_scale))]
    o += [s_cmp('s_cmp_eq_u32', sW, 3), csel(sT0, f2u(-1.0e30), 0), csel(sPAD, f2u(1.0), 0)] + [valu('v_mov_b32', vCI[i], sT0) for i in range(4)]
    o += [valu('v_lshlrev_b32', t0, 8, g), valu('v_add_u32', t0, sW4K, t0)]
    for n in range(4): o += [valu('v_add_u32', t3, 4 * n, g), valu('v_xor_b32', t3, t3, q), valu('v_lshl_add_u32', vKd[n], t3, 4, t0)]
    o += [valu('v_lshlrev_b32', t3, 1, g), valu('v_xor_b32', t3, t3, q), valu('v_lshl_add_u32', vVd[0], t3, 4, t0), valu('v_xor_b32', vVd[1], 128, vVd[0])]
    o += [valu('v_lshrrev_b32', t2, 1, q), valu('v_xor_b32', t2, t2, g), valu('v_lshlrev_b32', t1, 7, q), valu('v_add_u32', t1, sW4K, t1),
          valu('v_lshl_add_u32', t1, t2, 4, t1), valu('v_xor_b32', t3, 64, t1)]
    for part in range(2): o += [valu('v_add_u32', vXr[part][0], XBASE[0][part], t1), valu('v_add_u32', vXr[part][1], XBASE[0][part], t3)]
    o += [valu('v_xor_b32', t2, g, q), valu('v_lshlrev_b32', t1, 8, q), valu('v_lshl_add_u32', vKr[0], t2, 4, t1)]
    for s in range(1, 4): o.append(valu('v_xor_b32', vKr[s], 64 * s, vKr[0]))
    o += [valu('v_lshrrev_b32', r, 2, q), valu('v_and_b32', c, 3, l), valu('v_lshl_add_u32', t0, g, 2, r), valu('v_and_b32', t2, 7, t0),
          valu('v_lshlrev_b32', t1, 8, t0), valu('v_lshl_add_u32', t1, t2, 5, t1), valu('v_lshl_add_u32', t1, c, 3, t1), valu('v_add_u32', vVr[0], 65536, t1)]
    for dt in range(1, 8): o.append(valu('v_xor_b32', vVr[dt], 32 * dt, vVr[0]))
    o += [valu('v_lshl_add_u32', t0, g, 3, r), valu('v_lshlrev_b32', t0, 9, t0), valu('v_and_b32', t1, 1, c), valu('v_lshl_add_u32', t0, t1, 3, t0),
          valu('v_and_b32', t1, 2, c), valu('v_and_b32', t2, 1, r), valu('v_or_b32', t1, t1, t2), valu('v_and_b32', t2, 2, r), valu('v_lshl_or_b32', t1, t2, 1, t1),
          valu('v_and_b32', t2, 1, g), valu('v_lshl_or_b32', t1, t2, 3, t1), valu('v_lshl_add_u32', t0, t1, 4, t0), valu('v_add_u32', vWr[0], 131072, t0)]
    for i in range(1, 8): o.append(valu('v_xor_b32', vWr[i], (4 * (i // 2) + i % 2) * 16, vWr[0]))
    o += [valu('v_lshrrev_b32', t0, 5, l), valu('v_bfe_u32', t1, l, 1, 1), v_cmp('v_cmp_eq_u32', t0, t1), valu('v_mov_b32', t2, 0x3f803f80), valu('v_and_b32', t3, 1, l),
          valu('v_cndmask_b32', t2, 0, t2, VCC), valu('v_mul_u32_u24', t3, 0xaaaa, t3), valu('v_add_u32', vIDX, 0x4444, t3)]
    o += [valu('v_accvgpr_write_b32', aONE[i], t2) for i in range(4)]
    o += [salu('s_lshl_b32', sPM0, sW, 13), salu('s_add_u32', sPM0, sPM0, 131072), valu('v_lshl_add_u32', t0, t0, 2, r), valu('v_mul_u32_u24', t0, 192, t0),
          valu('v_and_b32', t1, 1, g), valu('v_lshl_add_u32', t1, t1, 2, c), valu('v_mul_u32_u24', t1, 24, t1), valu('v_add3_u32', t0, t0, t1, sPM0),
          valu('v_lshlrev_b32', vT, 4, l), valu('v_accvgpr_write_b32', aPr, t0), valu('v_subrev_u32', t0, sPM0, t0), valu('v_add_u32', t0, sW4K, t0),
          valu('v_accvgpr_write_b32', aPq, t0)]
    for k in range(3):
        o += [valu('v_add_u32', t0, 64 * k, l), valu('v_mul_u32_u24', t1, 171, t0), valu('v_lshrrev_b32', t1, 11, t1),
              valu('v_mul_u32_u24', t2, 12, t1), valu('v_sub_u32', t2, t0, t2), valu('v_and_b32', t3, 8, t1), valu('v_add_u32', t1, t1, t3),
              valu('v_mul_u32_u24', t1, 1152, t1), valu('v_lshl_add_u32', t1, t2, 4, t1), valu('v_subrev_u32', t1, 1024 * k, t1),
              valu('v_accvgpr_write_b32', aPd[k], t1)]
    o += [salu('s_lshl_b32', sT0, sW, 6), valu('v_add_u32', t0, sT0, q), smul(sT1, sB, 240)]
    for qt in range(4):
        o += [valu('v_add_u32', t1, 16 * qt, t0),
              valu('v_add_u32', t2, sT1, t1), valu('v_lshrrev_b32', t3, 5, t2), valu('v_lshlrev_b32', t3, 18, t3),
              valu('v_and_b32', t2, 31, t2), valu('v_lshl_add_u32', t3, t2, 4, t3), valu('v_lshl_add_u32', t3, g, 9, t3),
              v_cmp('v_cmp_gt_u32', 240, t1), valu('v_mov_b32', t2, HUGE), s_nop(0),
              valu('v_cndmask_b32', vO[qt], t2, t3, VCC)]
    o += [salu('s_and_b32', sT0, S(2), 3), salu('s_lshl_b32', sT0, sT0, 5), salu('s_lshr_b32', sT1, S(2), 3), salu('s_add_u32', sT0, sT0, sT1),
          salu('s_lshr_b32', sT2, sW, 1), salu('s_and_b32', sT1, sW, 1), smul(sPU[0], sT0, 32 * 1152), smul(sPU[1], sT2, 8 * 1152), smul(sPU[2], sT1, 576),
          salu('s_add_u32', sPU[0], sPU[0], sPU[1]), salu('s_add_u32', sPU[0], sPU[0], sPU[2]),
          salu('s_add_u32', sPU[1], sPU[0], 192), salu('s_add_u32', sPU[2], sPU[0], 384),
          salu('s_lshl1_add_u32', sT2, sT0, sT2), smul(sT2, sT2, 3072), smul(sPV[0], sT1, 3 * 786432), salu('s_add_u32', sPV[0], sPV[0], sT2),
          salu('s_add_u32', sPV[1], sPV[0], 786432), salu('s_add_u32', sPV[2], sPV[0], 2 * 786432)]
    rest, o = o[mark:], o[:mark]
    for i, x in enumerate(rest):
        if i % 12 == 0 and zero and x.kind != 'nop' and (not o or o[-1].kind != 'nop'): o.append(zero.pop(0))
        o.append(x)
    assert not zero
    return o + probe(2) + late + probe(3)

def kernel1():
    qs, qtr, lim = q_loop()
    head = k1_setup() + [s_mov(sLIM, lim)] + stamp(0)
    if OPT['stamp']:
        head[2:2] = [raw("s_memrealtime s[78:79]"), raw("s_waitcnt lgkmcnt(0)"), valu('v_mov_b32', V(31), S(78))]
        head += [valu('v_mov_b32', V(29), 60), raw("s_nop 0"), raw("buffer_store_dword v31, v29, s[72:75], s76 offen", 'vstore'), raw("s_nop 1")]
    head += [wait(vm=[Xn(0, 0), Xn(0, 1)])] + probe(4) + [rd_X(0, 0, qt) for qt in range(4)]
    head += [valu('v_xor_b32', vXr[0][0], 0xC000, vXr[0][0]), valu('v_xor_b32', vXr[1][0], 0x18000, vXr[1][0])]
    head += [wait(vm=['E1']), s_barrier()] + flat([rd_W(p, 0, 0, p) for p in range(4)]) + [wait(lg=[Wf(0), Wf(1)])] + probe(5) + probes_out(8)
    tail = [label('L_qtail')] + (istamp(32, sCNT, 0) + q_half(7, 0, True) + q_half(7, 1, True) if OPT['pl'] else []) + stamp(1) + q_tail() + stamp(2)
    bodies = []
    for hd in range(2):
        for t in range(15 - hd * OPT['npl']):
            j = 32 * hd + 2 * t + 1
            bodies.append([label('L_att')] + istamp(48, sKOFF, 14) + period(j) + period(j + 1) + [s_cmp('s_cmp_lg_u32', sKOFF, sEND), s_branch('s_cbranch_scc1', 'L_att')])
            if len(bodies) > 1: del REP[-2:]
    rolled('att', bodies)
    after = [s_cmp('s_cmp_lg_u32', sITEM, 0), s_branch('s_cbranch_scc1', 'L_last')]
    mid = boundary()
    mid = mid[:1] + stamp(3) + mid[1:] + stamp(18) + [s_branch('s_branch', 'L_att')]
    last = final()
    last = last[:1] + stamp(19) + last[1:] + [label('L_k1_end'), raw('s_endpgm')]
    al = [raw(f".p2align {OPT['al']}", 'label')] if OPT['al'] else []
    static = head + al + qs + tail + al + bodies[0] + after + mid + last
    trace = head + qtr + tail + flat(bodies[:15]) + after + mid + flat(bodies[15:]) + after + last
    tramps = []
    for i in sites:
        tramps += [label(f"L_tramp{i}"), raw(f"s_call_b64 {sRET}, L_fb", 'branch', [], [sRET]), s_branch('s_branch', f"L_ret{i}")]
    return static, trace, tramps + fallback()

def descriptor(name, vgpr, accum, sgpr=96):
    return f""".amdhsa_kernel {name}
  .amdhsa_next_free_vgpr {vgpr}
  .amdhsa_next_free_sgpr {sgpr}
  .amdhsa_accum_offset {accum}
  .amdhsa_group_segment_fixed_size 0
  .amdhsa_kernarg_size 104
  .amdhsa_user_sgpr_count 2
  .amdhsa_user_sgpr_kernarg_segment_ptr 1
  .amdhsa_system_sgpr_workgroup_id_x 1
.end_amdhsa_kernel
"""

def finish(static, trace, rare, name):
    tr = expand(trace)
    resolve_waits(tr)
    errs = check(tr, name)
    if rare:
        resolve_waits(rare)
        errs += check(rare, name + "_rare")
    seen = set()
    for e in errs:
        k = e.split('] ', 1)[1]
        if k not in seen and len(seen) < 40: print("CHECK:", e, file=sys.stderr)
        seen.add(k)
    if errs: print(f"{len(errs)} check errors in {name}", file=sys.stderr)
    return render(static) + "\n" + (render(rare) if rare else "")

def main():
    ref = open(os.path.join(os.path.dirname(os.path.abspath(__file__)), '..', 'cdna_kernels', NAME + '.s.ref')).read().splitlines()
    hdr = [l for l in ref if l.startswith(';') and '@launch' not in l and 'Override launch' not in l and 'grid=ceil' not in l]
    st, tr, rare = kernel1()
    if OPT['rep']:
        for r in REP: print(len(r), sum(max(0, x - 8) for x in r), r, file=sys.stderr)
    out = hdr[:]
    out.append("; OLAY=16")
    if OPT['k1']: out.append("; @launch kernel=attn_kernel grid=(256,1,1) block=(256,1,1) lds=163840")
    import gen4
    if OPT['k2']: out.append(f"; @launch kernel=oproj_kernel grid=(240,1,1) block=(256,1,1) lds={gen4.LDS}")
    out += ['.amdgcn_target "amdgcn-amd-amdhsa--gfx950"', '.text', '.globl attn_kernel', '.p2align 8', '.type attn_kernel,@function', 'attn_kernel:']
    out.append(finish(st, tr, rare, 'k1'))
    if OPT['k2']:
        k2 = gen4.kernel2(OPT)
        out += ['.globl oproj_kernel', '.p2align 8', '.type oproj_kernel,@function', 'oproj_kernel:']
        out.append(finish(k2, k2, None, 'k2'))
    out += ['.section .rodata,"a"', '.p2align 6', descriptor('attn_kernel', 512, 256, 102)]
    if OPT['k2']:
        out += ['.p2align 6', descriptor('oproj_kernel', 512, 256)]
    open(sys.argv[1], 'w').write("\n".join(out))

if __name__ == '__main__':
    main()
```

```python
from asmlib import *
O_BYTES = 60 * 262144
PACK_OFF = 32 * 1024 * 1024
PACK_BYTES = 4096 * 1152
LDS = 147456

def set_srd(srd, base, off_lo, nbytes):
    return [salu('s_add_u32', srd[0], base[0], off_lo), salu('s_addc_u32', srd[1], base[1], 0),
            s_mov(srd[2], nbytes), s_mov(srd[3], 0x20000)]
def smul(d, a, b): return salu('s_mul_i32', d, a, b, scc=False)

def kernel2(OPT):
    D = OPT['d16']; R = 4
    sOUT, sWS = S(8, 2), S(10, 2)
    srdO, srdW, srdOut = S(16, 4), S(20, 4), S(24, 4)
    sW, sP, sMT, sNG, sT0, sT1, sT2 = S(28), S(29), S(30), S(31), S(32), S(33), S(34)
    sOO, sWO, sLOOP, sLIN, sROT = S(35), S(36), S(37), S(38), S(39)
    WN = OPT['rot2']
    sR1, sR2, sMH, sNH = S(40), S(41), S(42), S(43)
    vTID = V(0)
    vOa = [V(1 + i) for i in range(6)]; vWb = V(7); vEw = [V(8), V(9), V(16)]; vEr = V(10); vOut = V(11); vL = V(17); vWa = V(18)
    l, g, t0, t1 = V(12), V(13), V(14), V(15)
    def acc(nt, m): return A((nt * 6 + m) * 4, 4)
    def Of(slot, m): return V(32 + (slot * 12 + m) * 4, 4)
    def Wf(slot, nt): return V(32 + (slot * 12 + 6 + nt) * 4, 4)
    o = [s_cmp('s_cmp_ge_u32', S(2), OPT.get('k2n', 240)), s_branch('s_cbranch_scc1', 'L_k2_end')]
    o += [s_load('s_load_dwordx2', sWS, S(0, 2), 96), s_load('s_load_dwordx2', sOUT, S(0, 2), 80)]
    o += [salu('s_bfe_u32', sP, S(2), 0x10002), salu('s_lshr_b32', sT0, S(2), 3), smul(sT1, sT0, 43),
          salu('s_lshr_b32', sT1, sT1, 8), smul(sT2, sT1, 6), salu('s_sub_u32', sNG, sT0, sT2), salu('s_add_u32', sROT, sT1, sNG),
          salu('s_and_b32', sT0, S(2), 3), smul(sT0, sT0, 5), salu('s_add_u32', sMT, sT0, sT1)]
    o += [valu('v_lshrrev_b32', t0, 6, vTID), valu('v_and_b32', l, 63, vTID), readfirstlane(sW, t0), valu('v_lshlrev_b32', vL, 4, l)]
    o += [s_nop(2), salu('s_lshr_b32', sMH, sW, 1), salu('s_and_b32', sNH, sW, 1), smul(sT0, sMH, 3 * 131072), smul(sT1, sNH, 3072),
          valu('v_add_u32', vOa[3], sT0, vL), salu('s_sub_u32', sT0, 3 * 131072, sT0), valu('v_add_u32', vWb, sT1, vL), salu('s_sub_u32', sT1, 3072, sT1),
          valu('v_add_u32', vOa[0], sT0, vL), valu('v_add_u32', vWa, sT1, vL)]
    o += [valu('v_add_u32', vOa[i], 131072 * (i % 3), vOa[i - i % 3]) for i in (1, 2, 4, 5)]
    o += [smul(sT0, sP, O_BYTES), smul(sT1, sMT, 6 * 131072), salu('s_add_u32', sT0, sT0, sT1),
          salu('s_lshl_b32', sT1, sW, 15), salu('s_add_u32', sT0, sT0, sT1),
          smul(sT1, sP, PACK_BYTES), smul(sT2, sNG, 786432), salu('s_add_u32', sT1, sT1, sT2), smul(sT2, sW, 196608),
          salu('s_add_u32', sT1, sT1, sT2), salu('s_add_u32', sT1, sT1, PACK_OFF)]
    if WN: o += [smul(sROT, sROT, OPT['rmul']), salu('s_and_b32', sT2, sROT, WN - 1), salu('s_lshl_b32', sOO, sT2, 10), smul(sWO, sT2, 6144), s_mov(sLIN, 0)]
    else: o += [s_mov(sOO, 0), s_mov(sWO, 0)]
    o += [wait(lg=0)]
    o += set_srd(srdO, sWS, sT0, 5 * 131072 + 32768) + set_srd(srdW, sWS, sT1, 196608)
    def stamp(idx):
        if not OPT['stamp']: return []
        return [raw("s_memtime s[70:71]"), raw("s_memrealtime s[78:79]"), raw("s_waitcnt lgkmcnt(0)"),
                valu('v_mov_b32', V(20), S(70)), valu('v_mov_b32', V(21), idx * 4), raw("s_nop 0"),
                raw("buffer_store_dword v20, v21, s[72:75], s76 offen", 'vstore'), raw("s_nop 1"), valu('v_mov_b32', V(20), S(78)), raw("s_nop 0"),
                raw("buffer_store_dword v20, v21, s[72:75], s76 offen offset:32", 'vstore'), raw("s_nop 1"),
                raw("s_getreg_b32 s70, hwreg(HW_REG_XCC_ID)"), valu('v_mov_b32', V(20), S(70)), raw("s_nop 0"),
                raw("buffer_store_dword v20, v21, s[72:75], s76 offen offset:64", 'vstore'), raw("s_nop 1")]
    if OPT['stamp']:
        o += set_srd(S(72, 4), sWS, 201 * 1024 * 1024, 1024 * 1024)
        o += [salu('s_lshl_b32', S(76), S(2), 2), salu('s_add_u32', S(76), S(76), sW), salu('s_lshl_b32', S(76), S(76), 8)]
    o += stamp(0)

    def loads(k):
        sl = k % R
        W = [[buf_load('buffer_load_dwordx4', Wf(sl, i), vWa if i < 3 else vWb, srdW, sWO, 1024 * (i % 3), OPT['wof'])] for i in range(6)]
        O = [[buf_load('buffer_load_dwordx4', Of(sl, i), vOa[i], srdO, sOO, 0, OPT['of'])] for i in range(6)]
        r = W[:1] + O + W[1:]
        if WN:
            r[-3] = r[-3] + [salu('s_add_u32', sROT, sROT, 1), salu('s_add_u32', sLIN, sLIN, 1), salu('s_and_b32', sT0, sROT, WN - 1)]
            r[-2] = r[-2] + [salu('s_and_b32', sT1, sLIN, 0 if OPT.get('wrapk') else 256 - WN), salu('s_or_b32', sT0, sT0, sT1)]
            r[-1] = r[-1] + [salu('s_lshl_b32', sOO, sT0, 10), smul(sWO, sT0, 6144)]
        else: r[-1] = r[-1] + [salu('s_add_u32', sWO, sWO, 6144), salu('s_add_u32', sOO, sOO, 1024)]
        return r
    def step(k, first=False, ld=True):
        sl = k % R
        out = []
        L = loads(k + D) if ld else []
        i = 0
        for nt in range(6):
            for mm in range(6):
                m = mm if nt % 2 == 0 or not OPT['snake'] else 5 - mm
                if nt == 0: out.append(wait(vm=[Of(sl, m), Wf(sl, 0)]))
                elif mm == 0: out.append(wait(vm=[Wf(sl, nt)]))
                out.append(mfma(acc(nt, m), Wf(sl, nt), Of(sl, m), 0 if first else acc(nt, m), '16x16x32'))
                if i % 3 == 1 and L: out += L[i // 3]
                i += 1
        return out
    for k in range(D):
        for gg in loads(k): o += gg
    o += set_srd(srdOut, sOUT, 0, 1920 * 2304)
    o += [valu('v_lshrrev_b32', g, 4, l), smul(sT0, sW, 27648), valu('v_add_u32', vEr, sT0, vL)]
    for x in range(1, 4): o += [salu('s_xor_b32', sT0, sW, x), smul(sT0, sT0, 27648), salu('s_add_u32', sT0, sT0, (x - 1) * 9216), valu('v_add_u32', vEw[x - 1], sT0, vL)]
    o += [smul(sR1, sMT, 96 * 2304), smul(sR2, sP, 1152), salu('s_add_u32', sR1, sR1, sR2),
          smul(sR2, sNG, 192), salu('s_add_u32', sR1, sR1, sR2), smul(sR2, sMH, 48 * 2304),
          salu('s_add_u32', sR1, sR1, sR2), smul(sR2, sNH, 96), salu('s_add_u32', sR1, sR1, sR2),
          valu('v_and_b32', t0, 15, l), valu('v_mul_u32_u24', t0, 2304, t0),
          valu('v_mul_u32_u24', t1, 24, g), valu('v_add3_u32', vOut, t0, t1, sR1), s_mov(sR1, 16 * 2304), s_mov(sR2, 32 * 2304)]
    for k in range(4): o += step(k, first=(k == 0))
    body = [label('L_k2_loop')]
    for k in range(4): body += step(k)
    body += [salu('s_sub_u32', sLOOP, sLOOP, 1), s_cmp('s_cmp_lg_u32', sLOOP, 0), s_branch('s_cbranch_scc1', 'L_k2_loop')]
    o += [s_mov(sLOOP, 6), Loop(body, 6)]
    for k in range(28, 31): o += step(k, ld=(k + D < 32))
    sl = 31 % R
    seq = [(nt, m) for nt in range(3) for m in range(6)] + [(nt, m) for nt in range(3, 6) for m in range(3)] + [(nt, m) for nt in range(3, 6) for m in range(3, 6)]
    def send(nt, m): return ds_write('ds_write_b128', vEw[2 - 2 * (m // 3) - nt // 3], acc(nt, m), ((m % 3) * 3 + nt % 3) * 1024, 'X')
    LAG = OPT['lag']
    for i, (nt, m) in enumerate(seq):
        if nt == 0 or m == 0: o.append(wait(vm=[Of(sl, m), Wf(sl, nt)]))
        o += [mfma(acc(nt, m), Wf(sl, nt), Of(sl, m), acc(nt, m), '16x16x32')]
        if LAG <= i < 27 + LAG: o.append(send(*seq[i - LAG]))
    o += [send(*seq[i]) for i in range(36 - LAG, 27)]
    o += stamp(1) + [s_nop(7)]
    def part(s, T): return V(32 + (s * 9 + T) * 4, 4)
    for T in range(9): o += [valu('v_accvgpr_read_b32', part(3, T)[i], acc(3 + T % 3, 3 + T // 3)[i]) for i in range(4)]
    o += [wait(lg=0), s_barrier()]
    for T in range(9):
        for s in range(3): o.append(ds_read('ds_read_b128', part(s, T), vEr, s * 9216 + T * 1024, 'X'))
    for m in range(3):
        pk = V(192 + m * 8, 6)
        for nt in range(3):
            T = m * 3 + nt
            o.append(wait(lg=[part(s, T) for s in range(3)]))
            for i in range(4):
                o += [valu('v_add_f32', part(0, T)[i], part(0, T)[i], part(1, T)[i]), valu('v_add_f32', part(2, T)[i], part(2, T)[i], part(3, T)[i])]
            for i in range(4): o.append(valu('v_add_f32', part(0, T)[i], part(0, T)[i], part(2, T)[i]))
            for i in range(2): o.append(valu('v_cvt_pk_bf16_f32', pk[2 * nt + i], part(0, T)[2 * i], part(0, T)[2 * i + 1]))
        so = [0, sR1, sR2][m]
        o += [buf_store('buffer_store_dwordx4', pk.sub(0, 4), vOut, srdOut, so, 0, OPT['uf']), buf_store('buffer_store_dwordx2', pk.sub(4, 2), vOut, srdOut, so, 16, OPT['uf'])]
    o += stamp(2)
    o += [label('L_k2_end'), raw('s_endpgm')]
    return o
```

```python
import sys, os, math, struct
from asmlib import *
import asmlib

NAME = "concat_heads__mha_block_cached__gqa_block_cached__near_ridge"
OPT = dict(stamp=0, k2=1, k1=1, ost=' sc1', pst=' sc1', xf='', wf='', pf=' nt', kvf=' nt', rot=0, rep=0,
           depth=5, rot2=0, s16=1, lag=8, rmul=1, d16=2, snake=0, uf='', of='', wof='', kv0=5, pk0=0, cinit=1, al=6, dc=8, forcefb=0, nodma=0, dg=1, nost=0,
           xr=3, pl=1, e0=1, npl=2, st0=14, st1=-8, prd=80, nopk=0, la=4, g2=17, g3=29, gv=0)
STR = ('uf', 'ost', 'pst', 'xf', 'wf', 'pf', 'kvf', 'of', 'wof')
for a in sys.argv[2:]:
    k, v = a.split('=')
    OPT[k] = ((' ' + v.replace('+', ' ')) if v != '-' else '') if k in STR else int(v)
asmlib.COST['dma'] = OPT['dc']

def f2u(x): return struct.unpack('<I', struct.pack('<f', x))[0]
O_BYTES = 60 * 262144
OU = 1024 if OPT['s16'] else 2048
PACK_OFF = 32 * 1024 * 1024
PACK_BYTES = 4096 * 1152
HUGE = 0x7f000000
SH = '16x16x32'

pX, pK, pV, pWQ, pWO, pWS = S(4, 2), S(6, 2), S(8, 2), S(10, 2), S(12, 2), S(14, 2)
srdP, srdQ = S(16, 4), S(20, 4)
sPU, sPV = [S(24), S(25), S(26)], [S(27), S(28), S(29)]
sLIM, sXR, sXK, sXV = S(30), S(31), S(12), S(13)
srdK, srdV, srdO = S(32, 4), S(36, 4), S(40, 4)
srdX, srdW = [S(44, 4), S(48, 4)], [S(52, 4), S(56, 4)]
sSCALE = S(60, 2)
sRET = S(62, 2)
sW, sB, sH, sP, sW4K, sT0, sT1, sT2 = S(64), S(65), S(66), S(67), S(68), S(3), S(69), S(80)
sSTAMP = S(70, 2)
sKOFF, sVOFF, sKM, sTG, sEND, sITEM = S(81), S(82), S(83), S(84), S(85), S(86)
sXC, sWC, sXM, sWM, sCNT = S(87), [S(88), S(89)], [S(90), S(91)], S(92), S(93)
sHI, sLO, sPM0, sPAD, sFH = S(94), S(95), S(96), S(97), S(98)
sOA = [S(99), S(100)]
sOB = [S(10), S(11)]
sMASK = S(4, 2)
sF, sF2, sFC = S(6), S(7), S(8)
sR0 = S(101)
vKr = [V(1 + i) for i in range(4)]
vVr = [V(5 + i) for i in range(8)]
vKd = [V(13 + i) for i in range(4)]
vVd = [V(17), V(18)]
vIDX = V(19)
vCI = V(20, 4)
vO = [V(24 + i) for i in range(4)]
vRC = V(28, 4)
vT = V(0)
def Sreg(qt, kt): return V(32 + qt * 8 + (4 * kt if qt % 2 else 4 - 4 * kt), 4)
def Preg(qt): return Sreg(qt, 0)
def Qreg(qt, s): return V(64 + qt * 16 + s * 4, 4)
def Oacc(dt, qt): return V(128 + qt * 32 + dt * 4, 4)
def QACC(h, s, tt, qt): return (V(128 + qt * 32 + s * 8 + tt * 4, 4) if h == 0 else A(qt * 32 + s * 8 + tt * 4, 4))
vXg = [V(32 + i) for i in range(8)]
vWd = [[V(40 + i) for i in range(4)], [V(44 + i) for i in range(4)]]
vXr = [[V(48), V(49)], [V(50), V(51)]]
vWr = [V(52 + i) for i in range(8)]
def Kf(kt, s): return A(128 + (kt * 4 + s) * 4, 4)
def Vf(dt): return A(160 + dt * 4, 4)
def Wf(p): return A(160 + (p % 8) * 4, 4)
def XF(ks, qt): return A(192 + (ks * 4 + qt) * 4, 4)
def PKf(s, nt): return A(192 + (s * 3 + nt) * 4, 4)
def Lacc(i): return A(224 + 4 * i, 4)
aONE = A(232, 4)
aPd, aPr, aPq = [A(236), A(237), A(238)], A(239), A(240)
GRAY = [0, 1, 3, 2]
def Kn(t): return f"K{GRAY[t % 4]}"
def Vn(t): return f"V{GRAY[t % 4]}"
WN = ['E1', 'E0', 'V3', 'V2']
def Xn(c, part): return f"privX{c % 2}{part}"
XBASE = [[32768, 49152], [16384, 81920]]

def stamp(idx, t0=V(28), t1=V(29)):
    if not OPT['stamp']: return []
    return [raw(f"s_memtime {sSTAMP}", 'salu', [], [sSTAMP]), raw("s_memrealtime s[78:79]"), raw("s_waitcnt lgkmcnt(0)", 'salu'),
            valu('v_mov_b32', t0, sSTAMP[0]), valu('v_mov_b32', t1, idx * 4), raw(f"s_nop 0", 'salu'),
            raw(f"buffer_store_dword {t0}, {t1}, s[72:75], s76 offen", 'vstore'),
            raw("s_nop 1"), valu('v_mov_b32', t0, S(78)), raw("s_nop 0"),
            raw(f"buffer_store_dword {t0}, {t1}, s[72:75], s76 offen offset:32", 'vstore'), raw("s_nop 1")]

def istamp(base, reg, shift):
    if OPT['stamp'] != 2: return []
    t0, t1 = V(30), V(31)
    return [raw(f"s_memtime {sSTAMP}", 'salu', [], [sSTAMP]), raw(f"s_lshr_b32 s77, {reg}, {shift}"), raw("s_and_b32 s77, s77, 15"), raw(f"s_add_u32 s77, s77, {base}"),
            raw("s_lshl_b32 s77, s77, 2"), raw("s_waitcnt lgkmcnt(0)", 'salu'),
            valu('v_mov_b32', t0, sSTAMP[0]), valu('v_mov_b32', t1, S(77)), raw(f"s_nop 0", 'salu'),
            raw(f"buffer_store_dword {t0}, {t1}, s[72:75], s76 offen", 'vstore'), raw("s_nop 1")]

def probe(k):
    if OPT['stamp'] != 3: return []
    return [raw("s_memrealtime s[78:79]"), raw("s_waitcnt lgkmcnt(0)"), valu('v_mov_b32', V(120 + k), S(78))]
def probes_out(n):
    if OPT['stamp'] != 3: return []
    o = []
    for k in range(n): o += [valu('v_mov_b32', V(29), 4 * (48 + k)), raw("s_nop 0"), raw(f"buffer_store_dword v{120 + k}, v29, s[72:75], s76 offen", 'vstore'), raw("s_nop 1")]
    return o

def set_srd(srd, base, off_lo, nbytes):
    return [salu('s_add_u32', srd[0], base[0], off_lo), salu('s_addc_u32', srd[1], base[1], 0),
            s_mov(srd[2], nbytes), s_mov(srd[3], 0x20000)]
def smul(d, a, b): return salu('s_mul_i32', d, a, b, scc=False)
def flat(groups): return [x for g in groups for x in g]
def csel(d, a, b): return I('s_cselect_b32', f"s_cselect_b32 {d}, {a}, {b}", 'salu', [SCC, a, b], [d])
def advance(reg, step, first=0):
    return [salu('s_add_u32', reg, reg, step), s_cmp('s_cmp_eq_u32', reg, 9 * step + first), csel(reg, first, reg)]
def at(groups, gaps):
    assert len(groups) == len(gaps), (len(groups), len(gaps))
    return [F(g, p, p, tail=all(x.kind in ('wait', 'barrier') for x in g)) for g, p in zip(groups, gaps)]

def dma_K(name, m0, soff=sKOFF, adv=True):
    d = [[m0]] + [[buf_dma(vKd[n], srdK, soff, 1024 * n, name, OPT['kvf'])] for n in range(4)]
    if OPT['xr'] or (isinstance(soff, int) and soff): d = [[salu('s_xor_b32', sXK, soff, sXR), m0]] + [[buf_dma(vKd[n], srdK, sXK, 1024 * n, name, OPT['kvf'])] for n in range(4)]
    if OPT['nodma']: d = [[m0]] + [[s_nop(0)] for n in range(4)]
    return tag_m0(d + ([[salu('s_add_u32', sKOFF, sKOFF, 16384)]] if adv else []))
def dma_V(name, m0, soff=sVOFF, adv=True):
    d = [[m0]] + [[buf_dma(vVd[n % 2], srdV, soff, 1024 * n, name, OPT['kvf'])] for n in range(4)]
    if OPT['xr'] or (isinstance(soff, int) and soff): d = [[salu('s_xor_b32', sXV, soff, sXR), m0]] + [[buf_dma(vVd[n % 2], srdV, sXV, 1024 * n, name, OPT['kvf'])] for n in range(4)]
    if OPT['nodma']: d = [[m0]] + [[s_nop(0)] for n in range(4)]
    return tag_m0(d + ([[salu('s_add_u32', sVOFF, sVOFF, 16384)]] if adv else []))
def dma_X(part, name):
    return tag_m0([[s_mov(M0, sXM[part])]] + [[buf_dma(vXg[4 * part + n], srdX[part], sXC, 1024 * n, name, OPT['xf'])] for n in range(4)])
def dma_W(i, name, m0):
    return tag_m0([[m0]] + [[buf_dma(vWd[i][n], srdW[i], sWC[i], 1024 * n, name, OPT['wf'])] for n in range(4)])
def PK(s, nt): return A(192 + (s * 3 + nt) * 4, 4) if s * 3 + nt < 8 else A(244, 4)
def pack_in():
    t = [vRC[0], vRC[1], vRC[2]]
    out = [[valu('v_accvgpr_read_b32', t[u], aPd[u])] for u in range(3)]
    for s in range(3):
        out.append([salu('s_add_u32', M0, sPM0, s * 3072) if s < 2 else s_mov(M0, sW4K), s_nop(0)])
        out += [[buf_dma(t[u], srdP, sPU[s], 1024 * u, 'privP' if s < 2 else ('privP', Kn(28)), OPT['pf'])] for u in range(3)]
    return tag_m0(out)
def pack_rd():
    ra, rb = vRC[3], vRC[2]
    o = [[valu('v_accvgpr_read_b32', ra, aPr)], [valu('v_accvgpr_read_b32', rb, aPq), wait(vm=['privP'])]]
    for s in range(3):
        o += [[ds_read('ds_read_b64_tr_b16', PK(s, nt).sub(2 * h, 2), ra if s < 2 else rb, (s % 2) * 3072 + h * 1536 + 8 * nt, 'privP') for h in range(2)] for nt in range(3)]
    return o
def pack_st(units): return [[buf_store('buffer_store_dwordx4', PK(s, nt), vT, srdQ, sPV[s], nt * 1024, OPT['pst'])] for s in units for nt in range(3)]

def rd_K(name, half, kt, s): return ds_read('ds_read_b128', Kf(kt, s), vKr[s], half * 8192 + kt * 4096, name)
def rd_V(name, half, dt): return [ds_read('ds_read_b64_tr_b16', Vf(dt).sub(2 * h, 2), vVr[dt], half * 8192 + h * 4096, name) for h in range(2)]
def rd_W(p, h, head, i):
    return [ds_read('ds_read_b64_tr_b16', Wf(p).sub(2 * j, 2), vWr[i], (1 - h % 2) * 16384 + j * 2048 + head * 256, WN[h % 4]) for j in range(2)]
def rd_X(c, ks, qt): return ds_read('ds_read_b128', XF(ks, qt), vXr[qt // 2][ks], (qt % 2) * 2048, Xn(c, qt // 2))

ST = [32, 40, 49, 57]
NP = 66
DG = [[[54, 55, 57, 59, 61, 62], [54, 55, 57, 59, 61, 62]], [[38, 39, 48, 55, 60, 62], [15, 16, 30, 45, 58, 60]]][OPT['dg']]
REP = []
def period_parts(j, B=0, first=False, nxt=True, kg=None, dma=True):
    t, odd = j // 2, j % 2
    mf = []
    for qt in range(4):
        for kt in range(2):
            for s in range(4):
                c = Sreg(qt, kt) if s else (vCI if (qt == 3 and OPT['cinit']) else 0)
                mf.append(mfma(Sreg(qt, kt), Kf(kt, s), Qreg(qt, s), c, SH))
    for qt in range(4):
        if qt % 2: mf.append(smfmac(Lacc(qt // 2), aONE, V(Preg(qt - 1).i, 8), vIDX))
        for dt in range(8): mf.append(mfma(Oacc(dt, qt), Vf(dt), Preg(qt), 0 if first else Oacc(dt, qt), SH))
    fl = []
    prev = None
    for qt in range(4):
        dl = B + ST[qt] - 3
        pc = None
        for kt in range(2):
            lo = B + 8 * qt + 4 * kt + 3 + 4
            ex = []
            for r in range(4):
                prev = F(valu('v_exp_f32', Sreg(qt, kt)[r], Sreg(qt, kt)[r]), lo, dl - 1, after=[prev]); ex.append(prev)
            fl += ex
            for h in range(2):
                pc = F(valu('v_cvt_pk_bf16_f32', Preg(qt)[2 * kt + h], Sreg(qt, kt)[2 * h], Sreg(qt, kt)[2 * h + 1]), lo, dl,
                       after=[(ex[2 * h + 1], 1), pc]); fl.append(pc)
    vr = at([rd_V(Vn(t), odd, dt) for dt in range(8)], [B + g for g in range(8)]); fl += vr
    fl += at([[wait(lg=[Vf(dt) for dt in range(8)])]], [B + 31])
    if nxt:
        kg = kg or [37, 37, 46, 46, 47, 47, 53, 53]
        fl += at([[rd_K(Kn(t + odd), 1 - odd, i // 4, i % 4)] for i in range(8)], [B + g for g in kg])
        fl += at([[wait(lg=0)]], [B + 65])
        if odd:
            fl += at([[wait(vm=[Kn(t + 1), Vn(t + 1)]), s_barrier()]], [B + 36])
            if dma: fl += at(dma_K(Kn(t + OPT['la']), s_mov(M0, sKM)), [B + g for g in DG[0]])
            fl += [F(valu('v_xor_b32', vVr[dt], sTG, vVr[dt]), B + 31, B + 65) for dt in range(8)]
        else:
            if dma: fl += at(dma_V(Vn(t + OPT['la'] - 1), salu('s_add_u32', M0, sKM, 65536)), [B + g for g in DG[1]])
            x = F([salu('s_xor_b32', sKM, sKM, sTG), salu('s_xor_b32', sTG, sTG, 49152)][::1 if OPT['la'] == 4 else -1], B + DG[1][0] + 1, B + 60)
            fl += [x] + [F(valu('v_xor_b32', vKr[s], sTG, vKr[s]), B + 54, B + 65, after=[x]) for s in range(4)]
    return mf, fl
def period(j, extra=(), **kw):
    mf, fl = period_parts(j, **kw)
    return schedule(mf, fl + list(extra), 8, REP)

def q_half(c, hf, last):
    h = 2 * c + hf
    mf = [mfma(QACC(i // 8, (i % 8) // 2, i % 2, qt), Wf(i), XF(hf, qt), QACC(i // 8, (i % 8) // 2, i % 2, qt), SH)
          for i in range(16) for qt in range(4)]
    fl = []
    for i in range(16):
        p = i + 4
        fl += at([rd_W(p, h, p // 8, p % 8) if p < 16 else rd_W(p, h + 1, 0, p - 16)], [4 * i])
    for i in range(2, 18, 2):
        w = [Wf(i), Wf(i + 1)] + ([XF(1 - hf, qt) for qt in range(4)] if i == 16 else [])
        fl += at([[wait(lg=w)]], [4 * i - 1])
    fl += at([[wait(vm=[WN[(h + 1) % 4]]), s_barrier()]], [46])
    if hf == 0:
        fl += at([[rd_X(c, 1, 0), rd_X(c, 1, 2)], [rd_X(c, 1, 1), rd_X(c, 1, 3)],
                  [valu('v_xor_b32', vXr[0][1], 0xC000, vXr[0][1]), valu('v_xor_b32', vXr[1][1], 0x18000, vXr[1][1])]], [1, 2, 5])
        if last and OPT['pl']: fl += at(dma_K((Xn(c, 0), Kn(1)), salu('s_add_u32', M0, sW4K, 16384), 16384, False), [17, 18, 22, 26, 30])
        else:
            fl += at(dma_X(0, (Xn(c, 0), Kn(1)) if last else Xn(c, 0)), [17, 18, 22, 26, 30])
            fl += at([[salu('s_xor_b32', sXM[0], sXM[0], 0xC000)]], [33])
        fl += at(dma_W(0, WN[(h + 3) % 4], salu('s_xor_b32', M0, sWM, 0x38000)) + [advance(sWC[0], 524288, 262144)], [49, 50, 53, 57, 61, 62])
    else:
        if last and OPT['pl']: fl += at(dma_V((Xn(c, 1), Vn(1)), salu('s_add_u32', M0, sW4K, 81920), 16384, False), [1, 2, 6, 10, 14])
        else:
            fl += at(dma_X(1, (Xn(c, 1), Vn(1)) if last else Xn(c, 1)), [1, 2, 6, 10, 14])
            fl += at([[salu('s_xor_b32', sXM[1], sXM[1], 0x18000)], advance(sXC, 128)], [17, 18])
        fl += at([[wait(vm=[Xn(c + 1, 0), Xn(c + 1, 1)])], [rd_X(c + 1, 0, 0), rd_X(c + 1, 0, 2)], [rd_X(c + 1, 0, 1), rd_X(c + 1, 0, 3)],
                  [valu('v_xor_b32', vXr[0][0], 0xC000, vXr[0][0]), valu('v_xor_b32', vXr[1][0], 0x18000, vXr[1][0])]], [37, 38, 41, 42])
        fl += at([[valu('v_xor_b32', vWr[i], 0x38000, vWr[i])] for i in range(8)], [19, 21, 25, 29, 33, 37, 43, 45])
        if last and OPT['pl']:
            if OPT['la'] == 4 and not OPT['gv']: fl += at(dma_V(Vn(2), salu('s_add_u32', M0, sW4K, 114688), 32768, False), [49, 50, 53, 57, 61])
        else:
            fl += at(dma_W(1, WN[(h + 3) % 4], salu('s_add_u32', M0, sWM, 16384)) + [advance(sWC[1], 524288)], [49, 50, 53, 57, 61, 62])
            fl += at([[salu('s_xor_b32', sWM, sWM, 0x38000)]], [51])
    return schedule(mf, fl, 8, REP)

def q_loop():
    NR = 7 if OPT['pl'] else 8
    bodies = []
    for c in range(NR):
        b = [label('L_q')] + istamp(32, sCNT, 0) + q_half(c, 0, c == 7) + q_half(c, 1, c == 7)
        b += [salu('s_add_u32', sCNT, sCNT, 1), s_cmp('s_cmp_lg_u32', sCNT, sLIM), s_branch('s_cbranch_scc1', 'L_q')]
        bodies.append(b)
    rolled('q', bodies)
    blk = {}
    a = flat(dma_K(Kn(0), s_mov(M0, sW4K), 0, False)); a.insert(1 + bool(OPT['xr']), s_nop(0))
    b = flat(dma_V(Vn(0), salu('s_add_u32', M0, sW4K, 65536), 0, False)); b.insert(1 + bool(OPT['xr']), s_nop(0))
    blk.setdefault(OPT['kv0'], []).extend(a + b)
    if not OPT['pl']:
        sw = []
        for d, s in ((srdX[0], srdK), (srdX[1], srdV), (srdW[1], srdV)):
            sw += [s_mov(d[k], s[k]) for k in range(3)]
        sw += [salu('s_xor_b32', sXC, sXR, 16384), salu('s_xor_b32', sWC[1], sXR, 32768)]
        for n in range(4):
            sw += [valu('v_mov_b32', vXg[n], vKd[n]), valu('v_mov_b32', vXg[4 + n], vVd[n % 2]), valu('v_mov_b32', vWd[1][n], vVd[n % 2])]
        blk.setdefault(6, []).extend(sw)
    cs = sorted(blk)
    static, trace = bodies[0][:], []
    full = {}
    for k, c in enumerate(cs):
        hd = [label(f'L_q{k}'), s_cmp('s_cmp_lg_u32', sCNT, c + 1), s_branch('s_cbranch_scc1', f'L_q{k + 1}' if k + 1 < len(cs) else 'L_qtail')]
        full[c] = hd + blk[c] + [s_mov(sLIM, (cs + [NR - 1])[k + 1] + 1), s_branch('s_branch', 'L_q')]
        static += full[c]
    for c in range(NR): trace += bodies[c] + full.get(c, [])
    return static, trace, cs[0] + 1

def conv(h, qt, s, tmp=None, pk=True):
    q = Qreg(qt, s)
    g = []
    src = V(QACC(0, s, 0, qt).i, 8) if h == 0 else tmp
    if h == 1: g += [[valu('v_accvgpr_read_b32', tmp[i], A(QACC(1, s, 0, qt).i + i))] for i in range(8)]
    if pk: g += [[pk_mul_s(src.sub(2 * i, 2), sSCALE)] for i in range(4)]
    else: g += [[valu('v_mul_f32', src[i], sSCALE[0], src[i])] for i in range(8)]
    g += [[valu('v_cvt_pk_bf16_f32', q[i], src[2 * i], src[2 * i + 1])] for i in range(4)]
    return g, [[perm16(q[0], q[2])], [perm16(q[1], q[3])]]
def l_init():
    return [[valu('v_accvgpr_write_b32', Lacc(i // 4)[i % 4], sPAD if i == 6 else 0)] for i in range(8)]

def q_tail():
    seq = [(hd, ks, i) for hd in range(2) for ks in range(2) for i in range(8)]
    mf = [mfma(QACC(hd, i // 2, i % 2, qt), Wf(p), XF(ks, qt), QACC(hd, i // 2, i % 2, qt), SH)
          for p, (hd, ks, i) in enumerate(seq) for qt in range(4)]
    B = 128
    m0, fl = period_parts(0, B, first=True)
    mf += m0
    for p in range(4, 32): fl += at([rd_W(p, 16 + seq[p][1], seq[p][0], seq[p][2])], [4 * (p - 4)])
    for p in range(2, 32, 2): fl += at([[wait(lg=[Wf(p), Wf(p + 1)] + ([XF(1, qt) for qt in range(4)] if p == 8 else []))]], [4 * p - 1])
    fl += at([[rd_X(8, 1, 0), rd_X(8, 1, 2)], [rd_X(8, 1, 1), rd_X(8, 1, 3)], [wait(vm=['E0']), s_barrier()]], [1, 2, 14])
    fl += at(dma_K((Kn(2), Xn(8, 1)), salu('s_add_u32', M0, sW4K, 49152)), [OPT['g2'] + g for g in (0, 1, 4, 5, 8, 9)])
    if OPT['la'] == 4:
        fl += at(dma_K((Kn(3), Xn(8, 0)), s_mov(M0, sKM)), [OPT['g3'] + g for g in (0, 1, 4, 5, 8, 9)])
        if OPT['gv']: fl += at(dma_V(Vn(2), salu('s_add_u32', M0, sW4K, 114688), 32768, False), [OPT['gv'] + g for g in (0, 1, 4, 5, 8)])
    fl += chain(l_init(), 5, 40, step=1)
    fl += at([[wait(vm=[Kn(0), Vn(0)], lg=0), s_barrier()]], [119])
    fl += at([[rd_K(Kn(0), 0, i // 4, i % 4)] for i in range(8)], [120, 120, 121, 121, 122, 122, 123, 123])
    fl += at([[wait(lg=[Kf(0, s) for s in range(4)])], [wait(lg=[Kf(1, s) for s in range(4)])]], [127, B + 3])
    prev, sw = None, []
    order = [(qt, s) for s in range(3) for qt in range(4)] + [(qt, 3) for qt in range(4)]
    order.sort(key=lambda x: (x[1] if x[1] < 2 else 2, x[0]))
    for qt, s in order:
        g, p16 = conv(0, qt, s, pk=OPT['pk0'])
        lo = 4 * (9 + 2 * s) + qt + 5
        hi = B + 8 * qt - 2
        ch = chain(g + [[s_nop(0)]] + p16[:1] + p16[1:], lo, hi, after=[prev], per=0); prev = ch[-1]; fl += ch
    return schedule(mf, fl, 8, REP)

sites = []
def check_parts():
    t = [V(32 + i) for i in range(8)]
    g = [[valu('v_accvgpr_read_b32', t[i], Lacc(i // 4)[i % 4])] for i in range(8)]
    g += [[valu('v_add_f32', vRC[q], t[2 * q], t[2 * q + 1])] for q in range(4)]
    g += [[valu('v_add_f32', t[0], vRC[0], vRC[1])], [valu('v_add_f32', t[1], vRC[2], vRC[3])], [valu('v_min3_f32', t[2], vRC[0], vRC[1], vRC[2])],
          [valu('v_add_f32', t[0], t[0], t[1])], [valu('v_min_f32', t[2], t[2], vRC[3])], [v_cmp('v_cmp_ngt_f32', sHI, t[0])],
          [I('v_cmp_gt_f32', f"v_cmp_gt_f32_e64 {sMASK}, {sLO}, {t[2]}", 'valu', [sLO, t[2]], [sMASK])]]
    k = len(sites); sites.append(k)
    br = [s_nop(0), I('s_or_b64', f"s_or_b64 {sMASK}, {sMASK}, vcc", 'salu', [sMASK, VCC], [sMASK, SCC]),
          s_branch('s_cbranch_scc0' if OPT['forcefb'] else 's_cbranch_scc1', f"L_tramp{k}"), label(f"L_ret{k}")]
    return g, br
def with_check(mf, fl, B, pad):
    ck, br = check_parts()
    c1 = chain(ck[:4], B + 50, B + 62, per=0)
    return schedule(mf, fl + c1 + chain([[s_nop(pad)]] + ck[4:], B + 64, B + 65, per=0, after=c1[-1:]), 8, REP) + br
def parked(qt):
    return [buf_store('buffer_store_dwordx4', A(32 * qt + 4 * m, 4), vO[qt], srdO, sOB[m // 2], (m % 2) * OU, OPT['ost']) for m in range(4)]
def epilogue(qt, mid=False):
    g = []
    for m in range(4):
        o = V(Oacc(2 * m, qt).i, 8)
        g += [[pk_mul_v(o.sub(2 * i, 2), vRC.sub(qt & 2, 2), qt & 1)] for i in range(4)]
        g += [[valu('v_cvt_pk_bf16_f32', o[i], o[2 * i], o[2 * i + 1])] for i in range(4)]
        if mid: g += [[valu('v_accvgpr_write_b32', A(32 * qt + 4 * m + i), o[i])] for i in range(4)]
        else: g += [[buf_store('buffer_store_dwordx4', o.sub(0, 4), vO[qt], srdO, sOA[m // 2], (m % 2) * OU, OPT['ost'])]]
    return g
def rcp(): return [valu('v_rcp_f32', vRC[q], vRC[q]) for q in range(4)]

def boundary():
    o = [label('L_mid')] + with_check(*period_parts(31), 0, 1) + stamp(4, V(32), V(33)) + stamp(16, V(32), V(33)) + stamp(17, V(32), V(33))
    o += rcp() + flat(l_init())
    o += [s_mov(sITEM, 1), s_mov(sFH, 262144), salu('s_add_u32', sEND, sEND, 262144 - 16384 * OPT['npl']), s_mov(sOB[0], sOA[0]), s_mov(sOB[1], sOA[1])]
    tmp = V(56, 8)
    def cv(qt):
        out, pend = [], []
        for s in range(4):
            g, p = conv(1, qt, s, tmp)
            out += g[:2] + pend + g[2:]; pend = p
        return out + [[s_nop(1)]] + pend
    o += flat(cv(0)) + flat(epilogue(0, True)) + [s_nop(1)]
    e, prev = [], None
    for qt in range(1, 4):
        ch = chain(cv(qt), 8 * qt - 8, 8 * qt - 2, after=[prev], per=0); prev = ch[-1]; e += ch
    for qt in range(1, 4):
        ch = chain(epilogue(qt, True), 20, ST[qt] - 3, after=[prev], per=0); prev = ch[-1]; e += ch
    e += chain([[salu('s_add_u32', sOA[0], sOA[0], 4 * OU), salu('s_add_u32', sOA[1], sOA[1], 4 * OU)]], 40, 65, after=[prev], per=0)
    return o + period(32, extra=e, first=True)
def final():
    mf, fl = [], []
    n = 2 * OPT['npl'] + 1
    for k in range(n):
        m, f = period_parts(64 - n + k, NP * k, nxt=k < n - 1, dma=False)
        mf += m; fl += f
    B = NP * (n - 1)
    pi = chain(pack_in(), 0, 13, per=0)
    pr = chain(pack_rd(), OPT['prd'], OPT['prd'] + 40, step=3, per=0)
    pw = F(wait(lg=[PK(s, nt) for s in range(3) for nt in range(3)]), OPT['prd'] + 40, OPT['prd'] + 60, after=[pr[-1]])
    st = [[x] for qt in range(4) for x in parked(qt)] + pack_st(range(3))
    lo, hi = OPT['st0'], NP * n + OPT['st1']
    st = chain(st, lo, hi, step=(hi - lo) / len(st), per=0, slack=6, after=pi[-1:])
    st[16].after.append((pw, 0))
    if OPT['nopk'] == 1: st = st[:16]
    if OPT['nopk'] == 2: st = []
    o = [label('L_last')] + with_check(mf, fl + pi + pr + [pw] + st, B, 4) + stamp(21, V(40), V(41)) + rcp()
    for qt in range(4): o += flat(epilogue(qt))
    return o + stamp(20, V(32), V(33))

def fallback():
    vk, vv, ad, f, t, t2 = V(32), [V(33), V(34)], V(35), V(36), V(37), V(38)
    m, s8 = [V(40 + q) for q in range(4)], V(48, 8)
    l = [vRC[q] for q in range(4)]
    def FK(kt, s): return A(192 + (kt * 4 + s) * 4, 4)
    def xmax(op, x):
        return [valu('v_mov_b32', t2, x), s_nop(1), perm16(x, t2), valu(op, x, x, t2), valu('v_mov_b32', t2, x), s_nop(1), permswap(x, t2), valu(op, x, x, t2)]
    o = [label('L_fb'), s_nop(15), raw('s_waitcnt vmcnt(0) lgkmcnt(0)')]
    o += [raw(f"v_mbcnt_lo_u32_b32 {t}, -1, 0", 'valu', [], [t]), raw(f"v_mbcnt_hi_u32_b32 {t}, -1, {t}", 'valu', [t], [t]),
          valu('v_and_b32', t2, 15, t), valu('v_lshrrev_b32', t, 4, t), valu('v_lshlrev_b32', t2, 8, t2), valu('v_lshl_add_u32', vk, t, 4, t2),
          valu('v_subrev_u32', vv[0], sW4K, vVd[0]), valu('v_subrev_u32', vv[1], sW4K, vVd[1])]
    for q in range(4): o += [valu('v_mov_b32', m[q], f2u(-3.0e38)), valu('v_mov_b32', l[q], 0)]
    for i in range(128): o.append(valu('v_mov_b32', V(128 + i), 0))
    o += [s_mov(sF, sFH), s_mov(sFC, 32), label('L_fb_loop'), salu('s_add_u32', sF2, sF, 4096)]
    for kt in range(2):
        o += [buf_load('buffer_load_dwordx4', FK(kt, s), vk, srdK, [sF, sF2][kt], 64 * s) for s in range(4)]
        o += [salu('s_add_u32', M0, sPM0, 4096 * kt), s_nop(0)] + [buf_dma(vv[n % 2], srdV, [sF, sF2][kt], 1024 * n, 'privF') for n in range(4)]
    o += [wait(vm=0)]
    for dt in range(8):
        o += [valu('v_and_b32', ad, 0x1fff, vVr[dt]), valu('v_add_u32', ad, sPM0, ad), s_nop(0)]
        o += [ds_read('ds_read_b64_tr_b16', Vf(dt).sub(2 * h, 2), ad, h * 4096, 'privF') for h in range(2)]
    o += [wait(lg=0)]
    for q in range(4):
        for kt in range(2):
            d = s8.sub(4 * kt, 4)
            o += [mfma(d, FK(kt, s), Qreg(q, s), d if s else 0, SH) for s in range(4)]
        o += [s_nop(9), valu('v_max3_f32', t, s8[0], s8[1], s8[2]), valu('v_max3_f32', t, t, s8[3], s8[4]), valu('v_max3_f32', t, t, s8[5], s8[6]),
              valu('v_max3_f32', t, t, s8[7], m[q])] + xmax('v_max_f32', t)
        o += [valu('v_sub_f32', f, m[q], t), valu('v_exp_f32', f, f), valu('v_mov_b32', m[q], t)]
        for i in range(8): o += [valu('v_sub_f32', s8[i], s8[i], t), valu('v_exp_f32', s8[i], s8[i])]
        o += [valu('v_mul_f32', l[q], l[q], f)]
        o += [valu('v_cvt_pk_bf16_f32', s8[i], s8[2 * i], s8[2 * i + 1]) for i in range(4)]
        for i in range(4):
            o += [valu('v_lshlrev_b32', t, 16, s8[i]), valu('v_and_b32', t2, 0xffff0000, s8[i]), valu('v_add_f32', l[q], l[q], t), valu('v_add_f32', l[q], l[q], t2)]
        o += [valu('v_mul_f32', V(128 + 32 * q + i), V(128 + 32 * q + i), f) for i in range(32)]
        o += [s_nop(1)] + [mfma(Oacc(dt, q), Vf(dt), s8.sub(0, 4), Oacc(dt, q), SH) for dt in range(8)] + [s_nop(7)]
    o += [salu('s_add_u32', sF, sF, 8192), salu('s_sub_u32', sFC, sFC, 1), s_cmp('s_cmp_lg_u32', sFC, 0), s_branch('s_cbranch_scc1', 'L_fb_loop')]
    for q in range(4): o += xmax('v_add_f32', l[q])
    o += [s_nop(9), raw(f"s_setpc_b64 {sRET}", 'branch', [sRET])]
    return o

def k1_setup():
    u = [V(64 + i) for i in range(12)]
    l, g, q, t0, t1, t2, t3, r, c = u[:9]
    o = [s_cmp('s_cmp_ge_u32', S(2), 256), s_branch('s_cbranch_scc1', 'L_k1_end')]
    o += [s_load('s_load_dwordx8', S(4, 8), S(0, 2), 0), s_load('s_load_dwordx2', pWO, S(0, 2), 32),
          s_load('s_load_dwordx8', S(32, 8), S(0, 2), 40), s_load('s_load_dwordx2', S(40, 2), S(0, 2), 72),
          s_load('s_load_dwordx2', pWS, S(0, 2), 96)]
    o += [salu('s_bfe_u32', sP, S(2), 0x10002), salu('s_and_b32', sT0, S(2), 1), salu('s_lshl_b32', sT0, sT0, 2), salu('s_bfe_u32', sT1, S(2), 0x20003),
          salu('s_add_u32', sB, sT0, sT1), salu('s_lshl_b32', sT1, sT1, 1),
          salu('s_lshr_b32', sT2, S(2), 5), salu('s_add_u32', sR0, sT1, sT2), s_cmp('s_cmp_ge_u32', sR0, 9),
          csel(sT1, 9, 0), salu('s_sub_u32', sR0, sR0, sT1),
          salu('s_and_b32', sT0, S(2), 2), salu('s_lshl_b32', sT0, sT0, 2), salu('s_add_u32', sH, sT0, sT2), salu('s_lshl_b32', sH, sH, 1)]
    if not OPT['rot']: o.append(s_mov(sR0, 0))
    o += [salu('s_lshl_b32', sXC, sR0, 7), salu('s_lshl_b32', sWC[1], sR0, 19), salu('s_add_u32', sWC[0], sWC[1], 262144)]
    o += [valu('v_lshrrev_b32', t0, 6, vT), valu('v_and_b32', l, 63, vT), readfirstlane(sW, t0),
          valu('v_lshrrev_b32', g, 4, l), valu('v_and_b32', q, 15, l), valu('v_lshrrev_b32', t1, 3, l), salu('s_lshl_b32', sW4K, sW, 12)]
    o += [smul(sT0, sW, 64 * 1152), valu('v_mul_u32_u24', t0, 1152, t1), valu('v_and_b32', t2, 7, l), valu('v_xor_b32', t2, t2, g),
          valu('v_add_u32', t0, sT0, t0), valu('v_lshl_add_u32', vXg[0], t2, 4, t0), valu('v_xor_b32', t2, 4, t2), valu('v_lshl_add_u32', t3, t2, 4, t0)]
    for n in range(1, 8): o.append(valu('v_add_u32', vXg[n], n * 9216 - 1024 * (n % 4), t3 if n % 2 else vXg[0]))
    o += [valu('v_lshrrev_b32', t1, 5, l), valu('v_and_b32', t2, 31, l), valu('v_xor_b32', t2, t2, t1), salu('s_and_b32', sT0, sW, 1),
          salu('s_lshl_b32', sT0, sT0, 3), valu('v_xor_b32', t2, sT0, t2), salu('s_lshl_b32', sT1, sW, 16), valu('v_lshlrev_b32', t1, 13, t1),
          valu('v_add_u32', t0, sT1, t1), valu('v_lshl_add_u32', vWd[0][0], t2, 4, t0), valu('v_xor_b32', t2, 4, t2), valu('v_lshl_add_u32', t3, t2, 4, t0)]
    for n in range(1, 4): o.append(valu('v_add_u32', vWd[0][n], n * (16384 - 1024), t3 if n % 2 else vWd[0][0]))
    for n in range(4): o.append(valu('v_mov_b32', vWd[1][n], vWd[0][n]))
    o += [salu('s_add_u32', sXM[0], sW4K, XBASE[0][0]), salu('s_add_u32', sXM[1], sW4K, XBASE[0][1]), salu('s_add_u32', sWM, sW4K, 131072)]
    o += [wait(lg=0)] + probe(0) + [s_cmp('s_cmp_eq_u32', sP, 0)]
    for d, s1 in ((pX, S(32, 2)), (pWQ, S(38, 2)), (pK, S(34, 2)), (pV, S(36, 2)), (pWO, S(40, 2))):
        o.append(I('s_cselect_b64', f"s_cselect_b64 {d}, {d}, {s1}", 'salu', [d, s1, SCC], [d]))
    o += [smul(sT0, sB, 276480)] + set_srd(srdX[0], pX, sT0, 276480) + set_srd(srdX[1], pX, sT0, 276480)
    o += [salu('s_lshl_b32', sT0, sH, 8), salu('s_sub_u32', sT1, 576 * 8192, sT0)] + set_srd(srdW[0], pWQ, sT0, sT1) + set_srd(srdW[1], pWQ, sT0, sT1)
    def nop1(x): x = flat(x); x.insert(1, s_nop(0)); return x
    def xload(c):
        return nop1(dma_X(0, Xn(c, 0))) + nop1(dma_X(1, Xn(c, 1))) + advance(sXC, 128) + \
               [salu('s_xor_b32', sXM[0], sXM[0], 0xC000), salu('s_xor_b32', sXM[1], sXM[1], 0x18000)]
    o += xload(0) + nop1(dma_W(1, 'E1', salu('s_add_u32', M0, sWM, 16384))) + advance(sWC[1], 524288)
    if OPT['e0']: o += nop1(dma_W(0, 'E0', s_mov(M0, sWM))) + advance(sWC[0], 524288, 262144)
    o += probe(1)
    late = [] if OPT['e0'] else nop1(dma_W(0, 'E0', s_mov(M0, sWM))) + advance(sWC[0], 524288, 262144)
    late += xload(1) + nop1(dma_W(1, 'V3', salu('s_add_u32', M0, sW4K, 114688))) + advance(sWC[1], 524288)
    z = V(60, 4)
    o += [valu('v_mov_b32', z[i], 0) for i in range(4)] + [s_nop(1)]
    zero = [mfma(r, z, z, 0) for i in range(8) for r in (V(128 + 16 * i, 16), A(16 * i, 16))]
    mark = len(o)
    o += [salu('s_lshl_b32', sT0, sB, 5), salu('s_add_u32', sT0, sT0, sH), salu('s_lshl_b32', sT0, sT0, 18)]
    o += set_srd(srdK, pK, sT0, 524288) + set_srd(srdV, pV, sT0, 524288)
    o += [smul(sT0, sP, O_BYTES)] + set_srd(srdO, pWS, sT0, O_BYTES)
    o += set_srd(srdP, pWO, 0, PACK_BYTES)
    o += [smul(sT0, sP, PACK_BYTES), salu('s_add_u32', sT0, sT0, PACK_OFF)] + set_srd(srdQ, pWS, sT0, PACK_BYTES)
    if OPT['stamp']:
        o += set_srd(S(72, 4), pWS, 200 * 1024 * 1024, 1024 * 1024)
        o += [salu('s_lshl_b32', S(76), S(2), 2), salu('s_add_u32', S(76), S(76), sW), salu('s_lshl_b32', S(76), S(76), 8)]
    if OPT['xr'] == 0: o += [s_mov(sXR, 0)]
    if OPT['xr'] == 1: o += [salu('s_bfe_u32', sXR, S(2), 0x40003), salu('s_lshl_b32', sXR, sXR, 14)]
    if OPT['xr'] == 2: o += [salu('s_and_b32', sXR, S(2), 15), salu('s_lshl_b32', sXR, sXR, 14)]
    if OPT['xr'] == 3: o += [salu('s_lshr_b32', sXR, S(2), 4), salu('s_xor_b32', sXR, sXR, S(2)), salu('s_and_b32', sXR, sXR, 15), salu('s_lshl_b32', sXR, sXR, 14)]
    o += [s_mov(sKOFF, 32768), s_mov(sVOFF, 16384 * (OPT['la'] - 1)), s_mov(sITEM, 0), s_mov(sFH, 0), s_mov(sCNT, 0), s_mov(sTG, 32768), s_mov(sEND, (15 + OPT['la']) * 16384),
          salu('s_add_u32', sKM, sW4K, 32768 if OPT['la'] == 4 else 49152), salu('s_lshl_b32', sOA[0], sH, 12 if OPT['s16'] else 13), salu('s_add_u32', sOA[1], sOA[0], 2 * OU)]
    c_scale = math.log2(math.e) / math.sqrt(128.0)
    o += [s_mov(sHI, f2u(2.0 ** 40)), s_mov(sLO, f2u(2.0 ** -40)), s_mov(sSCALE[0], f2u(c_scale)), s_mov(sSCALE[1], f2u(c_scale))]
    o += [s_cmp('s_cmp_eq_u32', sW, 3), csel(sT0, f2u(-1.0e30), 0), csel(sPAD, f2u(1.0), 0)] + [valu('v_mov_b32', vCI[i], sT0) for i in range(4)]
    o += [valu('v_lshlrev_b32', t0, 8, g), valu('v_add_u32', t0, sW4K, t0)]
    for n in range(4): o += [valu('v_add_u32', t3, 4 * n, g), valu('v_xor_b32', t3, t3, q), valu('v_lshl_add_u32', vKd[n], t3, 4, t0)]
    o += [valu('v_lshlrev_b32', t3, 1, g), valu('v_xor_b32', t3, t3, q), valu('v_lshl_add_u32', vVd[0], t3, 4, t0), valu('v_xor_b32', vVd[1], 128, vVd[0])]
    o += [valu('v_lshrrev_b32', t2, 1, q), valu('v_xor_b32', t2, t2, g), valu('v_lshlrev_b32', t1, 7, q), valu('v_add_u32', t1, sW4K, t1),
          valu('v_lshl_add_u32', t1, t2, 4, t1), valu('v_xor_b32', t3, 64, t1)]
    for part in range(2): o += [valu('v_add_u32', vXr[part][0], XBASE[0][part], t1), valu('v_add_u32', vXr[part][1], XBASE[0][part], t3)]
    o += [valu('v_xor_b32', t2, g, q), valu('v_lshlrev_b32', t1, 8, q), valu('v_lshl_add_u32', vKr[0], t2, 4, t1)]
    for s in range(1, 4): o.append(valu('v_xor_b32', vKr[s], 64 * s, vKr[0]))
    o += [valu('v_lshrrev_b32', r, 2, q), valu('v_and_b32', c, 3, l), valu('v_lshl_add_u32', t0, g, 2, r), valu('v_and_b32', t2, 7, t0),
          valu('v_lshlrev_b32', t1, 8, t0), valu('v_lshl_add_u32', t1, t2, 5, t1), valu('v_lshl_add_u32', t1, c, 3, t1), valu('v_add_u32', vVr[0], 65536, t1)]
    for dt in range(1, 8): o.append(valu('v_xor_b32', vVr[dt], 32 * dt, vVr[0]))
    o += [valu('v_lshl_add_u32', t0, g, 3, r), valu('v_lshlrev_b32', t0, 9, t0), valu('v_and_b32', t1, 1, c), valu('v_lshl_add_u32', t0, t1, 3, t0),
          valu('v_and_b32', t1, 2, c), valu('v_and_b32', t2, 1, r), valu('v_or_b32', t1, t1, t2), valu('v_and_b32', t2, 2, r), valu('v_lshl_or_b32', t1, t2, 1, t1),
          valu('v_and_b32', t2, 1, g), valu('v_lshl_or_b32', t1, t2, 3, t1), valu('v_lshl_add_u32', t0, t1, 4, t0), valu('v_add_u32', vWr[0], 131072, t0)]
    for i in range(1, 8): o.append(valu('v_xor_b32', vWr[i], (4 * (i // 2) + i % 2) * 16, vWr[0]))
    o += [valu('v_lshrrev_b32', t0, 5, l), valu('v_bfe_u32', t1, l, 1, 1), v_cmp('v_cmp_eq_u32', t0, t1), valu('v_mov_b32', t2, 0x3f803f80), valu('v_and_b32', t3, 1, l),
          valu('v_cndmask_b32', t2, 0, t2, VCC), valu('v_mul_u32_u24', t3, 0xaaaa, t3), valu('v_add_u32', vIDX, 0x4444, t3)]
    o += [valu('v_accvgpr_write_b32', aONE[i], t2) for i in range(4)]
    if OPT['s16']:
        o += [salu('s_lshl_b32', sPM0, sW, 13), salu('s_add_u32', sPM0, sPM0, 131072), valu('v_lshl_add_u32', t0, g, 2, r), valu('v_mul_u32_u24', t0, 96, t0),
              valu('v_mul_u32_u24', t1, 24, c), valu('v_add3_u32', t0, t0, t1, sPM0),
              valu('v_lshlrev_b32', vT, 4, l), valu('v_accvgpr_write_b32', aPr, t0), valu('v_subrev_u32', t0, sPM0, t0), valu('v_add_u32', t0, sW4K, t0),
              valu('v_accvgpr_write_b32', aPq, t0)]
        for k in range(3):
            o += [valu('v_add_u32', t0, 64 * k, l), valu('v_mul_u32_u24', t1, 171, t0), valu('v_lshrrev_b32', t1, 10, t1),
                  valu('v_mul_u32_u24', t2, 6, t1), valu('v_sub_u32', t2, t0, t2),
                  valu('v_mul_u32_u24', t1, 1152, t1), valu('v_lshl_add_u32', t1, t2, 4, t1), valu('v_subrev_u32', t1, 1024 * k, t1),
                  valu('v_accvgpr_write_b32', aPd[k], t1)]
        o += [smul(sT1, sB, 15), salu('s_lshl2_add_u32', sT1, sW, sT1), salu('s_lshl_b32', sT1, sT1, 17), valu('v_add_u32', vO[0], sT1, vT),
              s_mov(sT2, 3 * 131072), s_cmp('s_cmp_eq_u32', sW, 3), I('s_cselect_b32', f"s_cselect_b32 {sT1}, {HUGE}, {sT2}", 'salu', [SCC, sT2], [sT1]),
              valu('v_add_u32', vO[1], 131072, vO[0]), valu('v_add_u32', vO[2], 2 * 131072, vO[0]), valu('v_add_u32', vO[3], sT1, vO[0])]
        o += [salu('s_and_b32', sT0, S(2), 3), salu('s_lshl_b32', sT0, sT0, 5), salu('s_lshr_b32', sT1, S(2), 3), salu('s_add_u32', sT0, sT0, sT1),
              smul(sPU[0], sT0, 32 * 1152), smul(sT1, sW, 288), salu('s_add_u32', sPU[0], sPU[0], sT1),
              salu('s_add_u32', sPU[1], sPU[0], 96), salu('s_add_u32', sPU[2], sPU[0], 192), smul(sT0, sT0, 6144), smul(sT1, sW, 3)]
        for s in range(3):
            o += [salu('s_lshr_b32', sT2, sT1, 1), smul(sT2, sT2, 786432), salu('s_add_u32', sPV[s], sT0, sT2),
                  salu('s_and_b32', sT2, sT1, 1), smul(sT2, sT2, 3072), salu('s_add_u32', sPV[s], sPV[s], sT2)] + ([salu('s_add_u32', sT1, sT1, 1)] if s < 2 else [])
    else:
        o += [salu('s_lshl_b32', sPM0, sW, 13), salu('s_add_u32', sPM0, sPM0, 131072), valu('v_lshl_add_u32', t0, t0, 2, r), valu('v_mul_u32_u24', t0, 192, t0),
              valu('v_and_b32', t1, 1, g), valu('v_lshl_add_u32', t1, t1, 2, c), valu('v_mul_u32_u24', t1, 24, t1), valu('v_add3_u32', t0, t0, t1, sPM0),
              valu('v_lshlrev_b32', vT, 4, l), valu('v_accvgpr_write_b32', aPr, t0), valu('v_subrev_u32', t0, sPM0, t0), valu('v_add_u32', t0, sW4K, t0),
              valu('v_accvgpr_write_b32', aPq, t0)]
        for k in range(3):
            o += [valu('v_add_u32', t0, 64 * k, l), valu('v_mul_u32_u24', t1, 171, t0), valu('v_lshrrev_b32', t1, 11, t1),
                  valu('v_mul_u32_u24', t2, 12, t1), valu('v_sub_u32', t2, t0, t2), valu('v_and_b32', t3, 8, t1), valu('v_add_u32', t1, t1, t3),
                  valu('v_mul_u32_u24', t1, 1152, t1), valu('v_lshl_add_u32', t1, t2, 4, t1), valu('v_subrev_u32', t1, 1024 * k, t1),
                  valu('v_accvgpr_write_b32', aPd[k], t1)]
        o += [salu('s_lshl_b32', sT0, sW, 6), valu('v_add_u32', t0, sT0, q), smul(sT1, sB, 240)]
        for qt in range(4):
            o += [valu('v_add_u32', t1, 16 * qt, t0),
                  valu('v_add_u32', t2, sT1, t1), valu('v_lshrrev_b32', t3, 5, t2), valu('v_lshlrev_b32', t3, 18, t3),
                  valu('v_and_b32', t2, 31, t2), valu('v_lshl_add_u32', t3, t2, 4, t3), valu('v_lshl_add_u32', t3, g, 9, t3),
                  v_cmp('v_cmp_gt_u32', 240, t1), valu('v_mov_b32', t2, HUGE), s_nop(0),
                  valu('v_cndmask_b32', vO[qt], t2, t3, VCC)]
        o += [salu('s_and_b32', sT0, S(2), 3), salu('s_lshl_b32', sT0, sT0, 5), salu('s_lshr_b32', sT1, S(2), 3), salu('s_add_u32', sT0, sT0, sT1),
              salu('s_lshr_b32', sT2, sW, 1), salu('s_and_b32', sT1, sW, 1), smul(sPU[0], sT0, 32 * 1152), smul(sPU[1], sT2, 8 * 1152), smul(sPU[2], sT1, 576),
              salu('s_add_u32', sPU[0], sPU[0], sPU[1]), salu('s_add_u32', sPU[0], sPU[0], sPU[2]),
              salu('s_add_u32', sPU[1], sPU[0], 192), salu('s_add_u32', sPU[2], sPU[0], 384),
              salu('s_lshl1_add_u32', sT2, sT0, sT2), smul(sT2, sT2, 3072), smul(sPV[0], sT1, 3 * 786432), salu('s_add_u32', sPV[0], sPV[0], sT2),
              salu('s_add_u32', sPV[1], sPV[0], 786432), salu('s_add_u32', sPV[2], sPV[0], 2 * 786432)]
    rest, o = o[mark:], o[:mark]
    for i, x in enumerate(rest):
        if i % 12 == 0 and zero and x.kind != 'nop' and (not o or o[-1].kind != 'nop'): o.append(zero.pop(0))
        o.append(x)
    assert not zero
    return o + probe(2) + late + probe(3)

def kernel1():
    qs, qtr, lim = q_loop()
    head = k1_setup() + [s_mov(sLIM, lim)] + stamp(0)
    if OPT['stamp']:
        head[2:2] = [raw("s_memrealtime s[78:79]"), raw("s_waitcnt lgkmcnt(0)"), valu('v_mov_b32', V(31), S(78))]
        head += [valu('v_mov_b32', V(29), 60), raw("s_nop 0"), raw("buffer_store_dword v31, v29, s[72:75], s76 offen", 'vstore'), raw("s_nop 1")]
    head += [wait(vm=[Xn(0, 0), Xn(0, 1)])] + probe(4) + [rd_X(0, 0, qt) for qt in range(4)]
    head += [valu('v_xor_b32', vXr[0][0], 0xC000, vXr[0][0]), valu('v_xor_b32', vXr[1][0], 0x18000, vXr[1][0])]
    head += [wait(vm=['E1']), s_barrier()] + flat([rd_W(p, 0, 0, p) for p in range(4)]) + [wait(lg=[Wf(0), Wf(1)])] + probe(5) + probes_out(8)
    tail = [label('L_qtail')] + (istamp(32, sCNT, 0) + q_half(7, 0, True) + q_half(7, 1, True) if OPT['pl'] else []) + stamp(1) + q_tail() + stamp(2)
    bodies = []
    for hd in range(2):
        for t in range(15 - hd * OPT['npl']):
            j = 32 * hd + 2 * t + 1
            bodies.append([label('L_att')] + istamp(48, sKOFF, 14) + period(j) + period(j + 1) + [s_cmp('s_cmp_lg_u32', sKOFF, sEND), s_branch('s_cbranch_scc1', 'L_att')])
            if len(bodies) > 1: del REP[-2:]
    rolled('att', bodies)
    after = [s_cmp('s_cmp_lg_u32', sITEM, 0), s_branch('s_cbranch_scc1', 'L_last')]
    mid = boundary()
    mid = mid[:1] + stamp(3) + mid[1:] + stamp(18) + [s_branch('s_branch', 'L_att')]
    last = final()
    last = last[:1] + stamp(19) + last[1:] + [label('L_k1_end'), raw('s_endpgm')]
    al = [raw(f".p2align {OPT['al']}", 'label')] if OPT['al'] else []
    static = head + al + qs + tail + al + bodies[0] + after + mid + last
    trace = head + qtr + tail + flat(bodies[:15]) + after + mid + flat(bodies[15:]) + after + last
    tramps = []
    for i in sites:
        tramps += [label(f"L_tramp{i}"), raw(f"s_call_b64 {sRET}, L_fb", 'branch', [], [sRET]), s_branch('s_branch', f"L_ret{i}")]
    return static, trace, tramps + fallback()

def descriptor(name, vgpr, accum, sgpr=96):
    return f""".amdhsa_kernel {name}
  .amdhsa_next_free_vgpr {vgpr}
  .amdhsa_next_free_sgpr {sgpr}
  .amdhsa_accum_offset {accum}
  .amdhsa_group_segment_fixed_size 0
  .amdhsa_kernarg_size 104
  .amdhsa_user_sgpr_count 2
  .amdhsa_user_sgpr_kernarg_segment_ptr 1
  .amdhsa_system_sgpr_workgroup_id_x 1
.end_amdhsa_kernel
"""

def finish(static, trace, rare, name):
    tr = expand(trace)
    resolve_waits(tr)
    errs = check(tr, name)
    if rare:
        resolve_waits(rare)
        errs += check(rare, name + "_rare")
    seen = set()
    for e in errs:
        k = e.split('] ', 1)[1]
        if k not in seen and len(seen) < 40: print("CHECK:", e, file=sys.stderr)
        seen.add(k)
    if errs: print(f"{len(errs)} check errors in {name}", file=sys.stderr)
    return render(static) + "\n" + (render(rare) if rare else "")

def main():
    ref = open(os.path.join(os.path.dirname(os.path.abspath(__file__)), '..', 'cdna_kernels', NAME + '.s.ref')).read().splitlines()
    hdr = [l for l in ref if l.startswith(';') and '@launch' not in l and 'Override launch' not in l and 'grid=ceil' not in l]
    st, tr, rare = kernel1()
    if OPT['rep']:
        for r in REP: print(len(r), sum(max(0, x - 8) for x in r), r, file=sys.stderr)
    out = hdr[:]
    out.append("; OLAY=17" if OPT["s16"] else "; OLAY=16")
    if OPT['k1']: out.append("; @launch kernel=attn_kernel grid=(256,1,1) block=(256,1,1) lds=163840")
    import gen4, gen7k2
    if OPT['s16']: gen4 = gen7k2
    if OPT['k2']: out.append(f"; @launch kernel=oproj_kernel grid=(240,1,1) block=(256,1,1) lds={gen4.LDS}")
    out += ['.amdgcn_target "amdgcn-amd-amdhsa--gfx950"', '.text', '.globl attn_kernel', '.p2align 8', '.type attn_kernel,@function', 'attn_kernel:']
    out.append(finish(st, tr, rare, 'k1'))
    if OPT['k2']:
        k2 = gen4.kernel2(OPT)
        out += ['.globl oproj_kernel', '.p2align 8', '.type oproj_kernel,@function', 'oproj_kernel:']
        out.append(finish(k2, k2, None, 'k2'))
    out += ['.section .rodata,"a"', '.p2align 6', descriptor('attn_kernel', 512, 256, 102)]
    if OPT['k2']:
        out += ['.p2align 6', descriptor('oproj_kernel', 512, 256)]
    open(sys.argv[1], 'w').write("\n".join(out))

if __name__ == '__main__':
    main()
```

```python
import sys, os, math, struct
from asmlib import *
import asmlib

NAME = "concat_heads__mha_block_cached__gqa_block_cached__near_ridge"
OPT = dict(stamp=0, k2=1, k1=1, ost=' sc1', pst=' sc1', xf='', wf='', pf=' nt', kvf=' nt', rot=0, rep=0,
           depth=5, rot2=0, s16=1, dbg=0, lag=8, rmul=1, d16=2, snake=0, uf='', of='', wof='', kv0=5, pk0=0, cinit=1, al=6, dc=8, forcefb=0, nodma=0, dg=1, nost=0,
           xr=3, pl=1, e0=1, npl=2, st0=14, st1=-8, prd=80, nopk=0, la=4, g2=17, g3=29, gv=0)
STR = ('uf', 'ost', 'pst', 'xf', 'wf', 'pf', 'kvf', 'of', 'wof')
for a in sys.argv[2:]:
    k, v = a.split('=')
    OPT[k] = ((' ' + v.replace('+', ' ')) if v != '-' else '') if k in STR else int(v)
asmlib.COST['dma'] = OPT['dc']

def f2u(x): return struct.unpack('<I', struct.pack('<f', x))[0]
O_BYTES = 60 * 262144
OU = 1024 if OPT['s16'] else 2048
PACK_OFF = 32 * 1024 * 1024
PACK_BYTES = 4096 * 1152
HUGE = 0x7f000000
SH = '16x16x32'

pX, pK, pV, pWQ, pWO, pWS = S(4, 2), S(6, 2), S(8, 2), S(10, 2), S(12, 2), S(14, 2)
srdP, srdQ = S(16, 4), S(20, 4)
sPU, sPV = [S(24), S(25), S(26)], [S(27), S(28), S(29)]
sLIM, sXR, sXK, sXV = S(30), S(31), S(12), S(13)
srdK, srdV, srdO = S(32, 4), S(36, 4), S(40, 4)
srdX, srdW = [S(44, 4), S(48, 4)], [S(52, 4), S(56, 4)]
sSCALE = S(60, 2)
sRET = S(62, 2)
sW, sB, sH, sP, sW4K, sT0, sT1, sT2 = S(64), S(65), S(66), S(67), S(68), S(3), S(69), S(80)
sSTAMP = S(70, 2)
sKOFF, sVOFF, sKM, sTG, sEND, sITEM = S(81), S(82), S(83), S(84), S(85), S(86)
sXC, sWC, sXM, sWM, sCNT = S(87), [S(88), S(89)], [S(90), S(91)], S(92), S(93)
sHI, sLO, sPM0, sPAD, sFH = S(94), S(95), S(96), S(97), S(98)
sOA = [S(99), S(100)]
sOB = [S(10), S(11)]
sMASK = S(4, 2)
sF, sF2, sFC = S(6), S(7), S(8)
sR0 = S(101)
vKr = [V(1 + i) for i in range(4)]
vVr = [V(5 + i) for i in range(8)]
vKd = [V(13 + i) for i in range(4)]
vVd = [V(17), V(18)]
vIDX = V(19)
vCI = V(20, 4)
vO = [V(24 + i) for i in range(4)]
vRC = V(28, 4)
vT = V(0)
def Sreg(qt, kt): return V(32 + qt * 8 + (4 * kt if qt % 2 else 4 - 4 * kt), 4)
def Preg(qt): return Sreg(qt, 0)
def Qreg(qt, s): return V(64 + qt * 16 + s * 4, 4)
def Oacc(dt, qt): return V(128 + qt * 32 + dt * 4, 4)
def QACC(h, s, tt, qt): return (V(128 + qt * 32 + s * 8 + tt * 4, 4) if h == 0 else A(qt * 32 + s * 8 + tt * 4, 4))
vXg = [V(32 + i) for i in range(8)]
vWd = [[V(40 + i) for i in range(4)], [V(44 + i) for i in range(4)]]
vXr = [[V(48), V(49)], [V(50), V(51)]]
vWr = [V(52 + i) for i in range(8)]
def Kf(kt, s): return A(128 + (kt * 4 + s) * 4, 4)
def Vf(dt): return A(160 + dt * 4, 4)
def Wf(p): return A(160 + (p % 8) * 4, 4)
def XF(ks, qt): return A(192 + (ks * 4 + qt) * 4, 4)
def PKf(s, nt): return A(192 + (s * 3 + nt) * 4, 4)
def Lacc(i): return A(224 + 4 * i, 4)
aONE = A(232, 4)
aPd, aPr, aPq = [A(236), A(237), A(238)], A(239), A(240)
GRAY = [0, 1, 3, 2]
def Kn(t): return f"K{GRAY[t % 4]}"
def Vn(t): return f"V{GRAY[t % 4]}"
WN = ['E1', 'E0', 'V3', 'V2']
def Xn(c, part): return f"privX{c % 2}{part}"
XBASE = [[32768, 49152], [16384, 81920]]

def stamp(idx, t0=V(28), t1=V(29)):
    if not OPT['stamp']: return []
    if OPT['dbg']:
        mp = {0: 1, 1: 2, 2: 3, 3: 4, 4: 5, 18: 6, 19: 7, 21: 8, 20: 9}
        if idx not in mp: return []
        r = [raw(f"s_memtime {sSTAMP}", 'salu', [], [sSTAMP]), raw("s_memrealtime s[78:79]"), raw("s_waitcnt lgkmcnt(0)", 'salu'),
             valu('v_mov_b32', t0, S(78)), valu('v_mov_b32', t1, mp[idx] * 4), raw(f"s_nop 0", 'salu'),
             raw(f"buffer_store_dword {t0}, {t1}, s[72:75], 0 offen", 'vstore'), raw("s_nop 1")]
        if idx in (2, 3, 18, 19):
            r += [valu('v_mov_b32', t0, sSTAMP[0]), valu('v_mov_b32', t1, {2: 10, 3: 11, 18: 12, 19: 13}[idx] * 4), raw("s_nop 0"),
                  raw(f"buffer_store_dword {t0}, {t1}, s[72:75], 0 offen", 'vstore'), raw("s_nop 1")]
        return r
    return [raw(f"s_memtime {sSTAMP}", 'salu', [], [sSTAMP]), raw("s_memrealtime s[78:79]"), raw("s_waitcnt lgkmcnt(0)", 'salu'),
            valu('v_mov_b32', t0, sSTAMP[0]), valu('v_mov_b32', t1, idx * 4), raw(f"s_nop 0", 'salu'),
            raw(f"buffer_store_dword {t0}, {t1}, s[72:75], s76 offen", 'vstore'),
            raw("s_nop 1"), valu('v_mov_b32', t0, S(78)), raw("s_nop 0"),
            raw(f"buffer_store_dword {t0}, {t1}, s[72:75], s76 offen offset:32", 'vstore'), raw("s_nop 1")]

def istamp(base, reg, shift):
    if OPT['stamp'] != 2: return []
    t0, t1 = V(30), V(31)
    return [raw(f"s_memtime {sSTAMP}", 'salu', [], [sSTAMP]), raw(f"s_lshr_b32 s77, {reg}, {shift}"), raw("s_and_b32 s77, s77, 15"), raw(f"s_add_u32 s77, s77, {base}"),
            raw("s_lshl_b32 s77, s77, 2"), raw("s_waitcnt lgkmcnt(0)", 'salu'),
            valu('v_mov_b32', t0, sSTAMP[0]), valu('v_mov_b32', t1, S(77)), raw(f"s_nop 0", 'salu'),
            raw(f"buffer_store_dword {t0}, {t1}, s[72:75], s76 offen", 'vstore'), raw("s_nop 1")]

def probe(k):
    if OPT['stamp'] != 3: return []
    return [raw("s_memrealtime s[78:79]"), raw("s_waitcnt lgkmcnt(0)"), valu('v_mov_b32', V(120 + k), S(78))]
def probes_out(n):
    if OPT['stamp'] != 3: return []
    o = []
    for k in range(n): o += [valu('v_mov_b32', V(29), 4 * (48 + k)), raw("s_nop 0"), raw(f"buffer_store_dword v{120 + k}, v29, s[72:75], s76 offen", 'vstore'), raw("s_nop 1")]
    return o

def set_srd(srd, base, off_lo, nbytes):
    return [salu('s_add_u32', srd[0], base[0], off_lo), salu('s_addc_u32', srd[1], base[1], 0),
            s_mov(srd[2], nbytes), s_mov(srd[3], 0x20000)]
def smul(d, a, b): return salu('s_mul_i32', d, a, b, scc=False)
def flat(groups): return [x for g in groups for x in g]
def csel(d, a, b): return I('s_cselect_b32', f"s_cselect_b32 {d}, {a}, {b}", 'salu', [SCC, a, b], [d])
def advance(reg, step, first=0):
    return [salu('s_add_u32', reg, reg, step), s_cmp('s_cmp_eq_u32', reg, 9 * step + first), csel(reg, first, reg)]
def at(groups, gaps):
    assert len(groups) == len(gaps), (len(groups), len(gaps))
    return [F(g, p, p, tail=all(x.kind in ('wait', 'barrier') for x in g)) for g, p in zip(groups, gaps)]

def dma_K(name, m0, soff=sKOFF, adv=True):
    d = [[m0]] + [[buf_dma(vKd[n], srdK, soff, 1024 * n, name, OPT['kvf'])] for n in range(4)]
    if OPT['xr'] or (isinstance(soff, int) and soff): d = [[salu('s_xor_b32', sXK, soff, sXR), m0]] + [[buf_dma(vKd[n], srdK, sXK, 1024 * n, name, OPT['kvf'])] for n in range(4)]
    if OPT['nodma']: d = [[m0]] + [[s_nop(0)] for n in range(4)]
    return tag_m0(d + ([[salu('s_add_u32', sKOFF, sKOFF, 16384)]] if adv else []))
def dma_V(name, m0, soff=sVOFF, adv=True):
    d = [[m0]] + [[buf_dma(vVd[n % 2], srdV, soff, 1024 * n, name, OPT['kvf'])] for n in range(4)]
    if OPT['xr'] or (isinstance(soff, int) and soff): d = [[salu('s_xor_b32', sXV, soff, sXR), m0]] + [[buf_dma(vVd[n % 2], srdV, sXV, 1024 * n, name, OPT['kvf'])] for n in range(4)]
    if OPT['nodma']: d = [[m0]] + [[s_nop(0)] for n in range(4)]
    return tag_m0(d + ([[salu('s_add_u32', sVOFF, sVOFF, 16384)]] if adv else []))
def dma_X(part, name):
    return tag_m0([[s_mov(M0, sXM[part])]] + [[buf_dma(vXg[4 * part + n], srdX[part], sXC, 1024 * n, name, OPT['xf'])] for n in range(4)])
def dma_W(i, name, m0):
    return tag_m0([[m0]] + [[buf_dma(vWd[i][n], srdW[i], sWC[i], 1024 * n, name, OPT['wf'])] for n in range(4)])
def PK(s, nt): return A(192 + (s * 3 + nt) * 4, 4) if s * 3 + nt < 8 else A(244, 4)
def pack_in():
    t = [vRC[0], vRC[1], vRC[2]]
    out = [[valu('v_accvgpr_read_b32', t[u], aPd[u])] for u in range(3)]
    for s in range(3):
        out.append([salu('s_add_u32', M0, sPM0, s * 3072) if s < 2 else s_mov(M0, sW4K), s_nop(0)])
        out += [[buf_dma(t[u], srdP, sPU[s], 1024 * u, 'privP' if s < 2 else ('privP', Kn(28)), OPT['pf'])] for u in range(3)]
    return tag_m0(out)
def pack_rd():
    ra, rb = vRC[3], vRC[2]
    o = [[valu('v_accvgpr_read_b32', ra, aPr)], [valu('v_accvgpr_read_b32', rb, aPq), wait(vm=['privP'])]]
    for s in range(3):
        o += [[ds_read('ds_read_b64_tr_b16', PK(s, nt).sub(2 * h, 2), ra if s < 2 else rb, (s % 2) * 3072 + h * 1536 + 8 * nt, 'privP') for h in range(2)] for nt in range(3)]
    return o
def pack_st(units): return [[buf_store('buffer_store_dwordx4', PK(s, nt), vT, srdQ, sPV[s], nt * 1024, OPT['pst'])] for s in units for nt in range(3)]

def rd_K(name, half, kt, s): return ds_read('ds_read_b128', Kf(kt, s), vKr[s], half * 8192 + kt * 4096, name)
def rd_V(name, half, dt): return [ds_read('ds_read_b64_tr_b16', Vf(dt).sub(2 * h, 2), vVr[dt], half * 8192 + h * 4096, name) for h in range(2)]
def rd_W(p, h, head, i):
    return [ds_read('ds_read_b64_tr_b16', Wf(p).sub(2 * j, 2), vWr[i], (1 - h % 2) * 16384 + j * 2048 + head * 256, WN[h % 4]) for j in range(2)]
def rd_X(c, ks, qt): return ds_read('ds_read_b128', XF(ks, qt), vXr[qt // 2][ks], (qt % 2) * 2048, Xn(c, qt // 2))

ST = [32, 40, 49, 57]
NP = 66
DG = [[[54, 55, 57, 59, 61, 62], [54, 55, 57, 59, 61, 62]], [[38, 39, 48, 55, 60, 62], [15, 16, 30, 45, 58, 60]]][OPT['dg']]
REP = []
def period_parts(j, B=0, first=False, nxt=True, kg=None, dma=True):
    t, odd = j // 2, j % 2
    mf = []
    for qt in range(4):
        for kt in range(2):
            for s in range(4):
                c = Sreg(qt, kt) if s else (vCI if (qt == 3 and OPT['cinit']) else 0)
                mf.append(mfma(Sreg(qt, kt), Kf(kt, s), Qreg(qt, s), c, SH))
    for qt in range(4):
        if qt % 2: mf.append(smfmac(Lacc(qt // 2), aONE, V(Preg(qt - 1).i, 8), vIDX))
        for dt in range(8): mf.append(mfma(Oacc(dt, qt), Vf(dt), Preg(qt), 0 if first else Oacc(dt, qt), SH))
    fl = []
    prev = None
    for qt in range(4):
        dl = B + ST[qt] - 3
        pc = None
        for kt in range(2):
            lo = B + 8 * qt + 4 * kt + 3 + 4
            ex = []
            for r in range(4):
                prev = F(valu('v_exp_f32', Sreg(qt, kt)[r], Sreg(qt, kt)[r]), lo, dl - 1, after=[prev]); ex.append(prev)
            fl += ex
            for h in range(2):
                pc = F(valu('v_cvt_pk_bf16_f32', Preg(qt)[2 * kt + h], Sreg(qt, kt)[2 * h], Sreg(qt, kt)[2 * h + 1]), lo, dl,
                       after=[(ex[2 * h + 1], 1), pc]); fl.append(pc)
    vr = at([rd_V(Vn(t), odd, dt) for dt in range(8)], [B + g for g in range(8)]); fl += vr
    fl += at([[wait(lg=[Vf(dt) for dt in range(8)])]], [B + 31])
    if nxt:
        kg = kg or [37, 37, 46, 46, 47, 47, 53, 53]
        fl += at([[rd_K(Kn(t + odd), 1 - odd, i // 4, i % 4)] for i in range(8)], [B + g for g in kg])
        fl += at([[wait(lg=0)]], [B + 65])
        if odd:
            fl += at([[wait(vm=[Kn(t + 1), Vn(t + 1)]), s_barrier()]], [B + 36])
            if dma: fl += at(dma_K(Kn(t + OPT['la']), s_mov(M0, sKM)), [B + g for g in DG[0]])
            fl += [F(valu('v_xor_b32', vVr[dt], sTG, vVr[dt]), B + 31, B + 65) for dt in range(8)]
        else:
            if dma: fl += at(dma_V(Vn(t + OPT['la'] - 1), salu('s_add_u32', M0, sKM, 65536)), [B + g for g in DG[1]])
            x = F([salu('s_xor_b32', sKM, sKM, sTG), salu('s_xor_b32', sTG, sTG, 49152)][::1 if OPT['la'] == 4 else -1], B + DG[1][0] + 1, B + 60)
            fl += [x] + [F(valu('v_xor_b32', vKr[s], sTG, vKr[s]), B + 54, B + 65, after=[x]) for s in range(4)]
    return mf, fl
def period(j, extra=(), **kw):
    mf, fl = period_parts(j, **kw)
    return schedule(mf, fl + list(extra), 8, REP)

def q_half(c, hf, last):
    h = 2 * c + hf
    mf = [mfma(QACC(i // 8, (i % 8) // 2, i % 2, qt), Wf(i), XF(hf, qt), QACC(i // 8, (i % 8) // 2, i % 2, qt), SH)
          for i in range(16) for qt in range(4)]
    fl = []
    for i in range(16):
        p = i + 4
        fl += at([rd_W(p, h, p // 8, p % 8) if p < 16 else rd_W(p, h + 1, 0, p - 16)], [4 * i])
    for i in range(2, 18, 2):
        w = [Wf(i), Wf(i + 1)] + ([XF(1 - hf, qt) for qt in range(4)] if i == 16 else [])
        fl += at([[wait(lg=w)]], [4 * i - 1])
    fl += at([[wait(vm=[WN[(h + 1) % 4]]), s_barrier()]], [46])
    if hf == 0:
        fl += at([[rd_X(c, 1, 0), rd_X(c, 1, 2)], [rd_X(c, 1, 1), rd_X(c, 1, 3)],
                  [valu('v_xor_b32', vXr[0][1], 0xC000, vXr[0][1]), valu('v_xor_b32', vXr[1][1], 0x18000, vXr[1][1])]], [1, 2, 5])
        if last and OPT['pl']: fl += at(dma_K((Xn(c, 0), Kn(1)), salu('s_add_u32', M0, sW4K, 16384), 16384, False), [17, 18, 22, 26, 30])
        else:
            fl += at(dma_X(0, (Xn(c, 0), Kn(1)) if last else Xn(c, 0)), [17, 18, 22, 26, 30])
            fl += at([[salu('s_xor_b32', sXM[0], sXM[0], 0xC000)]], [33])
        fl += at(dma_W(0, WN[(h + 3) % 4], salu('s_xor_b32', M0, sWM, 0x38000)) + [advance(sWC[0], 524288, 262144)], [49, 50, 53, 57, 61, 62])
    else:
        if last and OPT['pl']: fl += at(dma_V((Xn(c, 1), Vn(1)), salu('s_add_u32', M0, sW4K, 81920), 16384, False), [1, 2, 6, 10, 14])
        else:
            fl += at(dma_X(1, (Xn(c, 1), Vn(1)) if last else Xn(c, 1)), [1, 2, 6, 10, 14])
            fl += at([[salu('s_xor_b32', sXM[1], sXM[1], 0x18000)], advance(sXC, 128)], [17, 18])
        fl += at([[wait(vm=[Xn(c + 1, 0), Xn(c + 1, 1)])], [rd_X(c + 1, 0, 0), rd_X(c + 1, 0, 2)], [rd_X(c + 1, 0, 1), rd_X(c + 1, 0, 3)],
                  [valu('v_xor_b32', vXr[0][0], 0xC000, vXr[0][0]), valu('v_xor_b32', vXr[1][0], 0x18000, vXr[1][0])]], [37, 38, 41, 42])
        fl += at([[valu('v_xor_b32', vWr[i], 0x38000, vWr[i])] for i in range(8)], [19, 21, 25, 29, 33, 37, 43, 45])
        if last and OPT['pl']:
            if OPT['la'] == 4 and not OPT['gv']: fl += at(dma_V(Vn(2), salu('s_add_u32', M0, sW4K, 114688), 32768, False), [49, 50, 53, 57, 61])
        else:
            fl += at(dma_W(1, WN[(h + 3) % 4], salu('s_add_u32', M0, sWM, 16384)) + [advance(sWC[1], 524288)], [49, 50, 53, 57, 61, 62])
            fl += at([[salu('s_xor_b32', sWM, sWM, 0x38000)]], [51])
    return schedule(mf, fl, 8, REP)

def q_loop():
    NR = 7 if OPT['pl'] else 8
    bodies = []
    for c in range(NR):
        b = [label('L_q')] + istamp(32, sCNT, 0) + q_half(c, 0, c == 7) + q_half(c, 1, c == 7)
        b += [salu('s_add_u32', sCNT, sCNT, 1), s_cmp('s_cmp_lg_u32', sCNT, sLIM), s_branch('s_cbranch_scc1', 'L_q')]
        bodies.append(b)
    rolled('q', bodies)
    blk = {}
    a = flat(dma_K(Kn(0), s_mov(M0, sW4K), 0, False)); a.insert(1 + bool(OPT['xr']), s_nop(0))
    b = flat(dma_V(Vn(0), salu('s_add_u32', M0, sW4K, 65536), 0, False)); b.insert(1 + bool(OPT['xr']), s_nop(0))
    blk.setdefault(OPT['kv0'], []).extend(a + b)
    if not OPT['pl']:
        sw = []
        for d, s in ((srdX[0], srdK), (srdX[1], srdV), (srdW[1], srdV)):
            sw += [s_mov(d[k], s[k]) for k in range(3)]
        sw += [salu('s_xor_b32', sXC, sXR, 16384), salu('s_xor_b32', sWC[1], sXR, 32768)]
        for n in range(4):
            sw += [valu('v_mov_b32', vXg[n], vKd[n]), valu('v_mov_b32', vXg[4 + n], vVd[n % 2]), valu('v_mov_b32', vWd[1][n], vVd[n % 2])]
        blk.setdefault(6, []).extend(sw)
    cs = sorted(blk)
    static, trace = bodies[0][:], []
    full = {}
    for k, c in enumerate(cs):
        hd = [label(f'L_q{k}'), s_cmp('s_cmp_lg_u32', sCNT, c + 1), s_branch('s_cbranch_scc1', f'L_q{k + 1}' if k + 1 < len(cs) else 'L_qtail')]
        full[c] = hd + blk[c] + [s_mov(sLIM, (cs + [NR - 1])[k + 1] + 1), s_branch('s_branch', 'L_q')]
        static += full[c]
    for c in range(NR): trace += bodies[c] + full.get(c, [])
    return static, trace, cs[0] + 1

def conv(h, qt, s, tmp=None, pk=True):
    q = Qreg(qt, s)
    g = []
    src = V(QACC(0, s, 0, qt).i, 8) if h == 0 else tmp
    if h == 1: g += [[valu('v_accvgpr_read_b32', tmp[i], A(QACC(1, s, 0, qt).i + i))] for i in range(8)]
    if pk: g += [[pk_mul_s(src.sub(2 * i, 2), sSCALE)] for i in range(4)]
    else: g += [[valu('v_mul_f32', src[i], sSCALE[0], src[i])] for i in range(8)]
    g += [[valu('v_cvt_pk_bf16_f32', q[i], src[2 * i], src[2 * i + 1])] for i in range(4)]
    return g, [[perm16(q[0], q[2])], [perm16(q[1], q[3])]]
def l_init():
    return [[valu('v_accvgpr_write_b32', Lacc(i // 4)[i % 4], sPAD if i == 6 else 0)] for i in range(8)]

def q_tail():
    seq = [(hd, ks, i) for hd in range(2) for ks in range(2) for i in range(8)]
    mf = [mfma(QACC(hd, i // 2, i % 2, qt), Wf(p), XF(ks, qt), QACC(hd, i // 2, i % 2, qt), SH)
          for p, (hd, ks, i) in enumerate(seq) for qt in range(4)]
    B = 128
    m0, fl = period_parts(0, B, first=True)
    mf += m0
    for p in range(4, 32): fl += at([rd_W(p, 16 + seq[p][1], seq[p][0], seq[p][2])], [4 * (p - 4)])
    for p in range(2, 32, 2): fl += at([[wait(lg=[Wf(p), Wf(p + 1)] + ([XF(1, qt) for qt in range(4)] if p == 8 else []))]], [4 * p - 1])
    fl += at([[rd_X(8, 1, 0), rd_X(8, 1, 2)], [rd_X(8, 1, 1), rd_X(8, 1, 3)], [wait(vm=['E0']), s_barrier()]], [1, 2, 14])
    fl += at(dma_K((Kn(2), Xn(8, 1)), salu('s_add_u32', M0, sW4K, 49152)), [OPT['g2'] + g for g in (0, 1, 4, 5, 8, 9)])
    if OPT['la'] == 4:
        fl += at(dma_K((Kn(3), Xn(8, 0)), s_mov(M0, sKM)), [OPT['g3'] + g for g in (0, 1, 4, 5, 8, 9)])
        if OPT['gv']: fl += at(dma_V(Vn(2), salu('s_add_u32', M0, sW4K, 114688), 32768, False), [OPT['gv'] + g for g in (0, 1, 4, 5, 8)])
    fl += chain(l_init(), 5, 40, step=1)
    fl += at([[wait(vm=[Kn(0), Vn(0)], lg=0), s_barrier()]], [119])
    fl += at([[rd_K(Kn(0), 0, i // 4, i % 4)] for i in range(8)], [120, 120, 121, 121, 122, 122, 123, 123])
    fl += at([[wait(lg=[Kf(0, s) for s in range(4)])], [wait(lg=[Kf(1, s) for s in range(4)])]], [127, B + 3])
    prev, sw = None, []
    order = [(qt, s) for s in range(3) for qt in range(4)] + [(qt, 3) for qt in range(4)]
    order.sort(key=lambda x: (x[1] if x[1] < 2 else 2, x[0]))
    for qt, s in order:
        g, p16 = conv(0, qt, s, pk=OPT['pk0'])
        lo = 4 * (9 + 2 * s) + qt + 5
        hi = B + 8 * qt - 2
        ch = chain(g + [[s_nop(0)]] + p16[:1] + p16[1:], lo, hi, after=[prev], per=0); prev = ch[-1]; fl += ch
    return schedule(mf, fl, 8, REP)

sites = []
def check_parts():
    t = [V(32 + i) for i in range(8)]
    g = [[valu('v_accvgpr_read_b32', t[i], Lacc(i // 4)[i % 4])] for i in range(8)]
    g += [[valu('v_add_f32', vRC[q], t[2 * q], t[2 * q + 1])] for q in range(4)]
    g += [[valu('v_add_f32', t[0], vRC[0], vRC[1])], [valu('v_add_f32', t[1], vRC[2], vRC[3])], [valu('v_min3_f32', t[2], vRC[0], vRC[1], vRC[2])],
          [valu('v_add_f32', t[0], t[0], t[1])], [valu('v_min_f32', t[2], t[2], vRC[3])], [v_cmp('v_cmp_ngt_f32', sHI, t[0])],
          [I('v_cmp_gt_f32', f"v_cmp_gt_f32_e64 {sMASK}, {sLO}, {t[2]}", 'valu', [sLO, t[2]], [sMASK])]]
    k = len(sites); sites.append(k)
    br = [s_nop(0), I('s_or_b64', f"s_or_b64 {sMASK}, {sMASK}, vcc", 'salu', [sMASK, VCC], [sMASK, SCC]),
          s_branch('s_cbranch_scc0' if OPT['forcefb'] else 's_cbranch_scc1', f"L_tramp{k}"), label(f"L_ret{k}")]
    return g, br
def with_check(mf, fl, B, pad):
    ck, br = check_parts()
    c1 = chain(ck[:4], B + 50, B + 62, per=0)
    return schedule(mf, fl + c1 + chain([[s_nop(pad)]] + ck[4:], B + 64, B + 65, per=0, after=c1[-1:]), 8, REP) + br
def parked(qt):
    return [buf_store('buffer_store_dwordx4', A(32 * qt + 4 * m, 4), vO[qt], srdO, sOB[m // 2], (m % 2) * OU, OPT['ost']) for m in range(4)]
def epilogue(qt, mid=False):
    g = []
    for m in range(4):
        o = V(Oacc(2 * m, qt).i, 8)
        g += [[pk_mul_v(o.sub(2 * i, 2), vRC.sub(qt & 2, 2), qt & 1)] for i in range(4)]
        g += [[valu('v_cvt_pk_bf16_f32', o[i], o[2 * i], o[2 * i + 1])] for i in range(4)]
        if mid: g += [[valu('v_accvgpr_write_b32', A(32 * qt + 4 * m + i), o[i])] for i in range(4)]
        else: g += [[buf_store('buffer_store_dwordx4', o.sub(0, 4), vO[qt], srdO, sOA[m // 2], (m % 2) * OU, OPT['ost'])]]
    return g
def rcp(): return [valu('v_rcp_f32', vRC[q], vRC[q]) for q in range(4)]

def boundary():
    o = [label('L_mid')] + with_check(*period_parts(31), 0, 1) + stamp(4, V(32), V(33)) + stamp(16, V(32), V(33)) + stamp(17, V(32), V(33))
    o += rcp() + flat(l_init())
    o += [s_mov(sITEM, 1), s_mov(sFH, 262144), salu('s_add_u32', sEND, sEND, 262144 - 16384 * OPT['npl']), s_mov(sOB[0], sOA[0]), s_mov(sOB[1], sOA[1])]
    tmp = V(56, 8)
    def cv(qt):
        out, pend = [], []
        for s in range(4):
            g, p = conv(1, qt, s, tmp)
            out += g[:2] + pend + g[2:]; pend = p
        return out + [[s_nop(1)]] + pend
    o += flat(cv(0)) + flat(epilogue(0, True)) + [s_nop(1)]
    e, prev = [], None
    for qt in range(1, 4):
        ch = chain(cv(qt), 8 * qt - 8, 8 * qt - 2, after=[prev], per=0); prev = ch[-1]; e += ch
    for qt in range(1, 4):
        ch = chain(epilogue(qt, True), 20, ST[qt] - 3, after=[prev], per=0); prev = ch[-1]; e += ch
    e += chain([[salu('s_add_u32', sOA[0], sOA[0], 4 * OU), salu('s_add_u32', sOA[1], sOA[1], 4 * OU)]], 40, 65, after=[prev], per=0)
    return o + period(32, extra=e, first=True)
def final():
    mf, fl = [], []
    n = 2 * OPT['npl'] + 1
    for k in range(n):
        m, f = period_parts(64 - n + k, NP * k, nxt=k < n - 1, dma=False)
        mf += m; fl += f
    B = NP * (n - 1)
    pi = chain(pack_in(), 0, 13, per=0)
    pr = chain(pack_rd(), OPT['prd'], OPT['prd'] + 40, step=3, per=0)
    pw = F(wait(lg=[PK(s, nt) for s in range(3) for nt in range(3)]), OPT['prd'] + 40, OPT['prd'] + 60, after=[pr[-1]])
    st = [[x] for qt in range(4) for x in parked(qt)] + pack_st(range(3))
    lo, hi = OPT['st0'], NP * n + OPT['st1']
    st = chain(st, lo, hi, step=(hi - lo) / len(st), per=0, slack=6, after=pi[-1:])
    st[16].after.append((pw, 0))
    if OPT['nopk'] == 1: st = st[:16]
    if OPT['nopk'] == 2: st = []
    o = [label('L_last')] + with_check(mf, fl + pi + pr + [pw] + st, B, 4) + stamp(21, V(40), V(41)) + rcp()
    for qt in range(4): o += flat(epilogue(qt))
    return o + stamp(20, V(32), V(33))

def fallback():
    vk, vv, ad, f, t, t2 = V(32), [V(33), V(34)], V(35), V(36), V(37), V(38)
    m, s8 = [V(40 + q) for q in range(4)], V(48, 8)
    l = [vRC[q] for q in range(4)]
    def FK(kt, s): return A(192 + (kt * 4 + s) * 4, 4)
    def xmax(op, x):
        return [valu('v_mov_b32', t2, x), s_nop(1), perm16(x, t2), valu(op, x, x, t2), valu('v_mov_b32', t2, x), s_nop(1), permswap(x, t2), valu(op, x, x, t2)]
    o = [label('L_fb'), s_nop(15), raw('s_waitcnt vmcnt(0) lgkmcnt(0)')]
    o += [raw(f"v_mbcnt_lo_u32_b32 {t}, -1, 0", 'valu', [], [t]), raw(f"v_mbcnt_hi_u32_b32 {t}, -1, {t}", 'valu', [t], [t]),
          valu('v_and_b32', t2, 15, t), valu('v_lshrrev_b32', t, 4, t), valu('v_lshlrev_b32', t2, 8, t2), valu('v_lshl_add_u32', vk, t, 4, t2),
          valu('v_subrev_u32', vv[0], sW4K, vVd[0]), valu('v_subrev_u32', vv[1], sW4K, vVd[1])]
    for q in range(4): o += [valu('v_mov_b32', m[q], f2u(-3.0e38)), valu('v_mov_b32', l[q], 0)]
    for i in range(128): o.append(valu('v_mov_b32', V(128 + i), 0))
    o += [s_mov(sF, sFH), s_mov(sFC, 32), label('L_fb_loop'), salu('s_add_u32', sF2, sF, 4096)]
    for kt in range(2):
        o += [buf_load('buffer_load_dwordx4', FK(kt, s), vk, srdK, [sF, sF2][kt], 64 * s) for s in range(4)]
        o += [salu('s_add_u32', M0, sPM0, 4096 * kt), s_nop(0)] + [buf_dma(vv[n % 2], srdV, [sF, sF2][kt], 1024 * n, 'privF') for n in range(4)]
    o += [wait(vm=0)]
    for dt in range(8):
        o += [valu('v_and_b32', ad, 0x1fff, vVr[dt]), valu('v_add_u32', ad, sPM0, ad), s_nop(0)]
        o += [ds_read('ds_read_b64_tr_b16', Vf(dt).sub(2 * h, 2), ad, h * 4096, 'privF') for h in range(2)]
    o += [wait(lg=0)]
    for q in range(4):
        for kt in range(2):
            d = s8.sub(4 * kt, 4)
            o += [mfma(d, FK(kt, s), Qreg(q, s), d if s else 0, SH) for s in range(4)]
        o += [s_nop(9), valu('v_max3_f32', t, s8[0], s8[1], s8[2]), valu('v_max3_f32', t, t, s8[3], s8[4]), valu('v_max3_f32', t, t, s8[5], s8[6]),
              valu('v_max3_f32', t, t, s8[7], m[q])] + xmax('v_max_f32', t)
        o += [valu('v_sub_f32', f, m[q], t), valu('v_exp_f32', f, f), valu('v_mov_b32', m[q], t)]
        for i in range(8): o += [valu('v_sub_f32', s8[i], s8[i], t), valu('v_exp_f32', s8[i], s8[i])]
        o += [valu('v_mul_f32', l[q], l[q], f)]
        o += [valu('v_cvt_pk_bf16_f32', s8[i], s8[2 * i], s8[2 * i + 1]) for i in range(4)]
        for i in range(4):
            o += [valu('v_lshlrev_b32', t, 16, s8[i]), valu('v_and_b32', t2, 0xffff0000, s8[i]), valu('v_add_f32', l[q], l[q], t), valu('v_add_f32', l[q], l[q], t2)]
        o += [valu('v_mul_f32', V(128 + 32 * q + i), V(128 + 32 * q + i), f) for i in range(32)]
        o += [s_nop(1)] + [mfma(Oacc(dt, q), Vf(dt), s8.sub(0, 4), Oacc(dt, q), SH) for dt in range(8)] + [s_nop(7)]
    o += [salu('s_add_u32', sF, sF, 8192), salu('s_sub_u32', sFC, sFC, 1), s_cmp('s_cmp_lg_u32', sFC, 0), s_branch('s_cbranch_scc1', 'L_fb_loop')]
    for q in range(4): o += xmax('v_add_f32', l[q])
    o += [s_nop(9), raw(f"s_setpc_b64 {sRET}", 'branch', [sRET])]
    return o

def k1_setup():
    u = [V(64 + i) for i in range(12)]
    l, g, q, t0, t1, t2, t3, r, c = u[:9]
    o = [s_cmp('s_cmp_ge_u32', S(2), 256), s_branch('s_cbranch_scc1', 'L_k1_end')]
    o += [s_load('s_load_dwordx8', S(4, 8), S(0, 2), 0), s_load('s_load_dwordx2', pWO, S(0, 2), 32),
          s_load('s_load_dwordx8', S(32, 8), S(0, 2), 40), s_load('s_load_dwordx2', S(40, 2), S(0, 2), 72),
          s_load('s_load_dwordx2', pWS, S(0, 2), 96)]
    o += [salu('s_bfe_u32', sP, S(2), 0x10002), salu('s_and_b32', sT0, S(2), 1), salu('s_lshl_b32', sT0, sT0, 2), salu('s_bfe_u32', sT1, S(2), 0x20003),
          salu('s_add_u32', sB, sT0, sT1), salu('s_lshl_b32', sT1, sT1, 1),
          salu('s_lshr_b32', sT2, S(2), 5), salu('s_add_u32', sR0, sT1, sT2), s_cmp('s_cmp_ge_u32', sR0, 9),
          csel(sT1, 9, 0), salu('s_sub_u32', sR0, sR0, sT1),
          salu('s_and_b32', sT0, S(2), 2), salu('s_lshl_b32', sT0, sT0, 2), salu('s_add_u32', sH, sT0, sT2), salu('s_lshl_b32', sH, sH, 1)]
    if not OPT['rot']: o.append(s_mov(sR0, 0))
    o += [salu('s_lshl_b32', sXC, sR0, 7), salu('s_lshl_b32', sWC[1], sR0, 19), salu('s_add_u32', sWC[0], sWC[1], 262144)]
    o += [valu('v_lshrrev_b32', t0, 6, vT), valu('v_and_b32', l, 63, vT), readfirstlane(sW, t0),
          valu('v_lshrrev_b32', g, 4, l), valu('v_and_b32', q, 15, l), valu('v_lshrrev_b32', t1, 3, l), salu('s_lshl_b32', sW4K, sW, 12)]
    o += [smul(sT0, sW, 64 * 1152), valu('v_mul_u32_u24', t0, 1152, t1), valu('v_and_b32', t2, 7, l), valu('v_xor_b32', t2, t2, g),
          valu('v_add_u32', t0, sT0, t0), valu('v_lshl_add_u32', vXg[0], t2, 4, t0), valu('v_xor_b32', t2, 4, t2), valu('v_lshl_add_u32', t3, t2, 4, t0)]
    for n in range(1, 8): o.append(valu('v_add_u32', vXg[n], n * 9216 - 1024 * (n % 4), t3 if n % 2 else vXg[0]))
    o += [valu('v_lshrrev_b32', t1, 5, l), valu('v_and_b32', t2, 31, l), valu('v_xor_b32', t2, t2, t1), salu('s_and_b32', sT0, sW, 1),
          salu('s_lshl_b32', sT0, sT0, 3), valu('v_xor_b32', t2, sT0, t2), salu('s_lshl_b32', sT1, sW, 16), valu('v_lshlrev_b32', t1, 13, t1),
          valu('v_add_u32', t0, sT1, t1), valu('v_lshl_add_u32', vWd[0][0], t2, 4, t0), valu('v_xor_b32', t2, 4, t2), valu('v_lshl_add_u32', t3, t2, 4, t0)]
    for n in range(1, 4): o.append(valu('v_add_u32', vWd[0][n], n * (16384 - 1024), t3 if n % 2 else vWd[0][0]))
    for n in range(4): o.append(valu('v_mov_b32', vWd[1][n], vWd[0][n]))
    o += [salu('s_add_u32', sXM[0], sW4K, XBASE[0][0]), salu('s_add_u32', sXM[1], sW4K, XBASE[0][1]), salu('s_add_u32', sWM, sW4K, 131072)]
    o += [wait(lg=0)] + probe(0) + [s_cmp('s_cmp_eq_u32', sP, 0)]
    for d, s1 in ((pX, S(32, 2)), (pWQ, S(38, 2)), (pK, S(34, 2)), (pV, S(36, 2)), (pWO, S(40, 2))):
        o.append(I('s_cselect_b64', f"s_cselect_b64 {d}, {d}, {s1}", 'salu', [d, s1, SCC], [d]))
    o += [smul(sT0, sB, 276480)] + set_srd(srdX[0], pX, sT0, 276480) + set_srd(srdX[1], pX, sT0, 276480)
    o += [salu('s_lshl_b32', sT0, sH, 8), salu('s_sub_u32', sT1, 576 * 8192, sT0)] + set_srd(srdW[0], pWQ, sT0, sT1) + set_srd(srdW[1], pWQ, sT0, sT1)
    def nop1(x): x = flat(x); x.insert(1, s_nop(0)); return x
    def xload(c):
        return nop1(dma_X(0, Xn(c, 0))) + nop1(dma_X(1, Xn(c, 1))) + advance(sXC, 128) + \
               [salu('s_xor_b32', sXM[0], sXM[0], 0xC000), salu('s_xor_b32', sXM[1], sXM[1], 0x18000)]
    o += xload(0) + nop1(dma_W(1, 'E1', salu('s_add_u32', M0, sWM, 16384))) + advance(sWC[1], 524288)
    if OPT['e0']: o += nop1(dma_W(0, 'E0', s_mov(M0, sWM))) + advance(sWC[0], 524288, 262144)
    o += probe(1)
    late = [] if OPT['e0'] else nop1(dma_W(0, 'E0', s_mov(M0, sWM))) + advance(sWC[0], 524288, 262144)
    late += xload(1) + nop1(dma_W(1, 'V3', salu('s_add_u32', M0, sW4K, 114688))) + advance(sWC[1], 524288)
    z = V(60, 4)
    o += [valu('v_mov_b32', z[i], 0) for i in range(4)] + [s_nop(1)]
    zero = [mfma(r, z, z, 0) for i in range(8) for r in (V(128 + 16 * i, 16), A(16 * i, 16))]
    mark = len(o)
    o += [salu('s_lshl_b32', sT0, sB, 5), salu('s_add_u32', sT0, sT0, sH), salu('s_lshl_b32', sT0, sT0, 18)]
    o += set_srd(srdK, pK, sT0, 524288) + set_srd(srdV, pV, sT0, 524288)
    o += [smul(sT0, sP, O_BYTES)] + set_srd(srdO, pWS, sT0, O_BYTES)
    o += set_srd(srdP, pWO, 0, PACK_BYTES)
    o += [smul(sT0, sP, PACK_BYTES), salu('s_add_u32', sT0, sT0, PACK_OFF)] + set_srd(srdQ, pWS, sT0, PACK_BYTES)
    if OPT['stamp']:
        if OPT['dbg']:
            o += set_srd(S(72, 4), pWS, 200 * 1024 * 1024, 0) + [salu('s_lshl_b32', S(76), S(2), 2), salu('s_add_u32', S(76), S(76), sW),
                  s_cmp('s_cmp_eq_u32', S(76), 4 * OPT['dbg']), raw("s_cselect_b32 s74, 64, 0"), s_mov(S(76), 0)]
        else:
            o += set_srd(S(72, 4), pWS, 200 * 1024 * 1024, 1024 * 1024)
            o += [salu('s_lshl_b32', S(76), S(2), 2), salu('s_add_u32', S(76), S(76), sW), salu('s_lshl_b32', S(76), S(76), 8)]
    if OPT['xr'] == 0: o += [s_mov(sXR, 0)]
    if OPT['xr'] == 1: o += [salu('s_bfe_u32', sXR, S(2), 0x40003), salu('s_lshl_b32', sXR, sXR, 14)]
    if OPT['xr'] == 2: o += [salu('s_and_b32', sXR, S(2), 15), salu('s_lshl_b32', sXR, sXR, 14)]
    if OPT['xr'] == 3: o += [salu('s_lshr_b32', sXR, S(2), 4), salu('s_xor_b32', sXR, sXR, S(2)), salu('s_and_b32', sXR, sXR, 15), salu('s_lshl_b32', sXR, sXR, 14)]
    o += [s_mov(sKOFF, 32768), s_mov(sVOFF, 16384 * (OPT['la'] - 1)), s_mov(sITEM, 0), s_mov(sFH, 0), s_mov(sCNT, 0), s_mov(sTG, 32768), s_mov(sEND, (15 + OPT['la']) * 16384),
          salu('s_add_u32', sKM, sW4K, 32768 if OPT['la'] == 4 else 49152), salu('s_lshl_b32', sOA[0], sH, 12 if OPT['s16'] else 13), salu('s_add_u32', sOA[1], sOA[0], 2 * OU)]
    c_scale = math.log2(math.e) / math.sqrt(128.0)
    o += [s_mov(sHI, f2u(2.0 ** 40)), s_mov(sLO, f2u(2.0 ** -40)), s_mov(sSCALE[0], f2u(c_scale)), s_mov(sSCALE[1], f2u(c_scale))]
    o += [s_cmp('s_cmp_eq_u32', sW, 3), csel(sT0, f2u(-1.0e30), 0), csel(sPAD, f2u(1.0), 0)] + [valu('v_mov_b32', vCI[i], sT0) for i in range(4)]
    o += [valu('v_lshlrev_b32', t0, 8, g), valu('v_add_u32', t0, sW4K, t0)]
    for n in range(4): o += [valu('v_add_u32', t3, 4 * n, g), valu('v_xor_b32', t3, t3, q), valu('v_lshl_add_u32', vKd[n], t3, 4, t0)]
    o += [valu('v_lshlrev_b32', t3, 1, g), valu('v_xor_b32', t3, t3, q), valu('v_lshl_add_u32', vVd[0], t3, 4, t0), valu('v_xor_b32', vVd[1], 128, vVd[0])]
    o += [valu('v_lshrrev_b32', t2, 1, q), valu('v_xor_b32', t2, t2, g), valu('v_lshlrev_b32', t1, 7, q), valu('v_add_u32', t1, sW4K, t1),
          valu('v_lshl_add_u32', t1, t2, 4, t1), valu('v_xor_b32', t3, 64, t1)]
    for part in range(2): o += [valu('v_add_u32', vXr[part][0], XBASE[0][part], t1), valu('v_add_u32', vXr[part][1], XBASE[0][part], t3)]
    o += [valu('v_xor_b32', t2, g, q), valu('v_lshlrev_b32', t1, 8, q), valu('v_lshl_add_u32', vKr[0], t2, 4, t1)]
    for s in range(1, 4): o.append(valu('v_xor_b32', vKr[s], 64 * s, vKr[0]))
    o += [valu('v_lshrrev_b32', r, 2, q), valu('v_and_b32', c, 3, l), valu('v_lshl_add_u32', t0, g, 2, r), valu('v_and_b32', t2, 7, t0),
          valu('v_lshlrev_b32', t1, 8, t0), valu('v_lshl_add_u32', t1, t2, 5, t1), valu('v_lshl_add_u32', t1, c, 3, t1), valu('v_add_u32', vVr[0], 65536, t1)]
    for dt in range(1, 8): o.append(valu('v_xor_b32', vVr[dt], 32 * dt, vVr[0]))
    o += [valu('v_lshl_add_u32', t0, g, 3, r), valu('v_lshlrev_b32', t0, 9, t0), valu('v_and_b32', t1, 1, c), valu('v_lshl_add_u32', t0, t1, 3, t0),
          valu('v_and_b32', t1, 2, c), valu('v_and_b32', t2, 1, r), valu('v_or_b32', t1, t1, t2), valu('v_and_b32', t2, 2, r), valu('v_lshl_or_b32', t1, t2, 1, t1),
          valu('v_and_b32', t2, 1, g), valu('v_lshl_or_b32', t1, t2, 3, t1), valu('v_lshl_add_u32', t0, t1, 4, t0), valu('v_add_u32', vWr[0], 131072, t0)]
    for i in range(1, 8): o.append(valu('v_xor_b32', vWr[i], (4 * (i // 2) + i % 2) * 16, vWr[0]))
    o += [valu('v_lshrrev_b32', t0, 5, l), valu('v_bfe_u32', t1, l, 1, 1), v_cmp('v_cmp_eq_u32', t0, t1), valu('v_mov_b32', t2, 0x3f803f80), valu('v_and_b32', t3, 1, l),
          valu('v_cndmask_b32', t2, 0, t2, VCC), valu('v_mul_u32_u24', t3, 0xaaaa, t3), valu('v_add_u32', vIDX, 0x4444, t3)]
    o += [valu('v_accvgpr_write_b32', aONE[i], t2) for i in range(4)]
    if OPT['s16']:
        o += [salu('s_lshl_b32', sPM0, sW, 13), salu('s_add_u32', sPM0, sPM0, 131072), valu('v_lshl_add_u32', t0, g, 2, r), valu('v_mul_u32_u24', t0, 96, t0),
              valu('v_mul_u32_u24', t1, 24, c), valu('v_add3_u32', t0, t0, t1, sPM0),
              valu('v_lshlrev_b32', vT, 4, l), valu('v_accvgpr_write_b32', aPr, t0), valu('v_subrev_u32', t0, sPM0, t0), valu('v_add_u32', t0, sW4K, t0),
              valu('v_accvgpr_write_b32', aPq, t0)]
        for k in range(3):
            o += [valu('v_add_u32', t0, 64 * k, l), valu('v_mul_u32_u24', t1, 171, t0), valu('v_lshrrev_b32', t1, 10, t1),
                  valu('v_mul_u32_u24', t2, 6, t1), valu('v_sub_u32', t2, t0, t2),
                  valu('v_mul_u32_u24', t1, 1152, t1), valu('v_lshl_add_u32', t1, t2, 4, t1), valu('v_subrev_u32', t1, 1024 * k, t1),
                  valu('v_accvgpr_write_b32', aPd[k], t1)]
        o += [smul(sT1, sB, 15), salu('s_lshl2_add_u32', sT1, sW, sT1), salu('s_lshl_b32', sT1, sT1, 17), valu('v_add_u32', vO[0], sT1, vT),
              s_mov(sT2, 3 * 131072), s_cmp('s_cmp_eq_u32', sW, 3), I('s_cselect_b32', f"s_cselect_b32 {sT1}, {HUGE}, {sT2}", 'salu', [SCC, sT2], [sT1]),
              valu('v_add_u32', vO[1], 131072, vO[0]), valu('v_add_u32', vO[2], 2 * 131072, vO[0]), valu('v_add_u32', vO[3], sT1, vO[0])]
        o += [salu('s_and_b32', sT0, S(2), 3), salu('s_lshl_b32', sT0, sT0, 5), salu('s_lshr_b32', sT1, S(2), 3), salu('s_add_u32', sT0, sT0, sT1),
              smul(sPU[0], sT0, 32 * 1152), smul(sT1, sW, 288), salu('s_add_u32', sPU[0], sPU[0], sT1),
              salu('s_add_u32', sPU[1], sPU[0], 96), salu('s_add_u32', sPU[2], sPU[0], 192), smul(sT0, sT0, 6144), smul(sT1, sW, 3)]
        for s in range(3):
            o += [salu('s_lshr_b32', sT2, sT1, 1), smul(sT2, sT2, 786432), salu('s_add_u32', sPV[s], sT0, sT2),
                  salu('s_and_b32', sT2, sT1, 1), smul(sT2, sT2, 3072), salu('s_add_u32', sPV[s], sPV[s], sT2)] + ([salu('s_add_u32', sT1, sT1, 1)] if s < 2 else [])
    else:
        o += [salu('s_lshl_b32', sPM0, sW, 13), salu('s_add_u32', sPM0, sPM0, 131072), valu('v_lshl_add_u32', t0, t0, 2, r), valu('v_mul_u32_u24', t0, 192, t0),
              valu('v_and_b32', t1, 1, g), valu('v_lshl_add_u32', t1, t1, 2, c), valu('v_mul_u32_u24', t1, 24, t1), valu('v_add3_u32', t0, t0, t1, sPM0),
              valu('v_lshlrev_b32', vT, 4, l), valu('v_accvgpr_write_b32', aPr, t0), valu('v_subrev_u32', t0, sPM0, t0), valu('v_add_u32', t0, sW4K, t0),
              valu('v_accvgpr_write_b32', aPq, t0)]
        for k in range(3):
            o += [valu('v_add_u32', t0, 64 * k, l), valu('v_mul_u32_u24', t1, 171, t0), valu('v_lshrrev_b32', t1, 11, t1),
                  valu('v_mul_u32_u24', t2, 12, t1), valu('v_sub_u32', t2, t0, t2), valu('v_and_b32', t3, 8, t1), valu('v_add_u32', t1, t1, t3),
                  valu('v_mul_u32_u24', t1, 1152, t1), valu('v_lshl_add_u32', t1, t2, 4, t1), valu('v_subrev_u32', t1, 1024 * k, t1),
                  valu('v_accvgpr_write_b32', aPd[k], t1)]
        o += [salu('s_lshl_b32', sT0, sW, 6), valu('v_add_u32', t0, sT0, q), smul(sT1, sB, 240)]
        for qt in range(4):
            o += [valu('v_add_u32', t1, 16 * qt, t0),
                  valu('v_add_u32', t2, sT1, t1), valu('v_lshrrev_b32', t3, 5, t2), valu('v_lshlrev_b32', t3, 18, t3),
                  valu('v_and_b32', t2, 31, t2), valu('v_lshl_add_u32', t3, t2, 4, t3), valu('v_lshl_add_u32', t3, g, 9, t3),
                  v_cmp('v_cmp_gt_u32', 240, t1), valu('v_mov_b32', t2, HUGE), s_nop(0),
                  valu('v_cndmask_b32', vO[qt], t2, t3, VCC)]
        o += [salu('s_and_b32', sT0, S(2), 3), salu('s_lshl_b32', sT0, sT0, 5), salu('s_lshr_b32', sT1, S(2), 3), salu('s_add_u32', sT0, sT0, sT1),
              salu('s_lshr_b32', sT2, sW, 1), salu('s_and_b32', sT1, sW, 1), smul(sPU[0], sT0, 32 * 1152), smul(sPU[1], sT2, 8 * 1152), smul(sPU[2], sT1, 576),
              salu('s_add_u32', sPU[0], sPU[0], sPU[1]), salu('s_add_u32', sPU[0], sPU[0], sPU[2]),
              salu('s_add_u32', sPU[1], sPU[0], 192), salu('s_add_u32', sPU[2], sPU[0], 384),
              salu('s_lshl1_add_u32', sT2, sT0, sT2), smul(sT2, sT2, 3072), smul(sPV[0], sT1, 3 * 786432), salu('s_add_u32', sPV[0], sPV[0], sT2),
              salu('s_add_u32', sPV[1], sPV[0], 786432), salu('s_add_u32', sPV[2], sPV[0], 2 * 786432)]
    rest, o = o[mark:], o[:mark]
    for i, x in enumerate(rest):
        if i % 12 == 0 and zero and x.kind != 'nop' and (not o or o[-1].kind != 'nop'): o.append(zero.pop(0))
        o.append(x)
    assert not zero
    return o + probe(2) + late + probe(3)

def kernel1():
    qs, qtr, lim = q_loop()
    head = k1_setup() + [s_mov(sLIM, lim)] + stamp(0)
    if OPT['stamp']:
        head[2:2] = [raw("s_memrealtime s[78:79]"), raw("s_waitcnt lgkmcnt(0)"), valu('v_mov_b32', V(31), S(78))]
        head += [valu('v_mov_b32', V(29), 0 if OPT['dbg'] else 60), raw("s_nop 0"), raw("buffer_store_dword v31, v29, s[72:75], s76 offen", 'vstore'), raw("s_nop 1")]
    head += [wait(vm=[Xn(0, 0), Xn(0, 1)])] + probe(4) + [rd_X(0, 0, qt) for qt in range(4)]
    head += [valu('v_xor_b32', vXr[0][0], 0xC000, vXr[0][0]), valu('v_xor_b32', vXr[1][0], 0x18000, vXr[1][0])]
    head += [wait(vm=['E1']), s_barrier()] + flat([rd_W(p, 0, 0, p) for p in range(4)]) + [wait(lg=[Wf(0), Wf(1)])] + probe(5) + probes_out(8)
    tail = [label('L_qtail')] + (istamp(32, sCNT, 0) + q_half(7, 0, True) + q_half(7, 1, True) if OPT['pl'] else []) + stamp(1) + q_tail() + stamp(2)
    bodies = []
    for hd in range(2):
        for t in range(15 - hd * OPT['npl']):
            j = 32 * hd + 2 * t + 1
            bodies.append([label('L_att')] + istamp(48, sKOFF, 14) + period(j) + period(j + 1) + [s_cmp('s_cmp_lg_u32', sKOFF, sEND), s_branch('s_cbranch_scc1', 'L_att')])
            if len(bodies) > 1: del REP[-2:]
    rolled('att', bodies)
    after = [s_cmp('s_cmp_lg_u32', sITEM, 0), s_branch('s_cbranch_scc1', 'L_last')]
    mid = boundary()
    mid = mid[:1] + stamp(3) + mid[1:] + stamp(18) + [s_branch('s_branch', 'L_att')]
    last = final()
    last = last[:1] + stamp(19) + last[1:] + [label('L_k1_end'), raw('s_endpgm')]
    al = [raw(f".p2align {OPT['al']}", 'label')] if OPT['al'] else []
    static = head + al + qs + tail + al + bodies[0] + after + mid + last
    trace = head + qtr + tail + flat(bodies[:15]) + after + mid + flat(bodies[15:]) + after + last
    tramps = []
    for i in sites:
        tramps += [label(f"L_tramp{i}"), raw(f"s_call_b64 {sRET}, L_fb", 'branch', [], [sRET]), s_branch('s_branch', f"L_ret{i}")]
    return static, trace, tramps + fallback()

def descriptor(name, vgpr, accum, sgpr=96):
    return f""".amdhsa_kernel {name}
  .amdhsa_next_free_vgpr {vgpr}
  .amdhsa_next_free_sgpr {sgpr}
  .amdhsa_accum_offset {accum}
  .amdhsa_group_segment_fixed_size 0
  .amdhsa_kernarg_size 104
  .amdhsa_user_sgpr_count 2
  .amdhsa_user_sgpr_kernarg_segment_ptr 1
  .amdhsa_system_sgpr_workgroup_id_x 1
.end_amdhsa_kernel
"""

def finish(static, trace, rare, name):
    tr = expand(trace)
    resolve_waits(tr)
    errs = check(tr, name)
    if rare:
        resolve_waits(rare)
        errs += check(rare, name + "_rare")
    seen = set()
    for e in errs:
        k = e.split('] ', 1)[1]
        if k not in seen and len(seen) < 40: print("CHECK:", e, file=sys.stderr)
        seen.add(k)
    if errs: print(f"{len(errs)} check errors in {name}", file=sys.stderr)
    return render(static) + "\n" + (render(rare) if rare else "")

def main():
    ref = open(os.path.join(os.path.dirname(os.path.abspath(__file__)), '..', 'cdna_kernels', NAME + '.s.ref')).read().splitlines()
    hdr = [l for l in ref if l.startswith(';') and '@launch' not in l and 'Override launch' not in l and 'grid=ceil' not in l]
    st, tr, rare = kernel1()
    if OPT['rep']:
        for r in REP: print(len(r), sum(max(0, x - 8) for x in r), r, file=sys.stderr)
    out = hdr[:]
    out.append("; OLAY=17" if OPT["s16"] else "; OLAY=16")
    if OPT['k1']: out.append("; @launch kernel=attn_kernel grid=(256,1,1) block=(256,1,1) lds=163840")
    import gen4, gen7k2
    if OPT['s16']: gen4 = gen7k2
    if OPT['k2']: out.append(f"; @launch kernel=oproj_kernel grid=(240,1,1) block=(256,1,1) lds={gen4.LDS}")
    out += ['.amdgcn_target "amdgcn-amd-amdhsa--gfx950"', '.text', '.globl attn_kernel', '.p2align 8', '.type attn_kernel,@function', 'attn_kernel:']
    out.append(finish(st, tr, rare, 'k1'))
    if OPT['k2']:
        if OPT['dbg']: OPT['stamp'] = 0
        k2 = gen4.kernel2(OPT)
        out += ['.globl oproj_kernel', '.p2align 8', '.type oproj_kernel,@function', 'oproj_kernel:']
        out.append(finish(k2, k2, None, 'k2'))
    out += ['.section .rodata,"a"', '.p2align 6', descriptor('attn_kernel', 512, 256, 102)]
    if OPT['k2']:
        out += ['.p2align 6', descriptor('oproj_kernel', 512, 256)]
    open(sys.argv[1], 'w').write("\n".join(out))

if __name__ == '__main__':
    main()
```

```python
from asmlib import *
O_BYTES = 60 * 262144
PACK_OFF = 32 * 1024 * 1024
PACK_BYTES = 4096 * 1152
LDS = 147456

def set_srd(srd, base, off_lo, nbytes):
    return [salu('s_add_u32', srd[0], base[0], off_lo), salu('s_addc_u32', srd[1], base[1], 0),
            s_mov(srd[2], nbytes), s_mov(srd[3], 0x20000)]
def smul(d, a, b): return salu('s_mul_i32', d, a, b, scc=False)

def kernel2(OPT):
    D = OPT['d16']; R = 4
    sOUT, sWS = S(8, 2), S(10, 2)
    srdO, srdW, srdOut = S(16, 4), S(20, 4), S(24, 4)
    sW, sP, sMT, sNG, sT0, sT1, sT2 = S(28), S(29), S(30), S(31), S(32), S(33), S(34)
    sOO, sWO, sLOOP, sLIN, sROT = S(35), S(36), S(37), S(38), S(39)
    WN = OPT['rot2']
    sR1, sR2, sMH, sNH = S(40), S(41), S(42), S(43)
    vTID = V(0)
    vOa = [V(1 + i) for i in range(6)]; vWb = V(7); vEw = [V(8), V(9), V(16)]; vEr = V(10); vOut = V(11); vL = V(17); vWa = V(18)
    l, g, t0, t1 = V(12), V(13), V(14), V(15)
    def acc(nt, m): return A((nt * 6 + m) * 4, 4)
    def Of(slot, m): return V(32 + (slot * 12 + m) * 4, 4)
    def Wf(slot, nt): return V(32 + (slot * 12 + 6 + nt) * 4, 4)
    o = [s_cmp('s_cmp_ge_u32', S(2), OPT.get('k2n', 240)), s_branch('s_cbranch_scc1', 'L_k2_end')]
    o += [s_load('s_load_dwordx2', sWS, S(0, 2), 96), s_load('s_load_dwordx2', sOUT, S(0, 2), 80)]
    o += [salu('s_bfe_u32', sP, S(2), 0x10002), salu('s_lshr_b32', sT0, S(2), 3), smul(sT1, sT0, 43),
          salu('s_lshr_b32', sT1, sT1, 8), smul(sT2, sT1, 6), salu('s_sub_u32', sNG, sT0, sT2), salu('s_add_u32', sROT, sT1, sNG),
          salu('s_and_b32', sT0, S(2), 3), smul(sT0, sT0, 5), salu('s_add_u32', sMT, sT0, sT1)]
    o += [valu('v_lshrrev_b32', t0, 6, vTID), valu('v_and_b32', l, 63, vTID), readfirstlane(sW, t0), valu('v_lshlrev_b32', vL, 4, l)]
    o += [s_nop(2), salu('s_lshr_b32', sMH, sW, 1), salu('s_and_b32', sNH, sW, 1), smul(sT0, sMH, 3 * 131072), smul(sT1, sNH, 3072),
          valu('v_add_u32', vOa[3], sT0, vL), salu('s_sub_u32', sT0, 3 * 131072, sT0), valu('v_add_u32', vWb, sT1, vL), salu('s_sub_u32', sT1, 3072, sT1),
          valu('v_add_u32', vOa[0], sT0, vL), valu('v_add_u32', vWa, sT1, vL)]
    o += [valu('v_add_u32', vOa[i], 131072 * (i % 3), vOa[i - i % 3]) for i in (1, 2, 4, 5)]
    o += [smul(sT0, sP, O_BYTES), smul(sT1, sMT, 6 * 131072), salu('s_add_u32', sT0, sT0, sT1),
          salu('s_lshl_b32', sT1, sW, 15), salu('s_add_u32', sT0, sT0, sT1),
          smul(sT1, sP, PACK_BYTES), smul(sT2, sNG, 786432), salu('s_add_u32', sT1, sT1, sT2), smul(sT2, sW, 196608),
          salu('s_add_u32', sT1, sT1, sT2), salu('s_add_u32', sT1, sT1, PACK_OFF)]
    if WN: o += [smul(sROT, sROT, OPT['rmul']), salu('s_and_b32', sT2, sROT, WN - 1), salu('s_lshl_b32', sOO, sT2, 10), smul(sWO, sT2, 6144), s_mov(sLIN, 0)]
    else: o += [s_mov(sOO, 0), s_mov(sWO, 0)]
    if OPT['dbg']: o += [raw('s_memrealtime s[60:61]'), s_load('s_load_dwordx2', S(68, 2), S(0, 2), 88)]
    o += [wait(lg=0)]
    o += set_srd(srdO, sWS, sT0, 5 * 131072 + 32768) + set_srd(srdW, sWS, sT1, 196608)
    def stamp(idx):
        if not OPT['stamp']: return []
        return [raw("s_memtime s[70:71]"), raw("s_memrealtime s[78:79]"), raw("s_waitcnt lgkmcnt(0)"),
                valu('v_mov_b32', V(20), S(70)), valu('v_mov_b32', V(21), idx * 4), raw("s_nop 0"),
                raw("buffer_store_dword v20, v21, s[72:75], s76 offen", 'vstore'), raw("s_nop 1"), valu('v_mov_b32', V(20), S(78)), raw("s_nop 0"),
                raw("buffer_store_dword v20, v21, s[72:75], s76 offen offset:32", 'vstore'), raw("s_nop 1"),
                raw("s_getreg_b32 s70, hwreg(HW_REG_XCC_ID)"), valu('v_mov_b32', V(20), S(70)), raw("s_nop 0"),
                raw("buffer_store_dword v20, v21, s[72:75], s76 offen offset:64", 'vstore'), raw("s_nop 1")]
    if OPT['stamp']:
        o += set_srd(S(72, 4), sWS, 201 * 1024 * 1024, 1024 * 1024)
        o += [salu('s_lshl_b32', S(76), S(2), 2), salu('s_add_u32', S(76), S(76), sW), salu('s_lshl_b32', S(76), S(76), 8)]
    o += stamp(0)

    def loads(k):
        sl = k % R
        W = [[buf_load('buffer_load_dwordx4', Wf(sl, i), vWa if i < 3 else vWb, srdW, sWO, 1024 * (i % 3), OPT['wof'])] for i in range(6)]
        O = [[buf_load('buffer_load_dwordx4', Of(sl, i), vOa[i], srdO, sOO, 0, OPT['of'])] for i in range(6)]
        r = W[:1] + O + W[1:]
        if WN:
            r[-3] = r[-3] + [salu('s_add_u32', sROT, sROT, 1), salu('s_add_u32', sLIN, sLIN, 1), salu('s_and_b32', sT0, sROT, WN - 1)]
            r[-2] = r[-2] + [salu('s_and_b32', sT1, sLIN, 0 if OPT.get('wrapk') else 256 - WN), salu('s_or_b32', sT0, sT0, sT1)]
            r[-1] = r[-1] + [salu('s_lshl_b32', sOO, sT0, 10), smul(sWO, sT0, 6144)]
        else: r[-1] = r[-1] + [salu('s_add_u32', sWO, sWO, 6144), salu('s_add_u32', sOO, sOO, 1024)]
        return r
    def step(k, first=False, ld=True):
        sl = k % R
        out = []
        L = loads(k + D) if ld else []
        i = 0
        for nt in range(6):
            for mm in range(6):
                m = mm if nt % 2 == 0 or not OPT['snake'] else 5 - mm
                if nt == 0: out.append(wait(vm=[Of(sl, m), Wf(sl, 0)]))
                elif mm == 0: out.append(wait(vm=[Wf(sl, nt)]))
                out.append(mfma(acc(nt, m), Wf(sl, nt), Of(sl, m), 0 if first else acc(nt, m), '16x16x32'))
                if i % 3 == 1 and L: out += L[i // 3]
                i += 1
        return out
    for k in range(D):
        for gg in loads(k): o += gg
    o += set_srd(srdOut, sOUT, 0, 1920 * 2304)
    o += [valu('v_lshrrev_b32', g, 4, l), smul(sT0, sW, 27648), valu('v_add_u32', vEr, sT0, vL)]
    for x in range(1, 4): o += [salu('s_xor_b32', sT0, sW, x), smul(sT0, sT0, 27648), salu('s_add_u32', sT0, sT0, (x - 1) * 9216), valu('v_add_u32', vEw[x - 1], sT0, vL)]
    o += [smul(sR1, sMT, 96 * 2304), smul(sR2, sP, 1152), salu('s_add_u32', sR1, sR1, sR2),
          smul(sR2, sNG, 192), salu('s_add_u32', sR1, sR1, sR2), smul(sR2, sMH, 48 * 2304),
          salu('s_add_u32', sR1, sR1, sR2), smul(sR2, sNH, 96), salu('s_add_u32', sR1, sR1, sR2),
          valu('v_and_b32', t0, 15, l), valu('v_mul_u32_u24', t0, 2304, t0),
          valu('v_mul_u32_u24', t1, 24, g), valu('v_add3_u32', vOut, t0, t1, sR1), s_mov(sR1, 16 * 2304), s_mov(sR2, 32 * 2304)]
    for k in range(4): o += step(k, first=(k == 0))
    body = [label('L_k2_loop')]
    for k in range(4): body += step(k)
    body += [salu('s_sub_u32', sLOOP, sLOOP, 1), s_cmp('s_cmp_lg_u32', sLOOP, 0), s_branch('s_cbranch_scc1', 'L_k2_loop')]
    o += [s_mov(sLOOP, 6), Loop(body, 6)]
    for k in range(28, 31): o += step(k, ld=(k + D < 32))
    sl = 31 % R
    seq = [(nt, m) for nt in range(3) for m in range(6)] + [(nt, m) for nt in range(3, 6) for m in range(3)] + [(nt, m) for nt in range(3, 6) for m in range(3, 6)]
    def send(nt, m): return ds_write('ds_write_b128', vEw[2 - 2 * (m // 3) - nt // 3], acc(nt, m), ((m % 3) * 3 + nt % 3) * 1024, 'X')
    LAG = OPT['lag']
    for i, (nt, m) in enumerate(seq):
        if nt == 0 or m == 0: o.append(wait(vm=[Of(sl, m), Wf(sl, nt)]))
        o += [mfma(acc(nt, m), Wf(sl, nt), Of(sl, m), acc(nt, m), '16x16x32')]
        if LAG <= i < 27 + LAG: o.append(send(*seq[i - LAG]))
    o += [send(*seq[i]) for i in range(36 - LAG, 27)]
    o += stamp(1) + [s_nop(7)]
    def part(s, T): return V(32 + (s * 9 + T) * 4, 4)
    for T in range(9): o += [valu('v_accvgpr_read_b32', part(3, T)[i], acc(3 + T % 3, 3 + T // 3)[i]) for i in range(4)]
    o += [wait(lg=0), s_barrier()]
    for T in range(9):
        for s in range(3): o.append(ds_read('ds_read_b128', part(s, T), vEr, s * 9216 + T * 1024, 'X'))
    for m in range(3):
        pk = V(192 + m * 8, 6)
        for nt in range(3):
            T = m * 3 + nt
            o.append(wait(lg=[part(s, T) for s in range(3)]))
            for i in range(4):
                o += [valu('v_add_f32', part(0, T)[i], part(0, T)[i], part(1, T)[i]), valu('v_add_f32', part(2, T)[i], part(2, T)[i], part(3, T)[i])]
            for i in range(4): o.append(valu('v_add_f32', part(0, T)[i], part(0, T)[i], part(2, T)[i]))
            for i in range(2): o.append(valu('v_cvt_pk_bf16_f32', pk[2 * nt + i], part(0, T)[2 * i], part(0, T)[2 * i + 1]))
        so = [0, sR1, sR2][m]
        o += [buf_store('buffer_store_dwordx4', pk.sub(0, 4), vOut, srdOut, so, 0, OPT['uf']), buf_store('buffer_store_dwordx2', pk.sub(4, 2), vOut, srdOut, so, 16, OPT['uf'])]
    o += stamp(2)
    if OPT['dbg']:
        o += [salu('s_lshl_b32', sT0, S(2), 2), salu('s_add_u32', sT0, sT0, sW), s_cmp('s_cmp_lg_u32', sT0, 4 * (OPT['dbg'] % 240)), s_branch('s_cbranch_scc1', 'L_k2_end')]
        o += set_srd(S(64, 4), sWS, 200 * 1024 * 1024, 64) + [s_mov(S(70), 64), s_mov(S(71), 0x20000), raw('s_waitcnt vmcnt(0)'), raw('s_memrealtime s[62:63]'),
              raw('v_lshlrev_b32 v21, 2, v12'), raw('s_nop 1'), raw('buffer_load_dword v20, v21, s[64:67], 0 offen sc1'), raw('s_waitcnt vmcnt(0) lgkmcnt(0)'),
              raw('v_writelane_b32 v20, s60, 14'), raw('v_writelane_b32 v20, s62, 15'), raw('s_nop 1'), raw('buffer_store_dword v20, v21, s[68:71], 0 offen')]
    o += [label('L_k2_end'), raw('s_endpgm')]
    return o
```

```python
import sys, os, math, struct
from asmlib import *
import asmlib

NAME = "concat_heads__mha_block_cached__gqa_block_cached__near_ridge"
OPT = dict(stamp=0, k2=1, k1=1, ost=' sc1', pst=' sc1', xf='', wf='', pf=' nt', kvf=' nt', rot=0, rep=0,
           depth=5, rot2=0, s16=1, pat='ggtNtttwwn', trk=0, tg=62, dbg=0, lag=8, rmul=1, d16=2, snake=0, uf='', of='', wof='', kv0=5, pk0=0, cinit=1, al=6, dc=8, forcefb=0, nodma=0, dg=1, nost=0,
           xr=3, pl=1, e0=1, npl=1, st0=14, st1=-8, prd=60, nopk=0, la=4, g2=17, g3=85, gv=50)
RAW = ('pat',)
STR = ('uf', 'ost', 'pst', 'xf', 'wf', 'pf', 'kvf', 'of', 'wof')
for a in sys.argv[2:]:
    k, v = a.split('=')
    OPT[k] = v if k in RAW else ((' ' + v.replace('+', ' ')) if v != '-' else '') if k in STR else int(v)
asmlib.COST['dma'] = OPT['dc']

def f2u(x): return struct.unpack('<I', struct.pack('<f', x))[0]
O_BYTES = 60 * 262144
OU = 1024 if OPT['s16'] else 2048
PACK_OFF = 32 * 1024 * 1024
PACK_BYTES = 4096 * 1152
HUGE = 0x7f000000
SH = '16x16x32'

def posn(ch): return [8 + i for i, c in enumerate(OPT['pat']) if c == ch] + [8 + i for i, c in enumerate(OPT['pat']) if c == ch.upper()]
def scat(ch, v): return sum(((v >> b) & 1) << p for b, p in enumerate(posn(ch)))
def mp(t): return scat('t', t & 15) | (t >> 4) << 18
LIN = posn('t') == [14, 15, 16, 17]
TMASK = 0xfffc0000 | scat('t', 15)
assert scat('n', 2) == 2048 and scat('n', 1) >= 1024 and posn('t') == sorted(posn('t'))
def next_tile(r): return [salu('s_add_u32', r, r, 16384)] if LIN else [salu('s_sub_u32', r, r, TMASK), salu('s_and_b32', r, r, TMASK)]
def s_scat(d, ch, src, tmp):
    o = []
    for b, p in enumerate(posn(ch)):
        o += [salu('s_bfe_u32', tmp, src, 0x10000 + b), salu('s_lshl_b32', tmp if b else d, tmp, p)] + ([salu('s_or_b32', d, d, tmp)] if b else [])
    return o

pX, pK, pV, pWQ, pWO, pWS = S(4, 2), S(6, 2), S(8, 2), S(10, 2), S(12, 2), S(14, 2)
srdP, srdQ = S(16, 4), S(20, 4)
sPU, sPV = [S(24), S(25), S(26)], [S(27), S(28), S(29)]
sLIM, sXR, sXK, sXV = S(30), S(31), S(12), S(13)
srdK, srdV, srdO = S(32, 4), S(36, 4), S(40, 4)
srdX, srdW = [S(44, 4), S(48, 4)], [S(52, 4), S(56, 4)]
sSCALE = S(60, 2)
sRET = S(62, 2)
sW, sB, sH, sP, sW4K, sT0, sT1, sT2 = S(64), S(65), S(66), S(67), S(68), S(3), S(69), S(80)
sSTAMP = S(70, 2)
sKOFF, sVOFF, sKM, sTG, sEND, sITEM = S(81), S(82), S(83), S(84), S(85), S(86)
sXC, sWC, sXM, sWM, sCNT = S(87), [S(88), S(89)], [S(90), S(91)], S(92), S(93)
sHI, sLO, sPM0, sPAD, sFH = S(94), S(95), S(96), S(97), S(98)
sOA = [S(99), S(100)]
sOB = [S(10), S(11)]
sMASK = S(4, 2)
sF, sF2, sFC = S(6), S(7), S(8)
sR0 = S(101)
vKr = [V(1 + i) for i in range(4)]
vVr = [V(5 + i) for i in range(8)]
vKd = [V(13 + i) for i in range(4)]
vVd = [V(17), V(18)]
vIDX = V(19)
vCI = V(20, 4)
vO = [V(24 + i) for i in range(4)]
vRC = V(28, 4)
vT = V(0)
def Sreg(qt, kt): return V(32 + qt * 8 + (4 * kt if qt % 2 else 4 - 4 * kt), 4)
def Preg(qt): return Sreg(qt, 0)
def Qreg(qt, s): return V(64 + qt * 16 + s * 4, 4)
def Oacc(dt, qt): return V(128 + qt * 32 + dt * 4, 4)
def QACC(h, s, tt, qt): return (V(128 + qt * 32 + s * 8 + tt * 4, 4) if h == 0 else A(qt * 32 + s * 8 + tt * 4, 4))
vXg = [V(32 + i) for i in range(8)]
vWd = [[V(40 + i) for i in range(4)], [V(44 + i) for i in range(4)]]
vXr = [[V(48), V(49)], [V(50), V(51)]]
vWr = [V(52 + i) for i in range(8)]
def Kf(kt, s): return A(128 + (kt * 4 + s) * 4, 4)
def Vf(dt): return A(160 + dt * 4, 4)
def Wf(p): return A(160 + (p % 8) * 4, 4)
def XF(ks, qt): return A(192 + (ks * 4 + qt) * 4, 4)
def PKf(s, nt): return A(192 + (s * 3 + nt) * 4, 4)
def Lacc(i): return A(224 + 4 * i, 4)
aONE = A(232, 4)
aPd, aPr, aPq = [A(236), A(237), A(238)], A(239), A(240)
GRAY = [0, 1, 3, 2]
def Kn(t): return f"K{GRAY[t % 4]}"
def Vn(t): return f"V{GRAY[t % 4]}"
WN = ['E1', 'E0', 'V3', 'V2']
def Xn(c, part): return f"privX{c % 2}{part}"
XBASE = [[32768, 49152], [16384, 81920]]

def stamp(idx, t0=V(28), t1=V(29)):
    if not OPT['stamp']: return []
    if OPT['dbg']:
        mp = {0: 1, 1: 2, 2: 3, 3: 4, 4: 5, 18: 6, 19: 7, 21: 8, 20: 9}
        if idx not in mp: return []
        r = [raw(f"s_memtime {sSTAMP}", 'salu', [], [sSTAMP]), raw("s_memrealtime s[78:79]"), raw("s_waitcnt lgkmcnt(0)", 'salu'),
             valu('v_mov_b32', t0, S(78)), valu('v_mov_b32', t1, mp[idx] * 4), raw(f"s_nop 0", 'salu'),
             raw(f"buffer_store_dword {t0}, {t1}, s[72:75], 0 offen", 'vstore'), raw("s_nop 1")]
        if idx in (2, 3, 18, 19):
            r += [valu('v_mov_b32', t0, sSTAMP[0]), valu('v_mov_b32', t1, {2: 10, 3: 11, 18: 12, 19: 13}[idx] * 4), raw("s_nop 0"),
                  raw(f"buffer_store_dword {t0}, {t1}, s[72:75], 0 offen", 'vstore'), raw("s_nop 1")]
        return r
    return [raw(f"s_memtime {sSTAMP}", 'salu', [], [sSTAMP]), raw("s_memrealtime s[78:79]"), raw("s_waitcnt lgkmcnt(0)", 'salu'),
            valu('v_mov_b32', t0, sSTAMP[0]), valu('v_mov_b32', t1, idx * 4), raw(f"s_nop 0", 'salu'),
            raw(f"buffer_store_dword {t0}, {t1}, s[72:75], s76 offen", 'vstore'),
            raw("s_nop 1"), valu('v_mov_b32', t0, S(78)), raw("s_nop 0"),
            raw(f"buffer_store_dword {t0}, {t1}, s[72:75], s76 offen offset:32", 'vstore'), raw("s_nop 1")]

def istamp(base, reg, shift):
    if OPT['stamp'] != 2: return []
    t0, t1 = V(30), V(31)
    return [raw(f"s_memtime {sSTAMP}", 'salu', [], [sSTAMP]), raw(f"s_lshr_b32 s77, {reg}, {shift}"), raw("s_and_b32 s77, s77, 15"), raw(f"s_add_u32 s77, s77, {base}"),
            raw("s_lshl_b32 s77, s77, 2"), raw("s_waitcnt lgkmcnt(0)", 'salu'),
            valu('v_mov_b32', t0, sSTAMP[0]), valu('v_mov_b32', t1, S(77)), raw(f"s_nop 0", 'salu'),
            raw(f"buffer_store_dword {t0}, {t1}, s[72:75], s76 offen", 'vstore'), raw("s_nop 1")]

def probe(k):
    if OPT['stamp'] != 3: return []
    return [raw("s_memrealtime s[78:79]"), raw("s_waitcnt lgkmcnt(0)"), valu('v_mov_b32', V(120 + k), S(78))]
def probes_out(n):
    if OPT['stamp'] != 3: return []
    o = []
    for k in range(n): o += [valu('v_mov_b32', V(29), 4 * (48 + k)), raw("s_nop 0"), raw(f"buffer_store_dword v{120 + k}, v29, s[72:75], s76 offen", 'vstore'), raw("s_nop 1")]
    return o

def set_srd(srd, base, off_lo, nbytes):
    return [salu('s_add_u32', srd[0], base[0], off_lo), salu('s_addc_u32', srd[1], base[1], 0),
            s_mov(srd[2], nbytes), s_mov(srd[3], 0x20000)]
def smul(d, a, b): return salu('s_mul_i32', d, a, b, scc=False)
def flat(groups): return [x for g in groups for x in g]
def csel(d, a, b): return I('s_cselect_b32', f"s_cselect_b32 {d}, {a}, {b}", 'salu', [SCC, a, b], [d])
def advance(reg, step, first=0):
    return [salu('s_add_u32', reg, reg, step), s_cmp('s_cmp_eq_u32', reg, 9 * step + first), csel(reg, first, reg)]
def at(groups, gaps):
    assert len(groups) == len(gaps), (len(groups), len(gaps))
    return [F(g, p, p, tail=all(x.kind in ('wait', 'barrier') for x in g)) for g, p in zip(groups, gaps)]

def dma_K(name, m0, soff=sKOFF, adv=True):
    d = [[m0]] + [[buf_dma(vKd[n], srdK, soff, 1024 * n, name, OPT['kvf'])] for n in range(4)]
    if OPT['xr'] or (isinstance(soff, int) and soff): d = [[salu('s_xor_b32', sXK, soff, sXR), m0]] + [[buf_dma(vKd[n], srdK, sXK, 1024 * n, name, OPT['kvf'])] for n in range(4)]
    if OPT['nodma']: d = [[m0]] + [[s_nop(0)] for n in range(4)]
    return tag_m0(d + ([next_tile(sKOFF)] if adv else []))
def dma_V(name, m0, soff=sVOFF, adv=True):
    d = [[m0]] + [[buf_dma(vVd[n % 2], srdV, soff, 1024 * n, name, OPT['kvf'])] for n in range(4)]
    if OPT['xr'] or (isinstance(soff, int) and soff): d = [[salu('s_xor_b32', sXV, soff, sXR), m0]] + [[buf_dma(vVd[n % 2], srdV, sXV, 1024 * n, name, OPT['kvf'])] for n in range(4)]
    if OPT['nodma']: d = [[m0]] + [[s_nop(0)] for n in range(4)]
    return tag_m0(d + ([next_tile(sVOFF)] if adv else []))
def dma_X(part, name):
    return tag_m0([[s_mov(M0, sXM[part])]] + [[buf_dma(vXg[4 * part + n], srdX[part], sXC, 1024 * n, name, OPT['xf'])] for n in range(4)])
def dma_W(i, name, m0):
    return tag_m0([[m0]] + [[buf_dma(vWd[i][n], srdW[i], sWC[i], 1024 * n, name, OPT['wf'])] for n in range(4)])
def PK(s, nt): return A(192 + (s * 3 + nt) * 4, 4) if s * 3 + nt < 8 else A(244, 4)
def pack_in():
    t = [vRC[0], vRC[1], vRC[2]]
    out = [[valu('v_accvgpr_read_b32', t[u], aPd[u])] for u in range(3)]
    for s in range(3):
        out.append([salu('s_add_u32', M0, sPM0, s * 3072) if s < 2 else s_mov(M0, sW4K), s_nop(0)])
        out += [[buf_dma(t[u], srdP, sPU[s], 1024 * u, 'privP' if s < 2 else ('privP', Kn(28)), OPT['pf'])] for u in range(3)]
    return tag_m0(out)
def pack_rd():
    ra, rb = vRC[3], vRC[2]
    o = [[valu('v_accvgpr_read_b32', ra, aPr)], [valu('v_accvgpr_read_b32', rb, aPq), wait(vm=['privP'])]]
    for s in range(3):
        o += [[ds_read('ds_read_b64_tr_b16', PK(s, nt).sub(2 * h, 2), ra if s < 2 else rb, (s % 2) * 3072 + h * 1536 + 8 * nt, 'privP') for h in range(2)] for nt in range(3)]
    return o
def pack_st(units): return [[buf_store('buffer_store_dwordx4', PK(s, nt), vT, srdQ, sPV[s], nt * 1024, OPT['pst'])] for s in units for nt in range(3)]

def rd_K(name, half, kt, s): return ds_read('ds_read_b128', Kf(kt, s), vKr[s], half * 8192 + kt * 4096, name)
def rd_V(name, half, dt): return [ds_read('ds_read_b64_tr_b16', Vf(dt).sub(2 * h, 2), vVr[dt], half * 8192 + h * 4096, name) for h in range(2)]
def rd_W(p, h, head, i):
    return [ds_read('ds_read_b64_tr_b16', Wf(p).sub(2 * j, 2), vWr[i], (1 - h % 2) * 16384 + j * 2048 + head * 256, WN[h % 4]) for j in range(2)]
def rd_X(c, ks, qt): return ds_read('ds_read_b128', XF(ks, qt), vXr[qt // 2][ks], (qt % 2) * 2048, Xn(c, qt // 2))

ST = [32, 40, 49, 57]
NP = 66
DG = [[[54, 55, 57, 59, 61, 62], [54, 55, 57, 59, 61, 62]], [[38, 39, 48, 55, 60, 62], [15, 16, 30, 45, 58, 60]],
      [[38, 39, 40, 59, 60, 62], [15, 16, 17, 44, 45, 60]], [[38, 39, 43, 57, 61, 62], [15, 16, 20, 41, 45, 60]]][OPT['dg']]
REP = []
def period_parts(j, B=0, first=False, nxt=True, kg=None, dma=True):
    t, odd = j // 2, j % 2
    mf = []
    for qt in range(4):
        for kt in range(2):
            for s in range(4):
                c = Sreg(qt, kt) if s else (vCI if (qt == 3 and OPT['cinit']) else 0)
                mf.append(mfma(Sreg(qt, kt), Kf(kt, s), Qreg(qt, s), c, SH))
    for qt in range(4):
        if qt % 2: mf.append(smfmac(Lacc(qt // 2), aONE, V(Preg(qt - 1).i, 8), vIDX))
        for dt in range(8): mf.append(mfma(Oacc(dt, qt), Vf(dt), Preg(qt), 0 if first else Oacc(dt, qt), SH))
    fl = []
    prev = None
    for qt in range(4):
        dl = B + ST[qt] - 3
        pc = None
        for kt in range(2):
            lo = B + 8 * qt + 4 * kt + 3 + 4
            ex = []
            for r in range(4):
                prev = F(valu('v_exp_f32', Sreg(qt, kt)[r], Sreg(qt, kt)[r]), lo, dl - 1, after=[prev]); ex.append(prev)
            fl += ex
            for h in range(2):
                pc = F(valu('v_cvt_pk_bf16_f32', Preg(qt)[2 * kt + h], Sreg(qt, kt)[2 * h], Sreg(qt, kt)[2 * h + 1]), lo, dl,
                       after=[(ex[2 * h + 1], 1), pc]); fl.append(pc)
    vr = at([rd_V(Vn(t), odd, dt) for dt in range(8)], [B + g for g in range(8)]); fl += vr
    fl += at([[wait(lg=[Vf(dt) for dt in range(8)])]], [B + 31])
    if nxt:
        kg = kg or [37, 37, 46, 46, 47, 47, 53, 53]
        fl += at([[rd_K(Kn(t + odd), 1 - odd, i // 4, i % 4)] for i in range(8)], [B + g for g in kg])
        fl += at([[wait(lg=0)]], [B + 65])
        if odd:
            fl += at([[wait(vm=[Kn(t + 1), Vn(t + 1)]), s_barrier()]], [B + 36])
            if dma: fl += at(dma_K(Kn(t + OPT['la']), s_mov(M0, sKM)), [B + g for g in DG[0]])
            fl += [F(valu('v_xor_b32', vVr[dt], sTG, vVr[dt]), B + 31, B + 65) for dt in range(8)]
        else:
            if dma: fl += at(dma_V(Vn(t + OPT['la'] - 1), salu('s_add_u32', M0, sKM, 65536)), [B + g for g in DG[1]])
            x = F([salu('s_xor_b32', sKM, sKM, sTG), salu('s_xor_b32', sTG, sTG, 49152)][::1 if OPT['la'] == 4 else -1], B + DG[1][0] + 1, B + 60)
            fl += [x] + [F(valu('v_xor_b32', vKr[s], sTG, vKr[s]), B + 54, B + 65, after=[x]) for s in range(4)]
    return mf, fl
def period(j, extra=(), **kw):
    mf, fl = period_parts(j, **kw)
    return schedule(mf, fl + list(extra), 8, REP)

def q_half(c, hf, last):
    h = 2 * c + hf
    mf = [mfma(QACC(i // 8, (i % 8) // 2, i % 2, qt), Wf(i), XF(hf, qt), QACC(i // 8, (i % 8) // 2, i % 2, qt), SH)
          for i in range(16) for qt in range(4)]
    fl = []
    for i in range(16):
        p = i + 4
        fl += at([rd_W(p, h, p // 8, p % 8) if p < 16 else rd_W(p, h + 1, 0, p - 16)], [4 * i])
    for i in range(2, 18, 2):
        w = [Wf(i), Wf(i + 1)] + ([XF(1 - hf, qt) for qt in range(4)] if i == 16 else [])
        fl += at([[wait(lg=w)]], [4 * i - 1])
    fl += at([[wait(vm=[WN[(h + 1) % 4]]), s_barrier()]], [46])
    if hf == 0:
        fl += at([[rd_X(c, 1, 0), rd_X(c, 1, 2)], [rd_X(c, 1, 1), rd_X(c, 1, 3)],
                  [valu('v_xor_b32', vXr[0][1], 0xC000, vXr[0][1]), valu('v_xor_b32', vXr[1][1], 0x18000, vXr[1][1])]], [1, 2, 5])
        if last and OPT['pl']: fl += at(dma_K((Xn(c, 0), Kn(1)), salu('s_add_u32', M0, sW4K, 16384), mp(1), False), [17, 18, 22, 26, 30])
        else:
            fl += at(dma_X(0, (Xn(c, 0), Kn(1)) if last else Xn(c, 0)), [17, 18, 22, 26, 30])
            fl += at([[salu('s_xor_b32', sXM[0], sXM[0], 0xC000)]], [33])
        fl += at(dma_W(0, WN[(h + 3) % 4], salu('s_xor_b32', M0, sWM, 0x38000)) + [advance(sWC[0], 524288, 262144)], [49, 50, 53, 57, 61, 62])
    else:
        if last and OPT['pl']: fl += at(dma_V((Xn(c, 1), Vn(1)), salu('s_add_u32', M0, sW4K, 81920), mp(1), False), [1, 2, 6, 10, 14])
        else:
            fl += at(dma_X(1, (Xn(c, 1), Vn(1)) if last else Xn(c, 1)), [1, 2, 6, 10, 14])
            fl += at([[salu('s_xor_b32', sXM[1], sXM[1], 0x18000)], advance(sXC, 128)], [17, 18])
        fl += at([[wait(vm=[Xn(c + 1, 0), Xn(c + 1, 1)])], [rd_X(c + 1, 0, 0), rd_X(c + 1, 0, 2)], [rd_X(c + 1, 0, 1), rd_X(c + 1, 0, 3)],
                  [valu('v_xor_b32', vXr[0][0], 0xC000, vXr[0][0]), valu('v_xor_b32', vXr[1][0], 0x18000, vXr[1][0])]], [37, 38, 41, 42])
        fl += at([[valu('v_xor_b32', vWr[i], 0x38000, vWr[i])] for i in range(8)], [19, 21, 25, 29, 33, 37, 43, 45])
        if last and OPT['pl']:
            if OPT['la'] == 4 and not OPT['gv']: fl += at(dma_V(Vn(2), salu('s_add_u32', M0, sW4K, 114688), mp(2), False), [49, 50, 53, 57, 61])
        else:
            fl += at(dma_W(1, WN[(h + 3) % 4], salu('s_add_u32', M0, sWM, 16384)) + [advance(sWC[1], 524288)], [49, 50, 53, 57, 61, 62])
            fl += at([[salu('s_xor_b32', sWM, sWM, 0x38000)]], [51])
    if not OPT['trk'] and not last:
        sN, sNX, sTA, sTB, vTK = S(6), S(7), S(8), S(9), V(64)
        same = scat('n', 1) == 1024
        sN2, sNX2 = (sN, sNX) if same else (S(10), S(11))
        if hf == 0:
            fl += at([[salu('s_or_b32', sTA, sXR, sN2), salu('s_lshr_b32', sTB, sN, 4)], [s_cmp('s_cmp_lt_u32', sCNT, 3), I('s_cselect_b32', f"s_cselect_b32 {sTA}, {HUGE}, {sTA}", 'salu', [SCC, sTA], [sTA])],
                      [valu('v_xor_b32', vTK, sTB, vKd[0])]], [34, 35, 37])
            fl += at(tag_m0([[salu('s_or_b32', M0, sW4K, sN)], [buf_dma(vTK, srdK, sTA, 0, Kn(0), OPT['kvf'])]]), [OPT['tg'], OPT['tg'] + 1])
        else:
            fl += at([[salu('s_lshr_b32', sTB, sN, 3), salu('s_and_b32', sTB, sTB, 128)], [valu('v_xor_b32', vTK, sTB, vVd[0])],
                      [salu('s_or_b32', sTB, sN, 65536), salu('s_xor_b32', sN, sN, sNX)], [salu('s_xor_b32', sNX, sNX, 3072)]], [34, 35, 55, 59])
            if not same: fl += at([[salu('s_xor_b32', sN2, sN2, sNX2), salu('s_xor_b32', sNX2, sNX2, scat('n', 3))]], [58])
            fl += at(tag_m0([[salu('s_or_b32', M0, sW4K, sTB)], [buf_dma(vTK, srdV, sTA, 0, Vn(0), OPT['kvf'])]]), [OPT['tg'], OPT['tg'] + 1])
    return schedule(mf, fl, 8, REP)

def q_loop():
    NR = 7 if OPT['pl'] else 8
    bodies = []
    for c in range(NR):
        b = [label('L_q')] + istamp(32, sCNT, 0) + q_half(c, 0, c == 7) + q_half(c, 1, c == 7)
        b += [salu('s_add_u32', sCNT, sCNT, 1), s_cmp('s_cmp_lg_u32', sCNT, sLIM), s_branch('s_cbranch_scc1', 'L_q')]
        bodies.append(b)
    rolled('q', bodies)
    blk = {}
    for part in range(OPT['trk']):
        n0, n1 = part * 4 // OPT['trk'], (part + 1) * 4 // OPT['trk']
        a = dma_K(Kn(0), s_mov(M0, sW4K), 0, False); a = a[0] + [s_nop(0)] + flat(a[1 + n0:1 + n1])
        b = dma_V(Vn(0), salu('s_add_u32', M0, sW4K, 65536), 0, False); b = b[0] + [s_nop(0)] + flat(b[1 + n0:1 + n1])
        blk.setdefault(OPT['kv0'] + part, []).extend(a + b)
    if not OPT['pl']:
        sw = []
        for d, s in ((srdX[0], srdK), (srdX[1], srdV), (srdW[1], srdV)):
            sw += [s_mov(d[k], s[k]) for k in range(3)]
        sw += [salu('s_xor_b32', sXC, sXR, mp(1)), salu('s_xor_b32', sWC[1], sXR, mp(2))]
        for n in range(4):
            sw += [valu('v_mov_b32', vXg[n], vKd[n]), valu('v_mov_b32', vXg[4 + n], vVd[n % 2]), valu('v_mov_b32', vWd[1][n], vVd[n % 2])]
        blk.setdefault(6, []).extend(sw)
    cs = sorted(blk)
    static, trace = bodies[0][:], []
    full = {}
    for k, c in enumerate(cs):
        hd = [label(f'L_q{k}'), s_cmp('s_cmp_lg_u32', sCNT, c + 1), s_branch('s_cbranch_scc1', f'L_q{k + 1}' if k + 1 < len(cs) else 'L_qtail')]
        full[c] = hd + blk[c] + [s_mov(sLIM, (cs + [NR - 1])[k + 1] + 1), s_branch('s_branch', 'L_q')]
        static += full[c]
    for c in range(NR): trace += bodies[c] + full.get(c, [])
    return static, trace, (cs[0] + 1 if cs else NR)

def conv(h, qt, s, tmp=None, pk=True):
    q = Qreg(qt, s)
    g = []
    src = V(QACC(0, s, 0, qt).i, 8) if h == 0 else tmp
    if h == 1: g += [[valu('v_accvgpr_read_b32', tmp[i], A(QACC(1, s, 0, qt).i + i))] for i in range(8)]
    if pk: g += [[pk_mul_s(src.sub(2 * i, 2), sSCALE)] for i in range(4)]
    else: g += [[valu('v_mul_f32', src[i], sSCALE[0], src[i])] for i in range(8)]
    g += [[valu('v_cvt_pk_bf16_f32', q[i], src[2 * i], src[2 * i + 1])] for i in range(4)]
    return g, [[perm16(q[0], q[2])], [perm16(q[1], q[3])]]
def l_init():
    return [[valu('v_accvgpr_write_b32', Lacc(i // 4)[i % 4], sPAD if i == 6 else 0)] for i in range(8)]

def q_tail():
    seq = [(hd, ks, i) for hd in range(2) for ks in range(2) for i in range(8)]
    mf = [mfma(QACC(hd, i // 2, i % 2, qt), Wf(p), XF(ks, qt), QACC(hd, i // 2, i % 2, qt), SH)
          for p, (hd, ks, i) in enumerate(seq) for qt in range(4)]
    B = 128
    m0, fl = period_parts(0, B, first=True)
    mf += m0
    for p in range(4, 32): fl += at([rd_W(p, 16 + seq[p][1], seq[p][0], seq[p][2])], [4 * (p - 4)])
    for p in range(2, 32, 2): fl += at([[wait(lg=[Wf(p), Wf(p + 1)] + ([XF(1, qt) for qt in range(4)] if p == 8 else []))]], [4 * p - 1])
    fl += at([[rd_X(8, 1, 0), rd_X(8, 1, 2)], [rd_X(8, 1, 1), rd_X(8, 1, 3)], [wait(vm=['E0']), s_barrier()]], [1, 2, 14])
    fl += at(dma_K((Kn(2), Xn(8, 1)), salu('s_add_u32', M0, sW4K, 49152)), [OPT['g2'] + g for g in (0, 1, 4, 5, 8, 9)])
    if OPT['la'] == 4:
        fl += at(dma_K((Kn(3), Xn(8, 0)), s_mov(M0, sKM)), [OPT['g3'] + g for g in (0, 1, 4, 5, 8, 9)])
        if OPT['gv']: fl += at(dma_V(Vn(2), salu('s_add_u32', M0, sW4K, 114688), mp(2), False), [OPT['gv'] + g for g in (0, 1, 4, 5, 8)])
    fl += chain(l_init(), 5, 40, step=1)
    fl += at([[wait(vm=[Kn(0), Vn(0)], lg=0), s_barrier()]], [119])
    fl += at([[rd_K(Kn(0), 0, i // 4, i % 4)] for i in range(8)], [120, 120, 121, 121, 122, 122, 123, 123])
    fl += at([[wait(lg=[Kf(0, s) for s in range(4)])], [wait(lg=[Kf(1, s) for s in range(4)])]], [127, B + 3])
    prev, sw = None, []
    order = [(qt, s) for s in range(3) for qt in range(4)] + [(qt, 3) for qt in range(4)]
    order.sort(key=lambda x: (x[1] if x[1] < 2 else 2, x[0]))
    for qt, s in order:
        g, p16 = conv(0, qt, s, pk=OPT['pk0'])
        lo = 4 * (9 + 2 * s) + qt + 5
        hi = B + 8 * qt - 2
        ch = chain(g + [[s_nop(0)]] + p16[:1] + p16[1:], lo, hi, after=[prev], per=0); prev = ch[-1]; fl += ch
    return schedule(mf, fl, 8, REP)

sites = []
def check_parts():
    t = [V(32 + i) for i in range(8)]
    g = [[valu('v_accvgpr_read_b32', t[i], Lacc(i // 4)[i % 4])] for i in range(8)]
    g += [[valu('v_add_f32', vRC[q], t[2 * q], t[2 * q + 1])] for q in range(4)]
    g += [[valu('v_add_f32', t[0], vRC[0], vRC[1])], [valu('v_add_f32', t[1], vRC[2], vRC[3])], [valu('v_min3_f32', t[2], vRC[0], vRC[1], vRC[2])],
          [valu('v_add_f32', t[0], t[0], t[1])], [valu('v_min_f32', t[2], t[2], vRC[3])], [v_cmp('v_cmp_ngt_f32', sHI, t[0])],
          [I('v_cmp_gt_f32', f"v_cmp_gt_f32_e64 {sMASK}, {sLO}, {t[2]}", 'valu', [sLO, t[2]], [sMASK])]]
    k = len(sites); sites.append(k)
    br = [s_nop(0), I('s_or_b64', f"s_or_b64 {sMASK}, {sMASK}, vcc", 'salu', [sMASK, VCC], [sMASK, SCC]),
          s_branch('s_cbranch_scc0' if OPT['forcefb'] else 's_cbranch_scc1', f"L_tramp{k}"), label(f"L_ret{k}")]
    return g, br
def with_check(mf, fl, B, pad):
    ck, br = check_parts()
    c1 = chain(ck[:4], B + 50, B + 62, per=0)
    return schedule(mf, fl + c1 + chain([[s_nop(pad)]] + ck[4:], B + 64, B + 65, per=0, after=c1[-1:]), 8, REP) + br
def parked(qt):
    return [buf_store('buffer_store_dwordx4', A(32 * qt + 4 * m, 4), vO[qt], srdO, sOB[m // 2], (m % 2) * OU, OPT['ost']) for m in range(4)]
def epilogue(qt, mid=False):
    g = []
    for m in range(4):
        o = V(Oacc(2 * m, qt).i, 8)
        g += [[pk_mul_v(o.sub(2 * i, 2), vRC.sub(qt & 2, 2), qt & 1)] for i in range(4)]
        g += [[valu('v_cvt_pk_bf16_f32', o[i], o[2 * i], o[2 * i + 1])] for i in range(4)]
        if mid: g += [[valu('v_accvgpr_write_b32', A(32 * qt + 4 * m + i), o[i])] for i in range(4)]
        else: g += [[buf_store('buffer_store_dwordx4', o.sub(0, 4), vO[qt], srdO, sOA[m // 2], (m % 2) * OU, OPT['ost'])]]
    return g
def rcp(): return [valu('v_rcp_f32', vRC[q], vRC[q]) for q in range(4)]

def boundary():
    o = [label('L_mid')] + with_check(*period_parts(31), 0, 1) + stamp(4, V(32), V(33)) + stamp(16, V(32), V(33)) + stamp(17, V(32), V(33))
    o += rcp() + flat(l_init())
    o += [s_mov(sITEM, 1), s_mov(sFH, 262144), s_mov(sEND, mp(31 + OPT['la'] - OPT['npl'])), s_mov(sOB[0], sOA[0]), s_mov(sOB[1], sOA[1])]
    tmp = V(56, 8)
    def cv(qt):
        out, pend = [], []
        for s in range(4):
            g, p = conv(1, qt, s, tmp)
            out += g[:2] + pend + g[2:]; pend = p
        return out + [[s_nop(1)]] + pend
    o += flat(cv(0)) + flat(epilogue(0, True)) + [s_nop(1)]
    e, prev = [], None
    for qt in range(1, 4):
        ch = chain(cv(qt), 8 * qt - 8, 8 * qt - 2, after=[prev], per=0); prev = ch[-1]; e += ch
    for qt in range(1, 4):
        ch = chain(epilogue(qt, True), 20, ST[qt] - 3, after=[prev], per=0); prev = ch[-1]; e += ch
    e += chain([[salu('s_add_u32', sOA[0], sOA[0], 4 * OU), salu('s_add_u32', sOA[1], sOA[1], 4 * OU)]], 40, 65, after=[prev], per=0)
    return o + period(32, extra=e, first=True)
def final():
    mf, fl = [], []
    n = 2 * OPT['npl'] + 1
    for k in range(n):
        m, f = period_parts(64 - n + k, NP * k, nxt=k < n - 1, dma=False)
        mf += m; fl += f
    B = NP * (n - 1)
    pi = chain(pack_in(), 0, 13, per=0)
    pr = chain(pack_rd(), OPT['prd'], OPT['prd'] + 40, step=3, per=0)
    pw = F(wait(lg=[PK(s, nt) for s in range(3) for nt in range(3)]), OPT['prd'] + 40, OPT['prd'] + 60, after=[pr[-1]])
    st = [[x] for qt in range(4) for x in parked(qt)] + pack_st(range(3))
    lo, hi = OPT['st0'], NP * n + OPT['st1']
    st = chain(st, lo, hi, step=(hi - lo) / len(st), per=0, slack=6, after=pi[-1:])
    st[16].after.append((pw, 0))
    if OPT['nopk'] == 1: st = st[:16]
    if OPT['nopk'] == 2: st = []
    o = [label('L_last')] + with_check(mf, fl + pi + pr + [pw] + st, B, 4) + stamp(21, V(40), V(41)) + rcp()
    for qt in range(4): o += flat(epilogue(qt))
    return o + stamp(20, V(32), V(33))

def fallback():
    vk, vv, ad, f, t, t2 = V(32), [V(33), V(34)], V(35), V(36), V(37), V(38)
    m, s8 = [V(40 + q) for q in range(4)], V(48, 8)
    l = [vRC[q] for q in range(4)]
    def FK(kt, s): return A(192 + (kt * 4 + s) * 4, 4)
    def xmax(op, x):
        return [valu('v_mov_b32', t2, x), s_nop(1), perm16(x, t2), valu(op, x, x, t2), valu('v_mov_b32', t2, x), s_nop(1), permswap(x, t2), valu(op, x, x, t2)]
    o = [label('L_fb'), s_nop(15), raw('s_waitcnt vmcnt(0) lgkmcnt(0)')]
    o += [raw(f"v_mbcnt_lo_u32_b32 {t}, -1, 0", 'valu', [], [t]), raw(f"v_mbcnt_hi_u32_b32 {t}, -1, {t}", 'valu', [t], [t]),
          valu('v_and_b32', t2, 15, t), valu('v_lshrrev_b32', t, 4, t), valu('v_lshlrev_b32', f, 1, t), valu('v_xor_b32', f, f, t2),
          valu('v_lshlrev_b32', ad, 8, t), valu('v_lshl_add_u32', vv[0], f, 4, ad), valu('v_xor_b32', vv[1], 128, vv[0]),
          valu('v_lshlrev_b32', t2, 8, t2), valu('v_lshl_add_u32', vk, t, 4, t2)]
    for q in range(4): o += [valu('v_mov_b32', m[q], f2u(-3.0e38)), valu('v_mov_b32', l[q], 0)]
    for i in range(128): o.append(valu('v_mov_b32', V(128 + i), 0))
    o += [s_mov(sF, sFH), s_mov(sFC, 32), label('L_fb_loop'), salu('s_add_u32', sF2, sF, 4096)]
    for kt in range(2):
        o += [buf_load('buffer_load_dwordx4', FK(kt, s), vk, srdK, [sF, sF2][kt], 64 * s) for s in range(4)]
        o += [salu('s_add_u32', M0, sPM0, 4096 * kt), s_nop(0)] + [buf_dma(vv[n % 2], srdV, [sF, sF2][kt], 1024 * n, 'privF') for n in range(4)]
    o += [wait(vm=0)]
    for dt in range(8):
        o += [valu('v_and_b32', ad, 0x1fff, vVr[dt]), valu('v_add_u32', ad, sPM0, ad), s_nop(0)]
        o += [ds_read('ds_read_b64_tr_b16', Vf(dt).sub(2 * h, 2), ad, h * 4096, 'privF') for h in range(2)]
    o += [wait(lg=0)]
    for q in range(4):
        for kt in range(2):
            d = s8.sub(4 * kt, 4)
            o += [mfma(d, FK(kt, s), Qreg(q, s), d if s else 0, SH) for s in range(4)]
        o += [s_nop(9), valu('v_max3_f32', t, s8[0], s8[1], s8[2]), valu('v_max3_f32', t, t, s8[3], s8[4]), valu('v_max3_f32', t, t, s8[5], s8[6]),
              valu('v_max3_f32', t, t, s8[7], m[q])] + xmax('v_max_f32', t)
        o += [valu('v_sub_f32', f, m[q], t), valu('v_exp_f32', f, f), valu('v_mov_b32', m[q], t)]
        for i in range(8): o += [valu('v_sub_f32', s8[i], s8[i], t), valu('v_exp_f32', s8[i], s8[i])]
        o += [valu('v_mul_f32', l[q], l[q], f)]
        o += [valu('v_cvt_pk_bf16_f32', s8[i], s8[2 * i], s8[2 * i + 1]) for i in range(4)]
        for i in range(4):
            o += [valu('v_lshlrev_b32', t, 16, s8[i]), valu('v_and_b32', t2, 0xffff0000, s8[i]), valu('v_add_f32', l[q], l[q], t), valu('v_add_f32', l[q], l[q], t2)]
        o += [valu('v_mul_f32', V(128 + 32 * q + i), V(128 + 32 * q + i), f) for i in range(32)]
        o += [s_nop(1)] + [mfma(Oacc(dt, q), Vf(dt), s8.sub(0, 4), Oacc(dt, q), SH) for dt in range(8)] + [s_nop(7)]
    o += [salu('s_add_u32', sF, sF, 8192), salu('s_sub_u32', sFC, sFC, 1), s_cmp('s_cmp_lg_u32', sFC, 0), s_branch('s_cbranch_scc1', 'L_fb_loop')]
    for q in range(4): o += xmax('v_add_f32', l[q])
    o += [s_nop(9), raw(f"s_setpc_b64 {sRET}", 'branch', [sRET])]
    return o

def k1_setup():
    u = [V(64 + i) for i in range(12)]
    l, g, q, t0, t1, t2, t3, r, c = u[:9]
    o = [s_cmp('s_cmp_ge_u32', S(2), 256), s_branch('s_cbranch_scc1', 'L_k1_end')]
    o += [s_load('s_load_dwordx8', S(4, 8), S(0, 2), 0), s_load('s_load_dwordx2', pWO, S(0, 2), 32),
          s_load('s_load_dwordx8', S(32, 8), S(0, 2), 40), s_load('s_load_dwordx2', S(40, 2), S(0, 2), 72),
          s_load('s_load_dwordx2', pWS, S(0, 2), 96)]
    o += [salu('s_bfe_u32', sP, S(2), 0x10002), salu('s_and_b32', sT0, S(2), 1), salu('s_lshl_b32', sT0, sT0, 2), salu('s_bfe_u32', sT1, S(2), 0x20003),
          salu('s_add_u32', sB, sT0, sT1), salu('s_lshl_b32', sT1, sT1, 1),
          salu('s_lshr_b32', sT2, S(2), 5), salu('s_add_u32', sR0, sT1, sT2), s_cmp('s_cmp_ge_u32', sR0, 9),
          csel(sT1, 9, 0), salu('s_sub_u32', sR0, sR0, sT1),
          salu('s_and_b32', sT0, S(2), 2), salu('s_lshl_b32', sT0, sT0, 2), salu('s_add_u32', sH, sT0, sT2), salu('s_lshl_b32', sH, sH, 1)]
    if not OPT['rot']: o.append(s_mov(sR0, 0))
    o += [salu('s_lshl_b32', sXC, sR0, 7), salu('s_lshl_b32', sWC[1], sR0, 19), salu('s_add_u32', sWC[0], sWC[1], 262144)]
    o += [valu('v_lshrrev_b32', t0, 6, vT), valu('v_and_b32', l, 63, vT), readfirstlane(sW, t0),
          valu('v_lshrrev_b32', g, 4, l), valu('v_and_b32', q, 15, l), valu('v_lshrrev_b32', t1, 3, l), salu('s_lshl_b32', sW4K, sW, 12)]
    o += [smul(sT0, sW, 64 * 1152), valu('v_mul_u32_u24', t0, 1152, t1), valu('v_and_b32', t2, 7, l), valu('v_xor_b32', t2, t2, g),
          valu('v_add_u32', t0, sT0, t0), valu('v_lshl_add_u32', vXg[0], t2, 4, t0), valu('v_xor_b32', t2, 4, t2), valu('v_lshl_add_u32', t3, t2, 4, t0)]
    for n in range(1, 8): o.append(valu('v_add_u32', vXg[n], n * 9216 - 1024 * (n % 4), t3 if n % 2 else vXg[0]))
    o += [valu('v_lshrrev_b32', t1, 5, l), valu('v_and_b32', t2, 31, l), valu('v_xor_b32', t2, t2, t1), salu('s_and_b32', sT0, sW, 1),
          salu('s_lshl_b32', sT0, sT0, 3), valu('v_xor_b32', t2, sT0, t2), salu('s_lshl_b32', sT1, sW, 16), valu('v_lshlrev_b32', t1, 13, t1),
          valu('v_add_u32', t0, sT1, t1), valu('v_lshl_add_u32', vWd[0][0], t2, 4, t0), valu('v_xor_b32', t2, 4, t2), valu('v_lshl_add_u32', t3, t2, 4, t0)]
    for n in range(1, 4): o.append(valu('v_add_u32', vWd[0][n], n * (16384 - 1024), t3 if n % 2 else vWd[0][0]))
    for n in range(4): o.append(valu('v_mov_b32', vWd[1][n], vWd[0][n]))
    o += [salu('s_add_u32', sXM[0], sW4K, XBASE[0][0]), salu('s_add_u32', sXM[1], sW4K, XBASE[0][1]), salu('s_add_u32', sWM, sW4K, 131072)]
    o += [wait(lg=0)] + probe(0) + [s_cmp('s_cmp_eq_u32', sP, 0)]
    for d, s1 in ((pX, S(32, 2)), (pWQ, S(38, 2)), (pK, S(34, 2)), (pV, S(36, 2)), (pWO, S(40, 2))):
        o.append(I('s_cselect_b64', f"s_cselect_b64 {d}, {d}, {s1}", 'salu', [d, s1, SCC], [d]))
    o += [smul(sT0, sB, 276480)] + set_srd(srdX[0], pX, sT0, 276480) + set_srd(srdX[1], pX, sT0, 276480)
    o += [salu('s_lshl_b32', sT0, sH, 8), salu('s_sub_u32', sT1, 576 * 8192, sT0)] + set_srd(srdW[0], pWQ, sT0, sT1) + set_srd(srdW[1], pWQ, sT0, sT1)
    def nop1(x): x = flat(x); x.insert(1, s_nop(0)); return x
    def xload(c):
        return nop1(dma_X(0, Xn(c, 0))) + nop1(dma_X(1, Xn(c, 1))) + advance(sXC, 128) + \
               [salu('s_xor_b32', sXM[0], sXM[0], 0xC000), salu('s_xor_b32', sXM[1], sXM[1], 0x18000)]
    o += xload(0) + nop1(dma_W(1, 'E1', salu('s_add_u32', M0, sWM, 16384))) + advance(sWC[1], 524288)
    if OPT['e0']: o += nop1(dma_W(0, 'E0', s_mov(M0, sWM))) + advance(sWC[0], 524288, 262144)
    o += probe(1)
    late = [] if OPT['e0'] else nop1(dma_W(0, 'E0', s_mov(M0, sWM))) + advance(sWC[0], 524288, 262144)
    late += xload(1) + nop1(dma_W(1, 'V3', salu('s_add_u32', M0, sW4K, 114688))) + advance(sWC[1], 524288)
    z = V(60, 4)
    o += [valu('v_mov_b32', z[i], 0) for i in range(4)] + [s_nop(1)]
    zero = [mfma(r, z, z, 0) for i in range(8) for r in (V(128 + 16 * i, 16), A(16 * i, 16))]
    mark = len(o)
    o += [salu('s_lshl_b32', sT0, sB, 5), salu('s_add_u32', sT0, sT0, sH), salu('s_lshl_b32', sT0, sT0, 18)]
    o += set_srd(srdK, pK, sT0, 524288) + set_srd(srdV, pV, sT0, 524288)
    o += [smul(sT0, sP, O_BYTES)] + set_srd(srdO, pWS, sT0, O_BYTES)
    o += set_srd(srdP, pWO, 0, PACK_BYTES)
    o += [smul(sT0, sP, PACK_BYTES), salu('s_add_u32', sT0, sT0, PACK_OFF)] + set_srd(srdQ, pWS, sT0, PACK_BYTES)
    if OPT['stamp']:
        if OPT['dbg']:
            o += set_srd(S(72, 4), pWS, 200 * 1024 * 1024, 0) + [salu('s_lshl_b32', S(76), S(2), 2), salu('s_add_u32', S(76), S(76), sW),
                  s_cmp('s_cmp_eq_u32', S(76), 4 * OPT['dbg']), raw("s_cselect_b32 s74, 64, 0"), s_mov(S(76), 0)]
        else:
            o += set_srd(S(72, 4), pWS, 200 * 1024 * 1024, 1024 * 1024)
            o += [salu('s_lshl_b32', S(76), S(2), 2), salu('s_add_u32', S(76), S(76), sW), salu('s_lshl_b32', S(76), S(76), 8)]
    if OPT['xr'] == 0: o += [s_mov(sXR, 0)]
    if OPT['xr'] == 1: o += [salu('s_bfe_u32', sXR, S(2), 0x40003), salu('s_lshl_b32', sXR, sXR, 14)]
    if OPT['xr'] == 2: o += [salu('s_and_b32', sXR, S(2), 15), salu('s_lshl_b32', sXR, sXR, 14)]
    if OPT['xr'] == 3: o += [salu('s_lshr_b32', sXR, S(2), 4), salu('s_xor_b32', sXR, sXR, S(2)), salu('s_and_b32', sXR, sXR, 15), salu('s_lshl_b32', sXR, sXR, 14)]
    if not LIN: o += [salu('s_lshr_b32', sT0, sXR, 14)] + s_scat(sXR, 't', sT0, sT1)
    o += [s_mov(sKOFF, mp(2)), s_mov(sVOFF, mp(OPT['la'] - 1)), s_mov(sITEM, 0), s_mov(sFH, 0), s_mov(sCNT, 0), s_mov(sTG, 32768), s_mov(sEND, mp(15 + OPT['la'])),
          salu('s_add_u32', sKM, sW4K, 32768 if OPT['la'] == 4 else 49152), salu('s_lshl_b32', sOA[0], sH, 12 if OPT['s16'] else 13), salu('s_add_u32', sOA[1], sOA[0], 2 * OU)]
    c_scale = math.log2(math.e) / math.sqrt(128.0)
    o += [s_mov(sHI, f2u(2.0 ** 40)), s_mov(sLO, f2u(2.0 ** -40)), s_mov(sSCALE[0], f2u(c_scale)), s_mov(sSCALE[1], f2u(c_scale))]
    o += [s_cmp('s_cmp_eq_u32', sW, 3), csel(sT0, f2u(-1.0e30), 0), csel(sPAD, f2u(1.0), 0)] + [valu('v_mov_b32', vCI[i], sT0) for i in range(4)]
    pg = posn('g')
    if pg[1] == pg[0] + 1: o += [valu('v_lshlrev_b32', t0, pg[0], g)]
    else: o += [valu('v_and_b32', t0, 1, g), valu('v_lshlrev_b32', t0, pg[0], t0), valu('v_lshrrev_b32', t3, 1, g), valu('v_lshl_add_u32', t0, t3, pg[1], t0)]
    if posn('w') == [12, 13]: o += [valu('v_add_u32', t0, sW4K, t0)]
    else: o += s_scat(sT0, 'w', sW, sT1) + [valu('v_add_u32', t0, sT0, t0)]
    for n in range(4):
        o += [valu('v_add_u32', t3, 4 * n, g), valu('v_xor_b32', t3, t3, q), valu('v_lshl_add_u32', vKd[n], t3, 4, t0)]
        if scat('n', n) != 1024 * n: o += [valu('v_add_u32', vKd[n], scat('n', n) - 1024 * n, vKd[n])]
    o += [valu('v_lshlrev_b32', t3, 1, g), valu('v_xor_b32', t3, t3, q), valu('v_lshl_add_u32', vVd[0], t3, 4, t0), valu('v_xor_b32', vVd[1], 128, vVd[0])]
    if scat('n', 1) != 1024: o += [valu('v_add_u32', vVd[1], scat('n', 1) - 1024, vVd[1])]
    o += [valu('v_lshrrev_b32', t2, 1, q), valu('v_xor_b32', t2, t2, g), valu('v_lshlrev_b32', t1, 7, q), valu('v_add_u32', t1, sW4K, t1),
          valu('v_lshl_add_u32', t1, t2, 4, t1), valu('v_xor_b32', t3, 64, t1)]
    for part in range(2): o += [valu('v_add_u32', vXr[part][0], XBASE[0][part], t1), valu('v_add_u32', vXr[part][1], XBASE[0][part], t3)]
    o += [valu('v_xor_b32', t2, g, q), valu('v_lshlrev_b32', t1, 8, q), valu('v_lshl_add_u32', vKr[0], t2, 4, t1)]
    for s in range(1, 4): o.append(valu('v_xor_b32', vKr[s], 64 * s, vKr[0]))
    o += [valu('v_lshrrev_b32', r, 2, q), valu('v_and_b32', c, 3, l), valu('v_lshl_add_u32', t0, g, 2, r), valu('v_and_b32', t2, 7, t0),
          valu('v_lshlrev_b32', t1, 8, t0), valu('v_lshl_add_u32', t1, t2, 5, t1), valu('v_lshl_add_u32', t1, c, 3, t1), valu('v_add_u32', vVr[0], 65536, t1)]
    for dt in range(1, 8): o.append(valu('v_xor_b32', vVr[dt], 32 * dt, vVr[0]))
    o += [valu('v_lshl_add_u32', t0, g, 3, r), valu('v_lshlrev_b32', t0, 9, t0), valu('v_and_b32', t1, 1, c), valu('v_lshl_add_u32', t0, t1, 3, t0),
          valu('v_and_b32', t1, 2, c), valu('v_and_b32', t2, 1, r), valu('v_or_b32', t1, t1, t2), valu('v_and_b32', t2, 2, r), valu('v_lshl_or_b32', t1, t2, 1, t1),
          valu('v_and_b32', t2, 1, g), valu('v_lshl_or_b32', t1, t2, 3, t1), valu('v_lshl_add_u32', t0, t1, 4, t0), valu('v_add_u32', vWr[0], 131072, t0)]
    for i in range(1, 8): o.append(valu('v_xor_b32', vWr[i], (4 * (i // 2) + i % 2) * 16, vWr[0]))
    o += [valu('v_lshrrev_b32', t0, 5, l), valu('v_bfe_u32', t1, l, 1, 1), v_cmp('v_cmp_eq_u32', t0, t1), valu('v_mov_b32', t2, 0x3f803f80), valu('v_and_b32', t3, 1, l),
          valu('v_cndmask_b32', t2, 0, t2, VCC), valu('v_mul_u32_u24', t3, 0xaaaa, t3), valu('v_add_u32', vIDX, 0x4444, t3)]
    o += [valu('v_accvgpr_write_b32', aONE[i], t2) for i in range(4)]
    if OPT['s16']:
        o += [salu('s_lshl_b32', sPM0, sW, 13), salu('s_add_u32', sPM0, sPM0, 131072), valu('v_lshl_add_u32', t0, g, 2, r), valu('v_mul_u32_u24', t0, 96, t0),
              valu('v_mul_u32_u24', t1, 24, c), valu('v_add3_u32', t0, t0, t1, sPM0),
              valu('v_lshlrev_b32', vT, 4, l), valu('v_accvgpr_write_b32', aPr, t0), valu('v_subrev_u32', t0, sPM0, t0), valu('v_add_u32', t0, sW4K, t0),
              valu('v_accvgpr_write_b32', aPq, t0)]
        for k in range(3):
            o += [valu('v_add_u32', t0, 64 * k, l), valu('v_mul_u32_u24', t1, 171, t0), valu('v_lshrrev_b32', t1, 10, t1),
                  valu('v_mul_u32_u24', t2, 6, t1), valu('v_sub_u32', t2, t0, t2),
                  valu('v_mul_u32_u24', t1, 1152, t1), valu('v_lshl_add_u32', t1, t2, 4, t1), valu('v_subrev_u32', t1, 1024 * k, t1),
                  valu('v_accvgpr_write_b32', aPd[k], t1)]
        o += [smul(sT1, sB, 15), salu('s_lshl2_add_u32', sT1, sW, sT1), salu('s_lshl_b32', sT1, sT1, 17), valu('v_add_u32', vO[0], sT1, vT),
              s_mov(sT2, 3 * 131072), s_cmp('s_cmp_eq_u32', sW, 3), I('s_cselect_b32', f"s_cselect_b32 {sT1}, {HUGE}, {sT2}", 'salu', [SCC, sT2], [sT1]),
              valu('v_add_u32', vO[1], 131072, vO[0]), valu('v_add_u32', vO[2], 2 * 131072, vO[0]), valu('v_add_u32', vO[3], sT1, vO[0])]
        o += [salu('s_and_b32', sT0, S(2), 3), salu('s_lshl_b32', sT0, sT0, 5), salu('s_lshr_b32', sT1, S(2), 3), salu('s_add_u32', sT0, sT0, sT1),
              smul(sPU[0], sT0, 32 * 1152), smul(sT1, sW, 288), salu('s_add_u32', sPU[0], sPU[0], sT1),
              salu('s_add_u32', sPU[1], sPU[0], 96), salu('s_add_u32', sPU[2], sPU[0], 192), smul(sT0, sT0, 6144), smul(sT1, sW, 3)]
        for s in range(3):
            o += [salu('s_lshr_b32', sT2, sT1, 1), smul(sT2, sT2, 786432), salu('s_add_u32', sPV[s], sT0, sT2),
                  salu('s_and_b32', sT2, sT1, 1), smul(sT2, sT2, 3072), salu('s_add_u32', sPV[s], sPV[s], sT2)] + ([salu('s_add_u32', sT1, sT1, 1)] if s < 2 else [])
    else:
        o += [salu('s_lshl_b32', sPM0, sW, 13), salu('s_add_u32', sPM0, sPM0, 131072), valu('v_lshl_add_u32', t0, t0, 2, r), valu('v_mul_u32_u24', t0, 192, t0),
              valu('v_and_b32', t1, 1, g), valu('v_lshl_add_u32', t1, t1, 2, c), valu('v_mul_u32_u24', t1, 24, t1), valu('v_add3_u32', t0, t0, t1, sPM0),
              valu('v_lshlrev_b32', vT, 4, l), valu('v_accvgpr_write_b32', aPr, t0), valu('v_subrev_u32', t0, sPM0, t0), valu('v_add_u32', t0, sW4K, t0),
              valu('v_accvgpr_write_b32', aPq, t0)]
        for k in range(3):
            o += [valu('v_add_u32', t0, 64 * k, l), valu('v_mul_u32_u24', t1, 171, t0), valu('v_lshrrev_b32', t1, 11, t1),
                  valu('v_mul_u32_u24', t2, 12, t1), valu('v_sub_u32', t2, t0, t2), valu('v_and_b32', t3, 8, t1), valu('v_add_u32', t1, t1, t3),
                  valu('v_mul_u32_u24', t1, 1152, t1), valu('v_lshl_add_u32', t1, t2, 4, t1), valu('v_subrev_u32', t1, 1024 * k, t1),
                  valu('v_accvgpr_write_b32', aPd[k], t1)]
        o += [salu('s_lshl_b32', sT0, sW, 6), valu('v_add_u32', t0, sT0, q), smul(sT1, sB, 240)]
        for qt in range(4):
            o += [valu('v_add_u32', t1, 16 * qt, t0),
                  valu('v_add_u32', t2, sT1, t1), valu('v_lshrrev_b32', t3, 5, t2), valu('v_lshlrev_b32', t3, 18, t3),
                  valu('v_and_b32', t2, 31, t2), valu('v_lshl_add_u32', t3, t2, 4, t3), valu('v_lshl_add_u32', t3, g, 9, t3),
                  v_cmp('v_cmp_gt_u32', 240, t1), valu('v_mov_b32', t2, HUGE), s_nop(0),
                  valu('v_cndmask_b32', vO[qt], t2, t3, VCC)]
        o += [salu('s_and_b32', sT0, S(2), 3), salu('s_lshl_b32', sT0, sT0, 5), salu('s_lshr_b32', sT1, S(2), 3), salu('s_add_u32', sT0, sT0, sT1),
              salu('s_lshr_b32', sT2, sW, 1), salu('s_and_b32', sT1, sW, 1), smul(sPU[0], sT0, 32 * 1152), smul(sPU[1], sT2, 8 * 1152), smul(sPU[2], sT1, 576),
              salu('s_add_u32', sPU[0], sPU[0], sPU[1]), salu('s_add_u32', sPU[0], sPU[0], sPU[2]),
              salu('s_add_u32', sPU[1], sPU[0], 192), salu('s_add_u32', sPU[2], sPU[0], 384),
              salu('s_lshl1_add_u32', sT2, sT0, sT2), smul(sT2, sT2, 3072), smul(sPV[0], sT1, 3 * 786432), salu('s_add_u32', sPV[0], sPV[0], sT2),
              salu('s_add_u32', sPV[1], sPV[0], 786432), salu('s_add_u32', sPV[2], sPV[0], 2 * 786432)]
    rest, o = o[mark:], o[:mark]
    for i, x in enumerate(rest):
        if i % 12 == 0 and zero and x.kind != 'nop' and (not o or o[-1].kind != 'nop'): o.append(zero.pop(0))
        o.append(x)
    assert not zero
    return o + probe(2) + late + probe(3)

def kernel1():
    qs, qtr, lim = q_loop()
    head = k1_setup() + [s_mov(sLIM, lim)] + ([] if OPT['trk'] else [s_mov(S(6), 0), s_mov(S(7), 1024), s_mov(S(10), 0), s_mov(S(11), scat('n', 1))]) + stamp(0)
    if OPT['stamp']:
        head[2:2] = [raw("s_memrealtime s[78:79]"), raw("s_waitcnt lgkmcnt(0)"), valu('v_mov_b32', V(31), S(78))]
        head += [valu('v_mov_b32', V(29), 0 if OPT['dbg'] else 60), raw("s_nop 0"), raw("buffer_store_dword v31, v29, s[72:75], s76 offen", 'vstore'), raw("s_nop 1")]
    head += [wait(vm=[Xn(0, 0), Xn(0, 1)])] + probe(4) + [rd_X(0, 0, qt) for qt in range(4)]
    head += [valu('v_xor_b32', vXr[0][0], 0xC000, vXr[0][0]), valu('v_xor_b32', vXr[1][0], 0x18000, vXr[1][0])]
    head += [wait(vm=['E1']), s_barrier()] + flat([rd_W(p, 0, 0, p) for p in range(4)]) + [wait(lg=[Wf(0), Wf(1)])] + probe(5) + probes_out(8)
    tail = [label('L_qtail')] + (istamp(32, sCNT, 0) + q_half(7, 0, True) + q_half(7, 1, True) if OPT['pl'] else []) + stamp(1) + q_tail() + stamp(2)
    bodies = []
    for hd in range(2):
        for t in range(15 - hd * OPT['npl']):
            j = 32 * hd + 2 * t + 1
            bodies.append([label('L_att')] + istamp(48, sKOFF, 14) + period(j) + period(j + 1) + [s_cmp('s_cmp_lg_u32', sKOFF, sEND), s_branch('s_cbranch_scc1', 'L_att')])
            if len(bodies) > 1: del REP[-2:]
    rolled('att', bodies)
    after = [s_cmp('s_cmp_lg_u32', sITEM, 0), s_branch('s_cbranch_scc1', 'L_last')]
    mid = boundary()
    mid = mid[:1] + stamp(3) + mid[1:] + stamp(18) + [s_branch('s_branch', 'L_att')]
    last = final()
    last = last[:1] + stamp(19) + last[1:] + [label('L_k1_end'), raw('s_endpgm')]
    al = [raw(f".p2align {OPT['al']}", 'label')] if OPT['al'] else []
    static = head + al + qs + tail + al + bodies[0] + after + mid + last
    trace = head + qtr + tail + flat(bodies[:15]) + after + mid + flat(bodies[15:]) + after + last
    tramps = []
    for i in sites:
        tramps += [label(f"L_tramp{i}"), raw(f"s_call_b64 {sRET}, L_fb", 'branch', [], [sRET]), s_branch('s_branch', f"L_ret{i}")]
    return static, trace, tramps + fallback()

def descriptor(name, vgpr, accum, sgpr=96):
    return f""".amdhsa_kernel {name}
  .amdhsa_next_free_vgpr {vgpr}
  .amdhsa_next_free_sgpr {sgpr}
  .amdhsa_accum_offset {accum}
  .amdhsa_group_segment_fixed_size 0
  .amdhsa_kernarg_size 104
  .amdhsa_user_sgpr_count 2
  .amdhsa_user_sgpr_kernarg_segment_ptr 1
  .amdhsa_system_sgpr_workgroup_id_x 1
.end_amdhsa_kernel
"""

def finish(static, trace, rare, name):
    tr = expand(trace)
    resolve_waits(tr)
    errs = check(tr, name)
    if rare:
        resolve_waits(rare)
        errs += check(rare, name + "_rare")
    seen = set()
    for e in errs:
        k = e.split('] ', 1)[1]
        if k not in seen and len(seen) < 40: print("CHECK:", e, file=sys.stderr)
        seen.add(k)
    if errs: print(f"{len(errs)} check errors in {name}", file=sys.stderr)
    return render(static) + "\n" + (render(rare) if rare else "")

def main():
    ref = open(os.path.join(os.path.dirname(os.path.abspath(__file__)), '..', 'cdna_kernels', NAME + '.s.ref')).read().splitlines()
    hdr = [l for l in ref if l.startswith(';') and '@launch' not in l and 'Override launch' not in l and 'grid=ceil' not in l]
    st, tr, rare = kernel1()
    if OPT['rep']:
        for r in REP: print(len(r), sum(max(0, x - 8) for x in r), r, file=sys.stderr)
    out = hdr[:]
    out.append("; OLAY=17" if OPT["s16"] else "; OLAY=16")
    if OPT['k1']: out.append("; @launch kernel=attn_kernel grid=(256,1,1) block=(256,1,1) lds=163840")
    import gen4, gen7k2
    if OPT['s16']: gen4 = gen7k2
    if OPT['k2']: out.append(f"; @launch kernel=oproj_kernel grid=(240,1,1) block=(256,1,1) lds={gen4.LDS}")
    out += ['.amdgcn_target "amdgcn-amd-amdhsa--gfx950"', '.text', '.globl attn_kernel', '.p2align 8', '.type attn_kernel,@function', 'attn_kernel:']
    out.append(finish(st, tr, rare, 'k1'))
    if OPT['k2']:
        if OPT['dbg']: OPT['stamp'] = 0
        k2 = gen4.kernel2(OPT)
        out += ['.globl oproj_kernel', '.p2align 8', '.type oproj_kernel,@function', 'oproj_kernel:']
        out.append(finish(k2, k2, None, 'k2'))
    out += ['.section .rodata,"a"', '.p2align 6', descriptor('attn_kernel', 512, 256, 102)]
    if OPT['k2']:
        out += ['.p2align 6', descriptor('oproj_kernel', 512, 256)]
    open(sys.argv[1], 'w').write("\n".join(out))

if __name__ == '__main__':
    main()
```

```python
import sys, os, math, struct
from asmlib import *
import asmlib

NAME = "concat_heads__mha_block_cached__gqa_block_cached__near_ridge"
OPT = dict(stamp=0, k2=1, k1=1, ost=' sc1', pst=' sc1', xf='', wf='', pf=' nt', kvf=' nt', rot=0, rep=0,
           depth=5, rot2=0, s16=1, tch=0, tf='', t0=5, tstep=4, pat='ggtNtttwwn', trk=0, tg=62, dbg=0, lag=8, rmul=1, d16=2, snake=0, uf='', of='', wof='', kv0=5, pk0=0, cinit=1, al=6, dc=8, forcefb=0, nodma=0, dg=3, nost=0,
           xr=3, dst=0, cpp=0, cp2=0, cf='', cpf=2, kg='37,37,46,46,47,47,55,55', un=0, sk=3, tlb=0, wb='', ost2=' sc1', pl=1, e0=1, npl=2, st0=14, st1=-8, prd=80, nopk=0, la=4, g2=17, g3=85, gv=50)
RAW = ('pat', 'wb', 'kg')
STR = ('cf', 'ost2', 'uf', 'tf', 'ost', 'pst', 'xf', 'wf', 'pf', 'kvf', 'of', 'wof')
for a in sys.argv[2:]:
    k, v = a.split('=')
    OPT[k] = v if k in RAW else ((' ' + v.replace('+', ' ')) if v != '-' else '') if k in STR else int(v)
asmlib.COST['dma'] = OPT['dc']

def f2u(x): return struct.unpack('<I', struct.pack('<f', x))[0]
O_BYTES = 60 * 262144
OU = 1024 if OPT['s16'] else 2048
PACK_OFF = 32 * 1024 * 1024
PACK_BYTES = 4096 * 1152
HUGE = 0x7f000000
SH = '16x16x32'

def posn(ch): return [8 + i for i, c in enumerate(OPT['pat']) if c == ch] + [8 + i for i, c in enumerate(OPT['pat']) if c == ch.upper()]
def scat(ch, v): return sum(((v >> b) & 1) << p for b, p in enumerate(posn(ch)))
def mp(t): return scat('t', t & 15) | (t >> 4) << 18
LIN = posn('t') == [14, 15, 16, 17]
TMASK = 0xfffc0000 | scat('t', 15)
assert scat('n', 2) == 2048 and scat('n', 1) >= 1024 and posn('t') == sorted(posn('t'))
def next_tile(r): return [salu('s_add_u32', r, r, 16384)] if LIN else [salu('s_sub_u32', r, r, TMASK), salu('s_and_b32', r, r, TMASK)]
def s_scat(d, ch, src, tmp):
    o = []
    for b, p in enumerate(posn(ch)):
        o += [salu('s_bfe_u32', tmp, src, 0x10000 + b), salu('s_lshl_b32', tmp if b else d, tmp, p)] + ([salu('s_or_b32', d, d, tmp)] if b else [])
    return o

pX, pK, pV, pWQ, pWO, pWS = S(4, 2), S(6, 2), S(8, 2), S(10, 2), S(12, 2), S(14, 2)
srdP, srdQ = S(16, 4), S(20, 4)
sPU, sPV = [S(24), S(25), S(26)], [S(27), S(28), S(29)]
sLIM, sXR, sXK, sXV = S(30), S(31), S(12), S(13)
srdK, srdV, srdO = S(32, 4), S(36, 4), S(40, 4)
srdX, srdW = [S(44, 4), S(48, 4)], [S(52, 4), S(56, 4)]
sSCALE = S(60, 2)
sRET = S(62, 2)
sW, sB, sH, sP, sW4K, sT0, sT1, sT2 = S(64), S(65), S(66), S(67), S(68), S(3), S(69), S(80)
sSTAMP = S(70, 2)
sKOFF, sVOFF, sKM, sTG, sEND, sITEM = S(81), S(82), S(83), S(84), S(85), S(86)
sXC, sWC, sXM, sWM, sCNT = S(87), [S(88), S(89)], [S(90), S(91)], S(92), S(93)
sHI, sLO, sPM0, sPAD, sFH = S(94), S(95), S(96), S(97), S(98)
sOA = [S(99), S(100)]
sOB = [S(10), S(11)]
sMASK = S(4, 2)
sF, sF2, sFC = S(6), S(7), S(8)
sR0 = S(101)
vKr = [V(1 + i) for i in range(4)]
vVr = [V(5 + i) for i in range(8)]
vKd = [V(13 + i) for i in range(4)]
vVd = [V(17), V(18)]
vIDX = V(19)
vCI = V(20, 4)
vO = [V(24 + i) for i in range(4)]
vRC = V(28, 4)
vT = V(0)
def Sreg(qt, kt): return V(32 + qt * 8 + (4 * kt if qt % 2 else 4 - 4 * kt), 4)
def Preg(qt): return Sreg(qt, 0)
def Qreg(qt, s): return V(64 + qt * 16 + s * 4, 4)
def Oacc(dt, qt): return V(128 + qt * 32 + dt * 4, 4)
def QACC(h, s, tt, qt): return (V(128 + qt * 32 + s * 8 + tt * 4, 4) if h == 0 else A(qt * 32 + s * 8 + tt * 4, 4))
vXg = [V(32 + i) for i in range(8)]
vWd = [[V(40 + i) for i in range(4)], [V(44 + i) for i in range(4)]]
vXr = [[V(48), V(49)], [V(50), V(51)]]
vWr = [V(52 + i) for i in range(8)]
vTC, sTC, sTD = V(100), S(14), S(15)
def Kf(kt, s): return A(128 + (kt * 4 + s) * 4, 4)
def Vf(dt): return A(160 + dt * 4, 4)
def Wf(p): return A(160 + (p % 8) * 4, 4)
def XF(ks, qt): return A(192 + (ks * 4 + qt) * 4, 4)
def PKf(s, nt): return A(192 + (s * 3 + nt) * 4, 4)
def Lacc(i): return A(224 + 4 * i, 4)
aONE = A(232, 4)
aPd, aPr, aPq = [A(236), A(237), A(238)], A(239), A(240)
GRAY = [0, 1, 3, 2]
def Kn(t): return f"K{GRAY[t % 4]}"
def Vn(t): return f"V{GRAY[t % 4]}"
WN = ['E1', 'E0', 'V3', 'V2']
def Xn(c, part): return f"privX{c % 2}{part}"
XBASE = [[32768, 49152], [16384, 81920]]

def stamp(idx, t0=V(28), t1=V(29)):
    if not OPT['stamp']: return []
    if OPT['dbg']:
        mp = {0: 1, 1: 2, 2: 3, 3: 4, 4: 5, 18: 6, 19: 7, 21: 8, 20: 9}
        if idx not in mp: return []
        r = [raw(f"s_memtime {sSTAMP}", 'salu', [], [sSTAMP]), raw("s_memrealtime s[78:79]"), raw("s_waitcnt lgkmcnt(0)", 'salu'),
             valu('v_mov_b32', t0, S(78)), valu('v_mov_b32', t1, mp[idx] * 4), raw(f"s_nop 0", 'salu'),
             raw(f"buffer_store_dword {t0}, {t1}, s[72:75], 0 offen", 'vstore'), raw("s_nop 1")]
        if idx in (2, 3, 18, 19):
            r += [valu('v_mov_b32', t0, sSTAMP[0]), valu('v_mov_b32', t1, {2: 10, 3: 11, 18: 12, 19: 13}[idx] * 4), raw("s_nop 0"),
                  raw(f"buffer_store_dword {t0}, {t1}, s[72:75], 0 offen", 'vstore'), raw("s_nop 1")]
        return r
    return [raw(f"s_memtime {sSTAMP}", 'salu', [], [sSTAMP]), raw("s_memrealtime s[78:79]"), raw("s_waitcnt lgkmcnt(0)", 'salu'),
            valu('v_mov_b32', t0, sSTAMP[0]), valu('v_mov_b32', t1, idx * 4), raw(f"s_nop 0", 'salu'),
            raw(f"buffer_store_dword {t0}, {t1}, s[72:75], s76 offen", 'vstore'),
            raw("s_nop 1"), valu('v_mov_b32', t0, S(78)), raw("s_nop 0"),
            raw(f"buffer_store_dword {t0}, {t1}, s[72:75], s76 offen offset:32", 'vstore'), raw("s_nop 1")]

def istamp(base, reg, shift):
    if OPT['stamp'] != 2: return []
    t0, t1 = V(30), V(31)
    return [raw(f"s_memtime {sSTAMP}", 'salu', [], [sSTAMP]), raw(f"s_lshr_b32 s77, {reg}, {shift}"), raw("s_and_b32 s77, s77, 15"), raw(f"s_add_u32 s77, s77, {base}"),
            raw("s_lshl_b32 s77, s77, 2"), raw("s_waitcnt lgkmcnt(0)", 'salu'),
            valu('v_mov_b32', t0, sSTAMP[0]), valu('v_mov_b32', t1, S(77)), raw(f"s_nop 0", 'salu'),
            raw(f"buffer_store_dword {t0}, {t1}, s[72:75], s76 offen", 'vstore'), raw("s_nop 1")]

def probe(k):
    if OPT['stamp'] != 3: return []
    return [raw("s_memrealtime s[78:79]"), raw("s_waitcnt lgkmcnt(0)"), valu('v_mov_b32', V(120 + k), S(78))]
def probes_out(n):
    if OPT['stamp'] != 3: return []
    o = []
    for k in range(n): o += [valu('v_mov_b32', V(29), 4 * (48 + k)), raw("s_nop 0"), raw(f"buffer_store_dword v{120 + k}, v29, s[72:75], s76 offen", 'vstore'), raw("s_nop 1")]
    return o

def set_srd(srd, base, off_lo, nbytes):
    return [salu('s_add_u32', srd[0], base[0], off_lo), salu('s_addc_u32', srd[1], base[1], 0),
            s_mov(srd[2], nbytes), s_mov(srd[3], 0x20000)]
def smul(d, a, b): return salu('s_mul_i32', d, a, b, scc=False)
def flat(groups): return [x for g in groups for x in g]
def csel(d, a, b): return I('s_cselect_b32', f"s_cselect_b32 {d}, {a}, {b}", 'salu', [SCC, a, b], [d])
def advance(reg, step, first=0):
    return [salu('s_add_u32', reg, reg, step), s_cmp('s_cmp_eq_u32', reg, 9 * step + first), csel(reg, first, reg)]
def at(groups, gaps):
    assert len(groups) == len(gaps), (len(groups), len(gaps))
    return [F(g, p, p, tail=all(x.kind in ('wait', 'barrier') for x in g)) for g, p in zip(groups, gaps)]

def dma_K(name, m0, soff=sKOFF, adv=True):
    d = [[m0]] + [[buf_dma(vKd[n], srdK, soff, 1024 * n, name, OPT['kvf'])] for n in range(4)]
    if OPT['xr'] or (isinstance(soff, int) and soff): d = [[salu('s_xor_b32', sXK, soff, sXR), m0]] + [[buf_dma(vKd[n], srdK, sXK, 1024 * n, name, OPT['kvf'])] for n in range(4)]
    if OPT['nodma']: d = [[m0]] + [[s_nop(0)] for n in range(4)]
    return tag_m0(d + ([next_tile(sKOFF)] if adv else []))
def dma_V(name, m0, soff=sVOFF, adv=True):
    d = [[m0]] + [[buf_dma(vVd[n % 2], srdV, soff, 1024 * n, name, OPT['kvf'])] for n in range(4)]
    if OPT['xr'] or (isinstance(soff, int) and soff): d = [[salu('s_xor_b32', sXV, soff, sXR), m0]] + [[buf_dma(vVd[n % 2], srdV, sXV, 1024 * n, name, OPT['kvf'])] for n in range(4)]
    if OPT['nodma']: d = [[m0]] + [[s_nop(0)] for n in range(4)]
    return tag_m0(d + ([next_tile(sVOFF)] if adv else []))
def dma_X(part, name):
    return tag_m0([[s_mov(M0, sXM[part])]] + [[buf_dma(vXg[4 * part + n], srdX[part], sXC, 1024 * n, name, OPT['xf'])] for n in range(4)])
def dma_W(i, name, m0):
    return tag_m0([[m0]] + [[buf_dma(vWd[i][n], srdW[i], sWC[i], 1024 * n, name, OPT['wf'])] for n in range(4)])
def PK(s, nt): return A(192 + (s * 3 + nt) * 4, 4) if s * 3 + nt < 8 else A(244, 4)
def pack_in():
    t = [vRC[0], vRC[1], vRC[2]]
    out = [[valu('v_accvgpr_read_b32', t[u], aPd[u])] for u in range(3)]
    for s in range(3):
        out.append([salu('s_add_u32', M0, sPM0, s * 3072) if s < 2 else s_mov(M0, sW4K), s_nop(0)])
        out += [[buf_dma(t[u], srdP, sPU[s], 1024 * u, 'privP' if s < 2 else ('privP', Kn(28)), OPT['pf'])] for u in range(3)]
    return tag_m0(out)
def pack_rd():
    ra, rb = vRC[3], vRC[2]
    o = [[valu('v_accvgpr_read_b32', ra, aPr)], [valu('v_accvgpr_read_b32', rb, aPq), wait(vm=['privP'])]]
    for s in range(3):
        o += [[ds_read('ds_read_b64_tr_b16', PK(s, nt).sub(2 * h, 2), ra if s < 2 else rb, (s % 2) * 3072 + h * 1536 + 8 * nt, 'privP') for h in range(2)] for nt in range(3)]
    return o
def pack_st(units): return [[buf_store('buffer_store_dwordx4', PK(s, nt), vT, srdQ, sPV[s], nt * 1024, OPT['pst'])] for s in units for nt in range(3)]

def slot(name): return 16384 * int(name[1]) if OPT['un'] else 0
def rd_K(name, half, kt, s): return ds_read('ds_read_b128', Kf(kt, s), vKr[s], slot(name) + half * 8192 + kt * 4096, name)
def rd_V(name, half, dt): return [ds_read('ds_read_b64_tr_b16', Vf(dt).sub(2 * h, 2), vVr[dt], slot(name) + half * 8192 + h * 4096, name) for h in range(2)]
def rd_W(p, h, head, i):
    return [ds_read('ds_read_b64_tr_b16', Wf(p).sub(2 * j, 2), vWr[i], (1 - h % 2) * 16384 + j * 2048 + head * 256, WN[h % 4]) for j in range(2)]
def rd_X(c, ks, qt): return ds_read('ds_read_b128', XF(ks, qt), vXr[qt // 2][ks], (qt % 2) * 2048, Xn(c, qt // 2))

ST = [32, 40, 49, 57]
NP = 66
DG = [[[54, 55, 57, 59, 61, 62], [54, 55, 57, 59, 61, 62]], [[38, 39, 48, 55, 60, 62], [15, 16, 30, 45, 58, 60]],
      [[38, 39, 40, 59, 60, 62], [15, 16, 17, 44, 45, 60]], [[38, 39, 43, 57, 61, 62], [15, 16, 20, 41, 45, 60]],
      [[38, 39, 43, 75, 79, 80], [33, 34, 38, 59, 63, 64]], [[57, 58, 62, 83, 87, 88], [40, 41, 45, 59, 63, 64]]][OPT['dg']]
PEND = {}
REP = []
def period_parts(j, B=0, first=False, nxt=True, kg=None, dma=True, skip=False):
    t, odd = j // 2, j % 2
    mf = []
    for qt in range(4):
        for kt in range(2):
            for s in range(4):
                c = Sreg(qt, kt) if s else (vCI if (qt == 3 and OPT['cinit']) else 0)
                mf.append(mfma(Sreg(qt, kt), Kf(kt, s), Qreg(qt, s), c, SH) if not (skip and qt == 3) else s_nop(7) if kt + s == 0 else None)
    for qt in range(4):
        if qt % 2: mf.append(smfmac(Lacc(qt // 2), aONE, V(Preg(qt - 1).i, 8), vIDX))
        for dt in range(8): mf.append(mfma(Oacc(dt, qt), Vf(dt), Preg(qt), 0 if first else Oacc(dt, qt), SH) if not (skip and qt == 3) else None)
    fl = []
    prev = None
    for qt in range(3 if skip else 4):
        dl = B + ST[qt] - 3
        pc = None
        for kt in range(2):
            lo = B + 8 * qt + 4 * kt + 3 + 4
            ex = []
            for r in range(4):
                prev = F(valu('v_exp_f32', Sreg(qt, kt)[r], Sreg(qt, kt)[r]), lo, dl - 1, after=[prev]); ex.append(prev)
            fl += ex
            for h in range(2):
                pc = F(valu('v_cvt_pk_bf16_f32', Preg(qt)[2 * kt + h], Sreg(qt, kt)[2 * h], Sreg(qt, kt)[2 * h + 1]), lo, dl,
                       after=[(ex[2 * h + 1], 1), pc]); fl.append(pc)
    vr = at([rd_V(Vn(t), odd, dt) for dt in range(8)], [B + g for g in range(8)]); fl += vr
    fl += at([[wait(lg=[Vf(dt) for dt in range(8)])]], [B + 31])
    if nxt:
        kg = kg or [int(x) for x in OPT['kg'].split(',')]
        fl += at([[rd_K(Kn(t + odd), 1 - odd, i // 4, i % 4)] for i in range(8)], [B + g for g in kg])
        fl += at([[wait(lg=0)]], [B + 65])
        if odd:
            fl += at([[wait(vm=[Kn(t + 1), Vn(t + 1)]), s_barrier()]], [B + 36])
            if dma:
                d = dma_K(Kn(t + OPT['la']), salu('s_add_u32', M0, sW4K, slot(Kn(t + OPT['la']))) if OPT['un'] else s_mov(M0, sKM))
                n1 = sum(g < NP for g in DG[0])
                fl += at(d[:n1], [B + g for g in DG[0][:n1]])
                if n1 < 6: PEND[j + 1] = (tag_m0([[s_mov(M0, sKM)]] + d[n1:]), [DG[0][n1] - NP - 1] + [g - NP for g in DG[0][n1:]])
            if not OPT['un']: fl += [F(valu('v_xor_b32', vVr[dt], sTG, vVr[dt]), B + 31, B + 65) for dt in range(8)]
        else:
            if j in PEND: d, gs = PEND.pop(j); fl += at(d, [B + g for g in gs])
            if dma: fl += at(dma_V(Vn(t + OPT['la'] - 1), salu('s_add_u32', M0, sW4K, 65536 + slot(Vn(t + OPT['la'] - 1))) if OPT['un'] else salu('s_add_u32', M0, sKM, 65536)), [B + g for g in DG[1]])
            x = F([salu('s_xor_b32', sKM, sKM, sTG), salu('s_xor_b32', sTG, sTG, 49152)][::1 if OPT['la'] == 4 else -1], B + DG[1][0] + 1, B + 60)
            if not OPT['un']: fl += [x] + [F(valu('v_xor_b32', vKr[s], sTG, vKr[s]), B + 54, B + 65, after=[x]) for s in range(4)]
    return mf, fl
def period(j, extra=(), **kw):
    mf, fl = period_parts(j, **kw)
    return schedule(mf, fl + list(extra), 8, REP)

def q_half(c, hf, last, skip=False):
    h = 2 * c + hf
    mf = [mfma(QACC(i // 8, (i % 8) // 2, i % 2, qt), Wf(i), XF(hf, qt), QACC(i // 8, (i % 8) // 2, i % 2, qt), SH) if not (skip and qt == 3) else s_nop(0) if i == 15 else None
          for i in range(16) for qt in range(4)]
    fl = []
    for i in range(16):
        p = i + 4
        fl += at([rd_W(p, h, p // 8, p % 8) if p < 16 else rd_W(p, h + 1, 0, p - 16)], [4 * i])
    for i in range(2, 18, 2):
        w = [Wf(i), Wf(i + 1)] + ([XF(1 - hf, qt) for qt in range(4)] if i == 16 else [])
        fl += at([[wait(lg=w)]], [4 * i - 1])
    fl += at([[wait(vm=[WN[(h + 1) % 4]]), s_barrier()]], [46])
    if hf == 0:
        fl += at([[rd_X(c, 1, 0), rd_X(c, 1, 2)], [rd_X(c, 1, 1), rd_X(c, 1, 3)],
                  [valu('v_xor_b32', vXr[0][1], 0xC000, vXr[0][1]), valu('v_xor_b32', vXr[1][1], 0x18000, vXr[1][1])]], [1, 2, 5])
        if last and OPT['pl']: fl += at(dma_K((Xn(c, 0), Kn(1)), salu('s_add_u32', M0, sW4K, 16384), mp(1), False), [17, 18, 22, 26, 30])
        else:
            fl += at(dma_X(0, (Xn(c, 0), Kn(1)) if last else Xn(c, 0)), [17, 18, 22, 26, 30])
            fl += at([[salu('s_xor_b32', sXM[0], sXM[0], 0xC000)]], [33])
        fl += at(dma_W(0, WN[(h + 3) % 4], salu('s_xor_b32', M0, sWM, 0x38000)) + [advance(sWC[0], 524288, 262144)], [49, 50, 53, 57, 61, 62])
    else:
        if last and OPT['pl']: fl += at(dma_V((Xn(c, 1), Vn(1)), salu('s_add_u32', M0, sW4K, 81920), mp(1), False), [1, 2, 6, 10, 14])
        else:
            fl += at(dma_X(1, (Xn(c, 1), Vn(1)) if last else Xn(c, 1)), [1, 2, 6, 10, 14])
            fl += at([[salu('s_xor_b32', sXM[1], sXM[1], 0x18000)], advance(sXC, 128)], [17, 18])
        fl += at([[wait(vm=[Xn(c + 1, 0), Xn(c + 1, 1)])], [rd_X(c + 1, 0, 0), rd_X(c + 1, 0, 2)], [rd_X(c + 1, 0, 1), rd_X(c + 1, 0, 3)],
                  [valu('v_xor_b32', vXr[0][0], 0xC000, vXr[0][0]), valu('v_xor_b32', vXr[1][0], 0x18000, vXr[1][0])]], [37, 38, 41, 42])
        fl += at([[valu('v_xor_b32', vWr[i], 0x38000, vWr[i])] for i in range(8)], [19, 21, 25, 29, 33, 37, 43, 45])
        if last and OPT['pl']:
            if OPT['la'] == 4 and not OPT['gv']: fl += at(dma_V(Vn(2), salu('s_add_u32', M0, sW4K, 114688), mp(2), False), [49, 50, 53, 57, 61])
        else:
            fl += at(dma_W(1, WN[(h + 3) % 4], salu('s_add_u32', M0, sWM, 16384)) + [advance(sWC[1], 524288)], [49, 50, 53, 57, 61, 62])
            fl += at([[salu('s_xor_b32', sWM, sWM, 0x38000)]], [51])
    if not OPT['trk'] and not last:
        sN, sNX, sTA, sTB, vTK = S(6), S(7), S(8), S(9), V(64)
        same = scat('n', 1) == 1024
        sN2, sNX2 = (sN, sNX) if same else (S(10), S(11))
        if hf == 0:
            fl += at([[salu('s_or_b32', sTA, sXR, sN2), salu('s_lshr_b32', sTB, sN, 4)], [s_cmp('s_cmp_lt_u32', sCNT, 3), I('s_cselect_b32', f"s_cselect_b32 {sTA}, {HUGE}, {sTA}", 'salu', [SCC, sTA], [sTA])],
                      [valu('v_xor_b32', vTK, sTB, vKd[0])]], [34, 35, 37])
            fl += at(tag_m0([[salu('s_or_b32', M0, sW4K, sN)], [buf_dma(vTK, srdK, sTA, 0, Kn(0), OPT['kvf'])]]), [OPT['tg'], OPT['tg'] + 1])
        else:
            fl += at([[salu('s_lshr_b32', sTB, sN, 3), salu('s_and_b32', sTB, sTB, 128)], [valu('v_xor_b32', vTK, sTB, vVd[0])],
                      [salu('s_or_b32', sTB, sN, 65536), salu('s_xor_b32', sN, sN, sNX)], [salu('s_xor_b32', sNX, sNX, 3072)]], [34, 35, 55, 59])
            if not same: fl += at([[salu('s_xor_b32', sN2, sN2, sNX2), salu('s_xor_b32', sNX2, sNX2, scat('n', 3))]], [58])
            fl += at(tag_m0([[salu('s_or_b32', M0, sW4K, sTB)], [buf_dma(vTK, srdV, sTA, 0, Vn(0), OPT['kvf'])]]), [OPT['tg'], OPT['tg'] + 1])
    if OPT['tch'] and not last and (hf == 0 or OPT['tch'] == 2):
        if hf == 0: fl += at([[salu('s_xor_b32', sTD, sTC, sXR)], [salu('s_or_b32', sTC, sTC, ~TMASK & 0xffffffff), salu('s_add_u32', sTC, sTC, mp(OPT['tstep']) )], [salu('s_and_b32', sTC, sTC, TMASK)]], [38, 41, 42])
        fl += at([[buf_load('buffer_load_dword', V(101 + hf), vTC, [srdK, srdV][hf], sTD, 0, OPT['tf'])]], [63])
    return schedule(mf, fl, 8, REP)

def q_loop(skip=False):
    NR = 7 if OPT['pl'] else 8
    bodies = []
    lab = 'L_qs' if skip else 'L_q'
    for c in range(NR):
        b = [label(lab)] + istamp(32, sCNT, 0) + q_half(c, 0, c == 7, skip) + q_half(c, 1, c == 7, skip)
        b += [salu('s_add_u32', sCNT, sCNT, 1), s_cmp('s_cmp_lg_u32', sCNT, sLIM), s_branch('s_cbranch_scc1', lab)]
        bodies.append(b)
    rolled(lab, bodies)
    blk = {}
    for part in range(OPT['trk']):
        n0, n1 = part * 4 // OPT['trk'], (part + 1) * 4 // OPT['trk']
        a = dma_K(Kn(0), s_mov(M0, sW4K), 0, False); a = a[0] + [s_nop(0)] + flat(a[1 + n0:1 + n1])
        b = dma_V(Vn(0), salu('s_add_u32', M0, sW4K, 65536), 0, False); b = b[0] + [s_nop(0)] + flat(b[1 + n0:1 + n1])
        blk.setdefault(OPT['kv0'] + part, []).extend(a + b)
    if not OPT['pl']:
        sw = []
        for d, s in ((srdX[0], srdK), (srdX[1], srdV), (srdW[1], srdV)):
            sw += [s_mov(d[k], s[k]) for k in range(3)]
        sw += [salu('s_xor_b32', sXC, sXR, mp(1)), salu('s_xor_b32', sWC[1], sXR, mp(2))]
        for n in range(4):
            sw += [valu('v_mov_b32', vXg[n], vKd[n]), valu('v_mov_b32', vXg[4 + n], vVd[n % 2]), valu('v_mov_b32', vWd[1][n], vVd[n % 2])]
        blk.setdefault(6, []).extend(sw)
    cs = sorted(blk)
    static, trace = bodies[0][:], []
    full = {}
    for k, c in enumerate(cs):
        hd = [label(f'L_q{k}'), s_cmp('s_cmp_lg_u32', sCNT, c + 1), s_branch('s_cbranch_scc1', f'L_q{k + 1}' if k + 1 < len(cs) else 'L_qtail')]
        full[c] = hd + blk[c] + [s_mov(sLIM, (cs + [NR - 1])[k + 1] + 1), s_branch('s_branch', 'L_q')]
        static += full[c]
    for c in range(NR): trace += bodies[c] + full.get(c, [])
    return static, trace, (cs[0] + 1 if cs else NR)

def conv(h, qt, s, tmp=None, pk=True):
    q = Qreg(qt, s)
    g = []
    src = V(QACC(0, s, 0, qt).i, 8) if h == 0 else tmp
    if h == 1: g += [[valu('v_accvgpr_read_b32', tmp[i], A(QACC(1, s, 0, qt).i + i))] for i in range(8)]
    if pk: g += [[pk_mul_s(src.sub(2 * i, 2), sSCALE)] for i in range(4)]
    else: g += [[valu('v_mul_f32', src[i], sSCALE[0], src[i])] for i in range(8)]
    g += [[valu('v_cvt_pk_bf16_f32', q[i], src[2 * i], src[2 * i + 1])] for i in range(4)]
    return g, [[perm16(q[0], q[2])], [perm16(q[1], q[3])]]
def l_init():
    return [[valu('v_accvgpr_write_b32', Lacc(i // 4)[i % 4], sPAD if i == 6 else 0)] for i in range(8)]

def q_tail():
    seq = [(hd, ks, i) for hd in range(2) for ks in range(2) for i in range(8)]
    mf = [mfma(QACC(hd, i // 2, i % 2, qt), Wf(p), XF(ks, qt), QACC(hd, i // 2, i % 2, qt), SH)
          for p, (hd, ks, i) in enumerate(seq) for qt in range(4)]
    B = 128
    m0, fl = period_parts(0, B, first=True)
    mf += m0
    for p in range(4, 32): fl += at([rd_W(p, 16 + seq[p][1], seq[p][0], seq[p][2])], [4 * (p - 4)])
    for p in range(2, 32, 2): fl += at([[wait(lg=[Wf(p), Wf(p + 1)] + ([XF(1, qt) for qt in range(4)] if p == 8 else []))]], [4 * p - 1])
    fl += at([[rd_X(8, 1, 0), rd_X(8, 1, 2)], [rd_X(8, 1, 1), rd_X(8, 1, 3)], [wait(vm=['E0']), s_barrier()]], [1, 2, 14])
    fl += at(dma_K((Kn(2), Xn(8, 1)), salu('s_add_u32', M0, sW4K, 49152)), [OPT['g2'] + g for g in (0, 1, 4, 5, 8, 9)])
    if OPT['la'] == 4:
        fl += at(dma_K((Kn(3), Xn(8, 0)), s_mov(M0, sKM)), [OPT['g3'] + g for g in (0, 1, 4, 5, 8, 9)])
        if OPT['gv']: fl += at(dma_V(Vn(2), salu('s_add_u32', M0, sW4K, 114688), mp(2), False), [OPT['gv'] + g for g in (0, 1, 4, 5, 8)])
    fl += chain(l_init(), 5, 40, step=1)
    fl += at([[wait(vm=[Kn(0), Vn(0)], lg=0), s_barrier()]], [119])
    fl += at([[rd_K(Kn(0), 0, i // 4, i % 4)] for i in range(8)], [120, 120, 121, 121, 122, 122, 123, 123])
    fl += at([[wait(lg=[Kf(0, s) for s in range(4)])], [wait(lg=[Kf(1, s) for s in range(4)])]], [127, B + 3])
    prev, sw = None, []
    order = [(qt, s) for s in range(3) for qt in range(4)] + [(qt, 3) for qt in range(4)]
    order.sort(key=lambda x: (x[1] if x[1] < 2 else 2, x[0]))
    for qt, s in order:
        g, p16 = conv(0, qt, s, pk=OPT['pk0'])
        lo = 4 * (9 + 2 * s) + qt + 5
        hi = B + 8 * qt - 2
        ch = chain(g + [[s_nop(0)]] + p16[:1] + p16[1:], lo, hi, after=[prev], per=0); prev = ch[-1]; fl += ch
    return schedule(mf, fl, 8, REP)

sites = []
def check_parts():
    t = [V(32 + i) for i in range(8)]
    g = [[valu('v_accvgpr_read_b32', t[i], Lacc(i // 4)[i % 4])] for i in range(8)]
    g += [[valu('v_add_f32', vRC[q], t[2 * q], t[2 * q + 1])] for q in range(4)]
    g += [[valu('v_add_f32', t[0], vRC[0], vRC[1])], [valu('v_add_f32', t[1], vRC[2], vRC[3])], [valu('v_min3_f32', t[2], vRC[0], vRC[1], vRC[2])],
          [valu('v_add_f32', t[0], t[0], t[1])], [valu('v_min_f32', t[2], t[2], vRC[3])], [v_cmp('v_cmp_ngt_f32', sHI, t[0])],
          [I('v_cmp_gt_f32', f"v_cmp_gt_f32_e64 {sMASK}, {sLO}, {t[2]}", 'valu', [sLO, t[2]], [sMASK])]]
    k = len(sites); sites.append(k)
    br = [s_nop(0), I('s_or_b64', f"s_or_b64 {sMASK}, {sMASK}, vcc", 'salu', [sMASK, VCC], [sMASK, SCC]),
          s_branch('s_cbranch_scc0' if OPT['forcefb'] else 's_cbranch_scc1', f"L_tramp{k}"), label(f"L_ret{k}")]
    return g, br
def with_check(mf, fl, B, pad):
    ck, br = check_parts()
    c1 = chain(ck[:4], B + 50, B + 62, per=0)
    return schedule(mf, fl + c1 + chain([[s_nop(pad)]] + ck[4:], B + 64, B + 65, per=0, after=c1[-1:]), 8, REP) + br
def parked(qt):
    return [buf_store('buffer_store_dwordx4', A(32 * qt + 4 * m, 4), vO[qt], srdO, sOB[m // 2], (m % 2) * OU, OPT['ost']) for m in range(4)]
def epilogue(qt, mid=False):
    g = []
    for m in range(4):
        o = V(Oacc(2 * m, qt).i, 8)
        g += [[pk_mul_v(o.sub(2 * i, 2), vRC.sub(qt & 2, 2), qt & 1)] for i in range(4)]
        g += [[valu('v_cvt_pk_bf16_f32', o[i], o[2 * i], o[2 * i + 1])] for i in range(4)]
        if mid and not OPT['dst']: g += [[valu('v_accvgpr_write_b32', A(32 * qt + 4 * m + i), o[i])] for i in range(4)]
        else: g += [[buf_store('buffer_store_dwordx4', o.sub(0, 4), vO[qt], srdO, sOA[m // 2], (m % 2) * OU, OPT['ost2'])]]
    return g
def rcp(): return [valu('v_rcp_f32', vRC[q], vRC[q]) for q in range(4)]

def boundary():
    o = [label('L_mid')] + with_check(*period_parts(31), 0, 1) + stamp(4, V(32), V(33)) + stamp(16, V(32), V(33)) + stamp(17, V(32), V(33))
    o += rcp() + flat(l_init())
    o += [s_mov(sITEM, 1), s_mov(sFH, 262144), s_mov(sEND, mp(31 + OPT['la'] - OPT['npl'])), s_mov(sOB[0], sOA[0]), s_mov(sOB[1], sOA[1])]
    tmp = V(56, 8)
    def cv(qt):
        out, pend = [], []
        for s in range(4):
            g, p = conv(1, qt, s, tmp)
            out += g[:2] + pend + g[2:]; pend = p
        return out + [[s_nop(1)]] + pend
    o += flat(cv(0)) + flat(epilogue(0, True)) + [s_nop(1)]
    e, prev = [], None
    for qt in range(1, 4):
        ch = chain(cv(qt), 8 * qt - 8, 8 * qt - 2, after=[prev], per=0); prev = ch[-1]; e += ch
    for qt in range(1, 4):
        ch = chain(epilogue(qt, True), 20, ST[qt] - 3, after=[prev], per=0); prev = ch[-1]; e += ch
    e += chain([[salu('s_add_u32', sOA[0], sOA[0], 4 * OU), salu('s_add_u32', sOA[1], sOA[1], 4 * OU)]], 40, 65, after=[prev], per=0)
    if OPT['tlb']:
        t = [buf_load('buffer_load_dword', A(248 + q), vO[q], srdO, sOB[0], 0, ' nt') for q in range(4)]
        t += [buf_load('buffer_load_dword', A(252 + u), vT, srdQ, sPV[u], 0, ' nt') for u in range(3)] + [buf_load('buffer_load_dword', A(255), vT, srdP, sPU[0], 0, ' nt')]
        e += at([[x] for x in t], [56 + i for i in range(8)])
    return o + period(32, extra=e, first=True)
def final():
    mf, fl = [], []
    n = 2 * OPT['npl'] + 1
    for k in range(n):
        m, f = period_parts(64 - n + k, NP * k, nxt=k < n - 1, dma=False)
        mf += m; fl += f
    B = NP * (n - 1)
    if OPT['npl'] < 3: pi = chain(pack_in(), 0, 13, per=0); p0 = pi[-1:]
    else:
        g = pack_in()
        pi = chain(g[:11], 0, 10, per=0); p0 = pi[-1:]
        pi += chain(g[11:], 37, 44, per=0, after=p0)
    pr = chain(pack_rd(), OPT['prd'], OPT['prd'] + 40, step=3, per=0)
    pw = F(wait(lg=[PK(s, nt) for s in range(3) for nt in range(3)]), OPT['prd'] + 40, OPT['prd'] + 60, after=[pr[-1]])
    st = [[x] for qt in range(4) for x in parked(qt) if not OPT['dst']] + pack_st(range(3))
    lo, hi = (OPT['prd'] + 60 if OPT['dst'] else OPT['st0']), NP * n + OPT['st1']
    st = chain(st, lo, hi, step=(hi - lo) / len(st), per=0, slack=6, after=p0)
    st[-9].after.append((pw, 0))
    for k, g in enumerate(OPT['wb'].split(',') if OPT['wb'] else []):
        st += at([[salu('s_lshr_b32', sT1, S(2), 3), salu('s_lshl_b32', sT2, sW, 8), salu('s_or_b32', sT1, sT1, sT2), s_cmp('s_cmp_lg_u32', sT1, k),
                   s_branch('s_cbranch_scc1', f'L_wb{k}'), raw('buffer_wbl2 sc1'), label(f'L_wb{k}')]], [int(g)])
    if OPT['nopk'] == 1: st = st[:16]
    if OPT['nopk'] == 2: st = []
    o = [label('L_last')] + with_check(mf, fl + pi + pr + [pw] + st, B, 4) + stamp(21, V(40), V(41)) + rcp()
    for qt in range(4): o += flat(epilogue(qt))
    return o + stamp(20, V(32), V(33))

def fallback():
    vk, vv, ad, f, t, t2 = V(32), [V(33), V(34)], V(35), V(36), V(37), V(38)
    m, s8 = [V(40 + q) for q in range(4)], V(48, 8)
    l = [vRC[q] for q in range(4)]
    def FK(kt, s): return A(192 + (kt * 4 + s) * 4, 4)
    def xmax(op, x):
        return [valu('v_mov_b32', t2, x), s_nop(1), perm16(x, t2), valu(op, x, x, t2), valu('v_mov_b32', t2, x), s_nop(1), permswap(x, t2), valu(op, x, x, t2)]
    o = [label('L_fb'), s_nop(15), raw('s_waitcnt vmcnt(0) lgkmcnt(0)')]
    o += [raw(f"v_mbcnt_lo_u32_b32 {t}, -1, 0", 'valu', [], [t]), raw(f"v_mbcnt_hi_u32_b32 {t}, -1, {t}", 'valu', [t], [t]),
          valu('v_and_b32', t2, 15, t), valu('v_lshrrev_b32', t, 4, t), valu('v_lshlrev_b32', f, 1, t), valu('v_xor_b32', f, f, t2),
          valu('v_lshlrev_b32', ad, 8, t), valu('v_lshl_add_u32', vv[0], f, 4, ad), valu('v_xor_b32', vv[1], 128, vv[0]),
          valu('v_lshlrev_b32', t2, 8, t2), valu('v_lshl_add_u32', vk, t, 4, t2)]
    for q in range(4): o += [valu('v_mov_b32', m[q], f2u(-3.0e38)), valu('v_mov_b32', l[q], 0)]
    for i in range(128): o.append(valu('v_mov_b32', V(128 + i), 0))
    o += [s_mov(sF, sFH), s_mov(sFC, 32), label('L_fb_loop'), salu('s_add_u32', sF2, sF, 4096)]
    for kt in range(2):
        o += [buf_load('buffer_load_dwordx4', FK(kt, s), vk, srdK, [sF, sF2][kt], 64 * s) for s in range(4)]
        o += [salu('s_add_u32', M0, sPM0, 4096 * kt), s_nop(0)] + [buf_dma(vv[n % 2], srdV, [sF, sF2][kt], 1024 * n, 'privF') for n in range(4)]
    o += [wait(vm=0)]
    for dt in range(8):
        o += [valu('v_and_b32', ad, 0x1fff, vVr[dt]), valu('v_add_u32', ad, sPM0, ad), s_nop(0)]
        o += [ds_read('ds_read_b64_tr_b16', Vf(dt).sub(2 * h, 2), ad, h * 4096, 'privF') for h in range(2)]
    o += [wait(lg=0)]
    for q in range(4):
        for kt in range(2):
            d = s8.sub(4 * kt, 4)
            o += [mfma(d, FK(kt, s), Qreg(q, s), d if s else 0, SH) for s in range(4)]
        o += [s_nop(9), valu('v_max3_f32', t, s8[0], s8[1], s8[2]), valu('v_max3_f32', t, t, s8[3], s8[4]), valu('v_max3_f32', t, t, s8[5], s8[6]),
              valu('v_max3_f32', t, t, s8[7], m[q])] + xmax('v_max_f32', t)
        o += [valu('v_sub_f32', f, m[q], t), valu('v_exp_f32', f, f), valu('v_mov_b32', m[q], t)]
        for i in range(8): o += [valu('v_sub_f32', s8[i], s8[i], t), valu('v_exp_f32', s8[i], s8[i])]
        o += [valu('v_mul_f32', l[q], l[q], f)]
        o += [valu('v_cvt_pk_bf16_f32', s8[i], s8[2 * i], s8[2 * i + 1]) for i in range(4)]
        for i in range(4):
            o += [valu('v_lshlrev_b32', t, 16, s8[i]), valu('v_and_b32', t2, 0xffff0000, s8[i]), valu('v_add_f32', l[q], l[q], t), valu('v_add_f32', l[q], l[q], t2)]
        o += [valu('v_mul_f32', V(128 + 32 * q + i), V(128 + 32 * q + i), f) for i in range(32)]
        o += [s_nop(1)] + [mfma(Oacc(dt, q), Vf(dt), s8.sub(0, 4), Oacc(dt, q), SH) for dt in range(8)] + [s_nop(7)]
    o += [salu('s_add_u32', sF, sF, 8192), salu('s_sub_u32', sFC, sFC, 1), s_cmp('s_cmp_lg_u32', sFC, 0), s_branch('s_cbranch_scc1', 'L_fb_loop')]
    for q in range(4): o += xmax('v_add_f32', l[q])
    o += [s_nop(9), raw(f"s_setpc_b64 {sRET}", 'branch', [sRET])]
    return o

def k1_setup():
    u = [V(64 + i) for i in range(12)]
    l, g, q, t0, t1, t2, t3, r, c = u[:9]
    o = [s_cmp('s_cmp_ge_u32', S(2), 256), s_branch('s_cbranch_scc1', 'L_k1_end')]
    o += [s_load('s_load_dwordx8', S(4, 8), S(0, 2), 0), s_load('s_load_dwordx2', pWO, S(0, 2), 32),
          s_load('s_load_dwordx8', S(32, 8), S(0, 2), 40), s_load('s_load_dwordx2', S(40, 2), S(0, 2), 72),
          s_load('s_load_dwordx2', pWS, S(0, 2), 96)]
    o += [salu('s_bfe_u32', sP, S(2), 0x10002), salu('s_and_b32', sT0, S(2), 1), salu('s_lshl_b32', sT0, sT0, 2), salu('s_bfe_u32', sT1, S(2), 0x20003),
          salu('s_add_u32', sB, sT0, sT1), salu('s_lshl_b32', sT1, sT1, 1),
          salu('s_lshr_b32', sT2, S(2), 5), salu('s_add_u32', sR0, sT1, sT2), s_cmp('s_cmp_ge_u32', sR0, 9),
          csel(sT1, 9, 0), salu('s_sub_u32', sR0, sR0, sT1),
          salu('s_and_b32', sT0, S(2), 2), salu('s_lshl_b32', sT0, sT0, 2), salu('s_add_u32', sH, sT0, sT2), salu('s_lshl_b32', sH, sH, 1)]
    if not OPT['rot']: o.append(s_mov(sR0, 0))
    o += [salu('s_lshl_b32', sXC, sR0, 7), salu('s_lshl_b32', sWC[1], sR0, 19), salu('s_add_u32', sWC[0], sWC[1], 262144)]
    o += [valu('v_lshrrev_b32', t0, 6, vT), valu('v_and_b32', l, 63, vT), readfirstlane(sW, t0),
          valu('v_lshrrev_b32', g, 4, l), valu('v_and_b32', q, 15, l), valu('v_lshrrev_b32', t1, 3, l), salu('s_lshl_b32', sW4K, sW, 12)]
    o += [smul(sT0, sW, 64 * 1152), valu('v_mul_u32_u24', t0, 1152, t1), valu('v_and_b32', t2, 7, l), valu('v_xor_b32', t2, t2, g),
          valu('v_add_u32', t0, sT0, t0), valu('v_lshl_add_u32', vXg[0], t2, 4, t0), valu('v_xor_b32', t2, 4, t2), valu('v_lshl_add_u32', t3, t2, 4, t0)]
    for n in range(1, 8): o.append(valu('v_add_u32', vXg[n], n * 9216 - 1024 * (n % 4), t3 if n % 2 else vXg[0]))
    o += [valu('v_lshrrev_b32', t1, 5, l), valu('v_and_b32', t2, 31, l), valu('v_xor_b32', t2, t2, t1), salu('s_and_b32', sT0, sW, 1),
          salu('s_lshl_b32', sT0, sT0, 3), valu('v_xor_b32', t2, sT0, t2), salu('s_lshl_b32', sT1, sW, 16), valu('v_lshlrev_b32', t1, 13, t1),
          valu('v_add_u32', t0, sT1, t1), valu('v_lshl_add_u32', vWd[0][0], t2, 4, t0), valu('v_xor_b32', t2, 4, t2), valu('v_lshl_add_u32', t3, t2, 4, t0)]
    for n in range(1, 4): o.append(valu('v_add_u32', vWd[0][n], n * (16384 - 1024), t3 if n % 2 else vWd[0][0]))
    for n in range(4): o.append(valu('v_mov_b32', vWd[1][n], vWd[0][n]))
    o += [salu('s_add_u32', sXM[0], sW4K, XBASE[0][0]), salu('s_add_u32', sXM[1], sW4K, XBASE[0][1]), salu('s_add_u32', sWM, sW4K, 131072)]
    o += [wait(lg=0)] + probe(0) + [s_cmp('s_cmp_eq_u32', sP, 0)]
    for d, s1 in ((pX, S(32, 2)), (pWQ, S(38, 2)), (pK, S(34, 2)), (pV, S(36, 2)), (pWO, S(40, 2))):
        o.append(I('s_cselect_b64', f"s_cselect_b64 {d}, {d}, {s1}", 'salu', [d, s1, SCC], [d]))
    o += [smul(sT0, sB, 276480)] + set_srd(srdX[0], pX, sT0, 276480) + set_srd(srdX[1], pX, sT0, 276480)
    o += [salu('s_lshl_b32', sT0, sH, 8), salu('s_sub_u32', sT1, 576 * 8192, sT0)] + set_srd(srdW[0], pWQ, sT0, sT1) + set_srd(srdW[1], pWQ, sT0, sT1)
    def nop1(x): x = flat(x); x.insert(1, s_nop(0)); return x
    def xload(c):
        return nop1(dma_X(0, Xn(c, 0))) + nop1(dma_X(1, Xn(c, 1))) + advance(sXC, 128) + \
               [salu('s_xor_b32', sXM[0], sXM[0], 0xC000), salu('s_xor_b32', sXM[1], sXM[1], 0x18000)]
    o += xload(0) + nop1(dma_W(1, 'E1', salu('s_add_u32', M0, sWM, 16384))) + advance(sWC[1], 524288)
    if OPT['e0']: o += nop1(dma_W(0, 'E0', s_mov(M0, sWM))) + advance(sWC[0], 524288, 262144)
    o += probe(1)
    late = [] if OPT['e0'] else nop1(dma_W(0, 'E0', s_mov(M0, sWM))) + advance(sWC[0], 524288, 262144)
    late += xload(1) + nop1(dma_W(1, 'V3', salu('s_add_u32', M0, sW4K, 114688))) + advance(sWC[1], 524288)
    z = V(60, 4)
    o += [valu('v_mov_b32', z[i], 0) for i in range(4)] + [s_nop(1)]
    zero = [mfma(r, z, z, 0) for i in range(8) for r in (V(128 + 16 * i, 16), A(16 * i, 16))]
    mark = len(o)
    o += [salu('s_lshl_b32', sT0, sB, 5), salu('s_add_u32', sT0, sT0, sH), salu('s_lshl_b32', sT0, sT0, 18)]
    o += set_srd(srdK, pK, sT0, 524288) + set_srd(srdV, pV, sT0, 524288)
    o += [smul(sT0, sP, O_BYTES)] + set_srd(srdO, pWS, sT0, O_BYTES)
    o += set_srd(srdP, pWO, 0, PACK_BYTES)
    o += [smul(sT0, sP, PACK_BYTES), salu('s_add_u32', sT0, sT0, PACK_OFF)] + set_srd(srdQ, pWS, sT0, PACK_BYTES)
    if OPT['stamp']:
        if OPT['dbg']:
            o += set_srd(S(72, 4), pWS, 200 * 1024 * 1024, 0) + [salu('s_lshl_b32', S(76), S(2), 2), salu('s_add_u32', S(76), S(76), sW),
                  s_cmp('s_cmp_eq_u32', S(76), 4 * OPT['dbg']), raw("s_cselect_b32 s74, 64, 0"), s_mov(S(76), 0)]
        else:
            o += set_srd(S(72, 4), pWS, 200 * 1024 * 1024, 1024 * 1024)
            o += [salu('s_lshl_b32', S(76), S(2), 2), salu('s_add_u32', S(76), S(76), sW), salu('s_lshl_b32', S(76), S(76), 8)]
    if OPT['xr'] == 0: o += [s_mov(sXR, 0)]
    if OPT['xr'] == 1: o += [salu('s_bfe_u32', sXR, S(2), 0x40003), salu('s_lshl_b32', sXR, sXR, 14)]
    if OPT['xr'] == 2: o += [salu('s_and_b32', sXR, S(2), 15), salu('s_lshl_b32', sXR, sXR, 14)]
    if OPT['xr'] == 3: o += [salu('s_lshr_b32', sXR, S(2), 4), salu('s_xor_b32', sXR, sXR, S(2)), salu('s_and_b32', sXR, sXR, 15), salu('s_lshl_b32', sXR, sXR, 14)]
    if not LIN: o += [salu('s_lshr_b32', sT0, sXR, 14)] + s_scat(sXR, 't', sT0, sT1)
    o += [s_mov(sKOFF, mp(2)), s_mov(sVOFF, mp(OPT['la'] - 1)), s_mov(sITEM, 0), s_mov(sFH, 0), s_mov(sCNT, 0), s_mov(sTG, 32768), s_mov(sEND, mp(15 + OPT['la'])),
          salu('s_add_u32', sKM, sW4K, 32768 if OPT['la'] == 4 else 49152), salu('s_lshl_b32', sOA[0], sH, 12 if OPT['s16'] else 13), salu('s_add_u32', sOA[1], sOA[0], 2 * OU)]
    c_scale = math.log2(math.e) / math.sqrt(128.0)
    o += [s_mov(sHI, f2u(2.0 ** 40)), s_mov(sLO, f2u(2.0 ** -40)), s_mov(sSCALE[0], f2u(c_scale)), s_mov(sSCALE[1], f2u(c_scale))]
    o += [s_cmp('s_cmp_eq_u32', sW, 3), csel(sT0, f2u(-1.0e30), 0), csel(sPAD, f2u(1.0), 0)] + [valu('v_mov_b32', vCI[i], sT0) for i in range(4)]
    pg = posn('g')
    if pg[1] == pg[0] + 1: o += [valu('v_lshlrev_b32', t0, pg[0], g)]
    else: o += [valu('v_and_b32', t0, 1, g), valu('v_lshlrev_b32', t0, pg[0], t0), valu('v_lshrrev_b32', t3, 1, g), valu('v_lshl_add_u32', t0, t3, pg[1], t0)]
    if posn('w') == [12, 13]: o += [valu('v_add_u32', t0, sW4K, t0)]
    else: o += s_scat(sT0, 'w', sW, sT1) + [valu('v_add_u32', t0, sT0, t0)]
    for n in range(4):
        o += [valu('v_add_u32', t3, 4 * n, g), valu('v_xor_b32', t3, t3, q), valu('v_lshl_add_u32', vKd[n], t3, 4, t0)]
        if scat('n', n) != 1024 * n: o += [valu('v_add_u32', vKd[n], scat('n', n) - 1024 * n, vKd[n])]
    o += [valu('v_lshlrev_b32', t3, 1, g), valu('v_xor_b32', t3, t3, q), valu('v_lshl_add_u32', vVd[0], t3, 4, t0), valu('v_xor_b32', vVd[1], 128, vVd[0])]
    if scat('n', 1) != 1024: o += [valu('v_add_u32', vVd[1], scat('n', 1) - 1024, vVd[1])]
    if OPT['tch']:
        assert pg == [8, 9]
        pn = posn('n')
        o += [valu('v_and_b32', t3, 1, g), valu('v_lshlrev_b32', t3, pn[0], t3), valu('v_lshl_add_u32', t3, q, 6, t3), valu('v_lshrrev_b32', vTC, 1, g),
              valu('v_lshl_add_u32', vTC, vTC, pn[1], t3), valu('v_add_u32', vTC, sT0, vTC), s_mov(sTC, mp(OPT['t0']))]
    o += [valu('v_lshrrev_b32', t2, 1, q), valu('v_xor_b32', t2, t2, g), valu('v_lshlrev_b32', t1, 7, q), valu('v_add_u32', t1, sW4K, t1),
          valu('v_lshl_add_u32', t1, t2, 4, t1), valu('v_xor_b32', t3, 64, t1)]
    for part in range(2): o += [valu('v_add_u32', vXr[part][0], XBASE[0][part], t1), valu('v_add_u32', vXr[part][1], XBASE[0][part], t3)]
    o += [valu('v_xor_b32', t2, g, q), valu('v_lshlrev_b32', t1, 8, q), valu('v_lshl_add_u32', vKr[0], t2, 4, t1)]
    for s in range(1, 4): o.append(valu('v_xor_b32', vKr[s], 64 * s, vKr[0]))
    o += [valu('v_lshrrev_b32', r, 2, q), valu('v_and_b32', c, 3, l), valu('v_lshl_add_u32', t0, g, 2, r), valu('v_and_b32', t2, 7, t0),
          valu('v_lshlrev_b32', t1, 8, t0), valu('v_lshl_add_u32', t1, t2, 5, t1), valu('v_lshl_add_u32', t1, c, 3, t1), valu('v_add_u32', vVr[0], 65536, t1)]
    for dt in range(1, 8): o.append(valu('v_xor_b32', vVr[dt], 32 * dt, vVr[0]))
    o += [valu('v_lshl_add_u32', t0, g, 3, r), valu('v_lshlrev_b32', t0, 9, t0), valu('v_and_b32', t1, 1, c), valu('v_lshl_add_u32', t0, t1, 3, t0),
          valu('v_and_b32', t1, 2, c), valu('v_and_b32', t2, 1, r), valu('v_or_b32', t1, t1, t2), valu('v_and_b32', t2, 2, r), valu('v_lshl_or_b32', t1, t2, 1, t1),
          valu('v_and_b32', t2, 1, g), valu('v_lshl_or_b32', t1, t2, 3, t1), valu('v_lshl_add_u32', t0, t1, 4, t0), valu('v_add_u32', vWr[0], 131072, t0)]
    for i in range(1, 8): o.append(valu('v_xor_b32', vWr[i], (4 * (i // 2) + i % 2) * 16, vWr[0]))
    o += [valu('v_lshrrev_b32', t0, 5, l), valu('v_bfe_u32', t1, l, 1, 1), v_cmp('v_cmp_eq_u32', t0, t1), valu('v_mov_b32', t2, 0x3f803f80), valu('v_and_b32', t3, 1, l),
          valu('v_cndmask_b32', t2, 0, t2, VCC), valu('v_mul_u32_u24', t3, 0xaaaa, t3), valu('v_add_u32', vIDX, 0x4444, t3)]
    o += [valu('v_accvgpr_write_b32', aONE[i], t2) for i in range(4)]
    if OPT['s16']:
        o += [salu('s_lshl_b32', sPM0, sW, 13), salu('s_add_u32', sPM0, sPM0, 131072), valu('v_lshl_add_u32', t0, g, 2, r), valu('v_mul_u32_u24', t0, 96, t0),
              valu('v_mul_u32_u24', t1, 24, c), valu('v_add3_u32', t0, t0, t1, sPM0),
              valu('v_lshlrev_b32', vT, 4, l), valu('v_accvgpr_write_b32', aPr, t0), valu('v_subrev_u32', t0, sPM0, t0), valu('v_add_u32', t0, sW4K, t0),
              valu('v_accvgpr_write_b32', aPq, t0)]
        for k in range(3):
            o += [valu('v_add_u32', t0, 64 * k, l), valu('v_mul_u32_u24', t1, 171, t0), valu('v_lshrrev_b32', t1, 10, t1),
                  valu('v_mul_u32_u24', t2, 6, t1), valu('v_sub_u32', t2, t0, t2),
                  valu('v_mul_u32_u24', t1, 1152, t1), valu('v_lshl_add_u32', t1, t2, 4, t1), valu('v_subrev_u32', t1, 1024 * k, t1),
                  valu('v_accvgpr_write_b32', aPd[k], t1)]
        o += [smul(sT1, sB, 15), salu('s_lshl2_add_u32', sT1, sW, sT1), salu('s_lshl_b32', sT1, sT1, 17), valu('v_add_u32', vO[0], sT1, vT),
              s_mov(sT2, 3 * 131072), s_cmp('s_cmp_eq_u32', sW, 3), I('s_cselect_b32', f"s_cselect_b32 {sT1}, {HUGE}, {sT2}", 'salu', [SCC, sT2], [sT1]),
              valu('v_add_u32', vO[1], 131072, vO[0]), valu('v_add_u32', vO[2], 2 * 131072, vO[0]), valu('v_add_u32', vO[3], sT1, vO[0])]
        o += [salu('s_and_b32', sT0, S(2), 3), salu('s_lshl_b32', sT0, sT0, 5), salu('s_lshr_b32', sT1, S(2), 3), salu('s_add_u32', sT0, sT0, sT1),
              smul(sPU[0], sT0, 32 * 1152), smul(sT1, sW, 288), salu('s_add_u32', sPU[0], sPU[0], sT1),
              salu('s_add_u32', sPU[1], sPU[0], 96), salu('s_add_u32', sPU[2], sPU[0], 192), smul(sT0, sT0, 6144), smul(sT1, sW, 3)]
        for s in range(3):
            o += [salu('s_lshr_b32', sT2, sT1, 1), smul(sT2, sT2, 786432), salu('s_add_u32', sPV[s], sT0, sT2),
                  salu('s_and_b32', sT2, sT1, 1), smul(sT2, sT2, 3072), salu('s_add_u32', sPV[s], sPV[s], sT2)] + ([salu('s_add_u32', sT1, sT1, 1)] if s < 2 else [])
    else:
        o += [salu('s_lshl_b32', sPM0, sW, 13), salu('s_add_u32', sPM0, sPM0, 131072), valu('v_lshl_add_u32', t0, t0, 2, r), valu('v_mul_u32_u24', t0, 192, t0),
              valu('v_and_b32', t1, 1, g), valu('v_lshl_add_u32', t1, t1, 2, c), valu('v_mul_u32_u24', t1, 24, t1), valu('v_add3_u32', t0, t0, t1, sPM0),
              valu('v_lshlrev_b32', vT, 4, l), valu('v_accvgpr_write_b32', aPr, t0), valu('v_subrev_u32', t0, sPM0, t0), valu('v_add_u32', t0, sW4K, t0),
              valu('v_accvgpr_write_b32', aPq, t0)]
        for k in range(3):
            o += [valu('v_add_u32', t0, 64 * k, l), valu('v_mul_u32_u24', t1, 171, t0), valu('v_lshrrev_b32', t1, 11, t1),
                  valu('v_mul_u32_u24', t2, 12, t1), valu('v_sub_u32', t2, t0, t2), valu('v_and_b32', t3, 8, t1), valu('v_add_u32', t1, t1, t3),
                  valu('v_mul_u32_u24', t1, 1152, t1), valu('v_lshl_add_u32', t1, t2, 4, t1), valu('v_subrev_u32', t1, 1024 * k, t1),
                  valu('v_accvgpr_write_b32', aPd[k], t1)]
        o += [salu('s_lshl_b32', sT0, sW, 6), valu('v_add_u32', t0, sT0, q), smul(sT1, sB, 240)]
        for qt in range(4):
            o += [valu('v_add_u32', t1, 16 * qt, t0),
                  valu('v_add_u32', t2, sT1, t1), valu('v_lshrrev_b32', t3, 5, t2), valu('v_lshlrev_b32', t3, 18, t3),
                  valu('v_and_b32', t2, 31, t2), valu('v_lshl_add_u32', t3, t2, 4, t3), valu('v_lshl_add_u32', t3, g, 9, t3),
                  v_cmp('v_cmp_gt_u32', 240, t1), valu('v_mov_b32', t2, HUGE), s_nop(0),
                  valu('v_cndmask_b32', vO[qt], t2, t3, VCC)]
        o += [salu('s_and_b32', sT0, S(2), 3), salu('s_lshl_b32', sT0, sT0, 5), salu('s_lshr_b32', sT1, S(2), 3), salu('s_add_u32', sT0, sT0, sT1),
              salu('s_lshr_b32', sT2, sW, 1), salu('s_and_b32', sT1, sW, 1), smul(sPU[0], sT0, 32 * 1152), smul(sPU[1], sT2, 8 * 1152), smul(sPU[2], sT1, 576),
              salu('s_add_u32', sPU[0], sPU[0], sPU[1]), salu('s_add_u32', sPU[0], sPU[0], sPU[2]),
              salu('s_add_u32', sPU[1], sPU[0], 192), salu('s_add_u32', sPU[2], sPU[0], 384),
              salu('s_lshl1_add_u32', sT2, sT0, sT2), smul(sT2, sT2, 3072), smul(sPV[0], sT1, 3 * 786432), salu('s_add_u32', sPV[0], sPV[0], sT2),
              salu('s_add_u32', sPV[1], sPV[0], 786432), salu('s_add_u32', sPV[2], sPV[0], 2 * 786432)]
    rest, o = o[mark:], o[:mark]
    for i, x in enumerate(rest):
        if i % 12 == 0 and zero and x.kind != 'nop' and (not o or o[-1].kind != 'nop'): o.append(zero.pop(0))
        o.append(x)
    assert not zero
    return o + probe(2) + late + probe(3)

def code_fetch(lab, n, c, r=100, tid=V(0)):
    o = [raw(f's_getpc_b64 {c.sub(0, 2)}', 'salu', [], [c[0], c[1]]), label(lab), s_mov(c[3], 0x20000), raw(f's_mov_b32 {c[2]}, L_code_end-{lab}', 'salu', [], [c[2]]),
         valu('v_lshlrev_b32', V(r), 7, tid)]
    for i in range(n): o += ([valu('v_add_u32', V(r), 32768, V(r))] if i else []) + [buf_load('buffer_load_dword', V(r + 1 + i), V(r), c, 0, 0, OPT['cf'])]
    return o
def kernel1():
    qs, qtr, lim = q_loop()
    head = k1_setup() + [s_mov(sLIM, lim)] + ([] if OPT['trk'] else [s_mov(S(6), 0), s_mov(S(7), 1024), s_mov(S(10), 0), s_mov(S(11), scat('n', 1))]) + stamp(0)
    if OPT['stamp']:
        head[2:2] = [raw("s_memrealtime s[78:79]"), raw("s_waitcnt lgkmcnt(0)"), valu('v_mov_b32', V(31), S(78))]
        head += [valu('v_mov_b32', V(29), 0 if OPT['dbg'] else 60), raw("s_nop 0"), raw("buffer_store_dword v31, v29, s[72:75], s76 offen", 'vstore'), raw("s_nop 1")]
    if OPT['cpf'] and OPT['cpp']: head += code_fetch('L_here', OPT['cpf'], S(12, 4) if OPT['stamp'] else S(72, 4))
    elif OPT['cpf']:
        k = max(i for i, x in enumerate(head[:12]) if x.text.startswith('s_load')) + 1
        head[k:k] = code_fetch('L_here', OPT['cpf'], S(56, 4) if OPT['stamp'] else S(72, 4))
    head += [wait(vm=[Xn(0, 0), Xn(0, 1)])] + probe(4) + [rd_X(0, 0, qt) for qt in range(4)]
    head += [valu('v_xor_b32', vXr[0][0], 0xC000, vXr[0][0]), valu('v_xor_b32', vXr[1][0], 0x18000, vXr[1][0])]
    head += [wait(vm=['E1']), s_barrier()] + flat([rd_W(p, 0, 0, p) for p in range(4)]) + [wait(lg=[Wf(0), Wf(1)])] + probe(5) + probes_out(8)
    tail = [label('L_qtail')] + (istamp(32, sCNT, 0) + q_half(7, 0, True) + q_half(7, 1, True) if OPT['pl'] else []) + stamp(1) + q_tail() + stamp(2)
    def loop(skip):
        bodies, lab = [], 'L_atts' if skip else 'L_att'
        U = 4 if OPT['un'] else 1
        pos = [[] for _ in range(U)]
        for hd in range(2):
            for t in range(15 - hd * OPT['npl']):
                j = 32 * hd + 2 * t + 1
                bodies.append([label(lab)] * (t % U == 0) + istamp(48, sKOFF, 14) + period(j, skip=skip) + period(j + 1, skip=skip) + [s_cmp('s_cmp_lg_u32', sKOFF, sEND),
                              s_branch('s_cbranch_scc1', lab) if t % U == U - 1 else s_branch('s_cbranch_scc0', 'L_after')])
                pos[t % U].append(bodies[-1])
                if len(bodies) > 1: del REP[-2:]
        for k in range(U): rolled(f'{lab}{k}', pos[k])
        return bodies, flat(bodies[:U])
    bodies, text = loop(False)
    def pick(bit, lab): return [s_cmp('s_cmp_eq_u32', sW, 3), s_branch('s_cbranch_scc1', lab)] if OPT['sk'] & bit else []
    head += pick(2, 'L_qs'); tail += pick(1, 'L_atts')
    after = [label('L_after'), s_cmp('s_cmp_lg_u32', sITEM, 0), s_branch('s_cbranch_scc1', 'L_last')]
    mid = boundary()
    mid = mid[:1] + stamp(3) + mid[1:] + stamp(18) + pick(1, 'L_atts') + [s_branch('s_branch', 'L_att')]
    last = final()
    last = last[:1] + stamp(19) + last[1:] + [label('L_k1_end'), raw('s_endpgm')]
    al = [raw(f".p2align {OPT['al']}", 'label')] if OPT['al'] else []
    static = head + al + qs + tail + al + text + after + mid + last
    trace = [head + qtr + tail + flat(bodies[:15]) + after + mid + flat(bodies[15:]) + after + last]
    if OPT['sk']:
        if OPT['sk'] & 2:
            assert not OPT['trk'] and OPT['pl']
            qs, qtr, _ = q_loop(True); static += al + qs + [s_branch('s_branch', 'L_qtail')]
        if OPT['sk'] & 1: bodies, text = loop(True); static += al + text + [s_branch('s_branch', 'L_after')]
        trace.append(head + qtr + tail + flat(bodies[:15]) + after + mid + flat(bodies[15:]) + after + last)
    tramps = []
    for i in sites:
        tramps += [label(f"L_tramp{i}"), raw(f"s_call_b64 {sRET}, L_fb", 'branch', [], [sRET]), s_branch('s_branch', f"L_ret{i}")]
    return static, trace, tramps + fallback()

def descriptor(name, vgpr, accum, sgpr=96):
    return f""".amdhsa_kernel {name}
  .amdhsa_next_free_vgpr {vgpr}
  .amdhsa_next_free_sgpr {sgpr}
  .amdhsa_accum_offset {accum}
  .amdhsa_group_segment_fixed_size 0
  .amdhsa_kernarg_size 104
  .amdhsa_user_sgpr_count 2
  .amdhsa_user_sgpr_kernarg_segment_ptr 1
  .amdhsa_system_sgpr_workgroup_id_x 1
.end_amdhsa_kernel
"""

def finish(static, trace, rare, name):
    trs = [expand(t) for t in (trace if isinstance(trace[0], list) else [trace])]
    val = {}
    for tr in trs:
        resolve_waits(tr)
        for x in tr:
            if x.kind == 'wait':
                o = val.get(id(x), x.val)
                val[id(x)] = tuple(b if a is None else a if b is None else min(a, b) for a, b in zip(o, x.val))
    errs = []
    for tr in trs:
        for x in tr:
            if x.kind == 'wait': x.val = val[id(x)]
    for tr in trs: errs += check(tr, name)
    if rare:
        resolve_waits(rare)
        errs += check(rare, name + "_rare")
    seen = set()
    for e in errs:
        k = e.split('] ', 1)[1]
        if k not in seen and len(seen) < 40: print("CHECK:", e, file=sys.stderr)
        seen.add(k)
    if errs: print(f"{len(errs)} check errors in {name}", file=sys.stderr)
    return render(static) + "\n" + (render(rare) if rare else "")

def main():
    ref = open(os.path.join(os.path.dirname(os.path.abspath(__file__)), '..', 'cdna_kernels', NAME + '.s.ref')).read().splitlines()
    hdr = [l for l in ref if l.startswith(';') and '@launch' not in l and 'Override launch' not in l and 'grid=ceil' not in l]
    st, tr, rare = kernel1()
    if OPT['rep']:
        for r in REP: print(len(r), sum(max(0, x - 8) for x in r), r, file=sys.stderr)
    out = hdr[:]
    out.append("; OLAY=17" if OPT["s16"] else "; OLAY=16")
    if OPT['k1']: out.append("; @launch kernel=attn_kernel grid=(256,1,1) block=(256,1,1) lds=163840")
    import gen4, gen7k2
    if OPT['s16']: gen4 = gen7k2
    if OPT['k2']: out.append(f"; @launch kernel=oproj_kernel grid=(240,1,1) block=(256,1,1) lds={gen4.LDS}")
    out += ['.amdgcn_target "amdgcn-amd-amdhsa--gfx950"', '.text', '.globl attn_kernel', '.p2align 8', '.type attn_kernel,@function', 'attn_kernel:']
    out.append(finish(st, tr, rare, 'k1'))
    if OPT['k2']:
        if OPT['dbg']: OPT['stamp'] = 0
        k2 = gen4.kernel2(OPT)
        if OPT['cp2']: k2[2:2] = code_fetch('L_here2', 1, S(44, 4), 24)
        out += ['.globl oproj_kernel', '.p2align 8', '.type oproj_kernel,@function', 'oproj_kernel:']
        out.append(finish(k2, k2, None, 'k2'))
    out += ['L_code_end:'] * (OPT['cpf'] + OPT['cp2'] > 0) + ['.section .rodata,"a"', '.p2align 6', descriptor('attn_kernel', 512, 256, 102)]
    if OPT['k2']:
        out += ['.p2align 6', descriptor('oproj_kernel', 512, 256)]
    open(sys.argv[1], 'w').write("\n".join(out))

if __name__ == '__main__':
    main()
```

```python
from asmlib import *
O_BYTES = 60 * 262144
PACK_OFF = 32 * 1024 * 1024
PACK_BYTES = 4096 * 1152
LDS = 147456

def set_srd(srd, base, off_lo, nbytes):
    return [salu('s_add_u32', srd[0], base[0], off_lo), salu('s_addc_u32', srd[1], base[1], 0),
            s_mov(srd[2], nbytes), s_mov(srd[3], 0x20000)]
def smul(d, a, b): return salu('s_mul_i32', d, a, b, scc=False)

def kernel2(OPT):
    D = OPT['d16']; R = 4
    sOUT, sWS = S(8, 2), S(10, 2)
    srdO, srdW, srdOut = S(16, 4), S(20, 4), S(24, 4)
    sW, sP, sMT, sNG, sT0, sT1, sT2 = S(28), S(29), S(30), S(31), S(32), S(33), S(34)
    sOO, sWO, sLOOP, sLIN, sROT = S(35), S(36), S(37), S(38), S(39)
    WN = OPT['rot2']
    sR1, sR2, sMH, sNH = S(40), S(41), S(42), S(43)
    vTID = V(0)
    vOa = [V(1 + i) for i in range(6)]; vWb = V(7); vEw = [V(8), V(9), V(16)]; vEr = V(10); vOut = V(11); vL = V(17); vWa = V(18)
    l, g, t0, t1 = V(12), V(13), V(14), V(15)
    def acc(nt, m): return A((nt * 6 + m) * 4, 4)
    def Of(slot, m): return V(32 + (slot * 12 + m) * 4, 4)
    def Wf(slot, nt): return V(32 + (slot * 12 + 6 + nt) * 4, 4)
    o = [s_cmp('s_cmp_ge_u32', S(2), OPT.get('k2n', 240)), s_branch('s_cbranch_scc1', 'L_k2_end')]
    o += [s_load('s_load_dwordx2', sWS, S(0, 2), 96), s_load('s_load_dwordx2', sOUT, S(0, 2), 80)]
    o += [salu('s_bfe_u32', sP, S(2), 0x10002), salu('s_lshr_b32', sT0, S(2), 3), smul(sT1, sT0, 43),
          salu('s_lshr_b32', sT1, sT1, 8), smul(sT2, sT1, 6), salu('s_sub_u32', sNG, sT0, sT2), salu('s_add_u32', sROT, sT1, sNG),
          salu('s_and_b32', sT0, S(2), 3), smul(sT0, sT0, 5), salu('s_add_u32', sMT, sT0, sT1)]
    o += [valu('v_lshrrev_b32', t0, 6, vTID), valu('v_and_b32', l, 63, vTID), readfirstlane(sW, t0), valu('v_lshlrev_b32', vL, 4, l)]
    o += [s_nop(2), salu('s_lshr_b32', sMH, sW, 1), salu('s_and_b32', sNH, sW, 1), smul(sT0, sMH, 3 * 131072), smul(sT1, sNH, 3072),
          valu('v_add_u32', vOa[3], sT0, vL), salu('s_sub_u32', sT0, 3 * 131072, sT0), valu('v_add_u32', vWb, sT1, vL), salu('s_sub_u32', sT1, 3072, sT1),
          valu('v_add_u32', vOa[0], sT0, vL), valu('v_add_u32', vWa, sT1, vL)]
    o += [valu('v_add_u32', vOa[i], 131072 * (i % 3), vOa[i - i % 3]) for i in (1, 2, 4, 5)]
    o += [smul(sT0, sP, O_BYTES), smul(sT1, sMT, 6 * 131072), salu('s_add_u32', sT0, sT0, sT1),
          salu('s_lshl_b32', sT1, sW, 15), salu('s_add_u32', sT0, sT0, sT1),
          smul(sT1, sP, PACK_BYTES), smul(sT2, sNG, 786432), salu('s_add_u32', sT1, sT1, sT2), smul(sT2, sW, 196608),
          salu('s_add_u32', sT1, sT1, sT2), salu('s_add_u32', sT1, sT1, PACK_OFF)]
    if WN: o += [smul(sROT, sROT, OPT['rmul']), salu('s_and_b32', sT2, sROT, WN - 1), salu('s_lshl_b32', sOO, sT2, 10), smul(sWO, sT2, 6144), s_mov(sLIN, 0)]
    else: o += [s_mov(sOO, 0), s_mov(sWO, 0)]
    if OPT['dbg']: o += [raw('s_memrealtime s[60:61]'), s_load('s_load_dwordx2', S(68, 2), S(0, 2), 88)]
    o += [wait(lg=0)]
    o += set_srd(srdO, sWS, sT0, 5 * 131072 + 32768) + set_srd(srdW, sWS, sT1, 196608)
    def stamp(idx):
        if not OPT['stamp']: return []
        return [raw("s_memtime s[70:71]"), raw("s_memrealtime s[78:79]"), raw("s_waitcnt lgkmcnt(0)"),
                valu('v_mov_b32', V(20), S(70)), valu('v_mov_b32', V(21), idx * 4), raw("s_nop 0"),
                raw("buffer_store_dword v20, v21, s[72:75], s76 offen", 'vstore'), raw("s_nop 1"), valu('v_mov_b32', V(20), S(78)), raw("s_nop 0"),
                raw("buffer_store_dword v20, v21, s[72:75], s76 offen offset:32", 'vstore'), raw("s_nop 1"),
                raw("s_getreg_b32 s70, hwreg(HW_REG_XCC_ID)"), valu('v_mov_b32', V(20), S(70)), raw("s_nop 0"),
                raw("buffer_store_dword v20, v21, s[72:75], s76 offen offset:64", 'vstore'), raw("s_nop 1")]
    if OPT['stamp']:
        o += set_srd(S(72, 4), sWS, 201 * 1024 * 1024, 1024 * 1024)
        o += [salu('s_lshl_b32', S(76), S(2), 2), salu('s_add_u32', S(76), S(76), sW), salu('s_lshl_b32', S(76), S(76), 8)]
    o += stamp(0)

    def loads(k):
        sl = k % R
        W = [[buf_load('buffer_load_dwordx4', Wf(sl, i), vWa if i < 3 else vWb, srdW, sWO, 1024 * (i % 3), OPT['wof'])] for i in range(6)]
        O = [[buf_load('buffer_load_dwordx4', Of(sl, i), vOa[i], srdO, sOO, 0, OPT['of'])] for i in range(6)]
        r = W[:1] + O + W[1:]
        if WN:
            r[-3] = r[-3] + [salu('s_add_u32', sROT, sROT, 1), salu('s_add_u32', sLIN, sLIN, 1), salu('s_and_b32', sT0, sROT, WN - 1)]
            r[-2] = r[-2] + [salu('s_and_b32', sT1, sLIN, 0 if OPT.get('wrapk') else 256 - WN), salu('s_or_b32', sT0, sT0, sT1)]
            r[-1] = r[-1] + [salu('s_lshl_b32', sOO, sT0, 10), smul(sWO, sT0, 6144)]
        else: r[-1] = r[-1] + [salu('s_add_u32', sWO, sWO, 6144), salu('s_add_u32', sOO, sOO, 1024)]
        return r
    def step(k, first=False, ld=True):
        sl = k % R
        out = []
        L = loads(k + D) if ld else []
        i = 0
        for nt in range(6):
            for mm in range(6):
                m = mm if nt % 2 == 0 or not OPT['snake'] else 5 - mm
                if nt == 0: out.append(wait(vm=[Of(sl, m), Wf(sl, 0)]))
                elif mm == 0: out.append(wait(vm=[Wf(sl, nt)]))
                out.append(mfma(acc(nt, m), Wf(sl, nt), Of(sl, m), 0 if first else acc(nt, m), '16x16x32'))
                if i % 3 == 1 and L: out += L[i // 3]
                i += 1
        return out
    CH = OPT['ch']
    def loads2(k):
        r = []
        for kind, i in [('W', 0)] + [('O', i) for i in range(6)] + [('W', i) for i in range(1, 6)]:
            for h in range(2):
                sl = (k + h) % R
                r.append([buf_load('buffer_load_dwordx4', Wf(sl, i), vWa if i < 3 else vWb, srdW, sWO2 if h else sWO, 1024 * (i % 3), OPT['wof'])] if kind == 'W' else
                         [buf_load('buffer_load_dwordx4', Of(sl, i), vOa[i], srdO, sOO, 1024 * h, OPT['of'])])
        r[-1] = r[-1] + [salu('s_add_u32', sWO, sWO, 12288), salu('s_add_u32', sWO2, sWO2, 12288), salu('s_add_u32', sOO, sOO, 2048)]
        return r
    def pair(k, first=False, ld=True):
        out, L, i = [], loads2(k + 2) if ld else [], 0
        for nt in range(6):
            for m in range(6):
                for h in range(2):
                    sl = (k + h) % R
                    if nt == 0: out.append(wait(vm=[Of(sl, m), Wf(sl, 0)]))
                    elif m == 0: out.append(wait(vm=[Wf(sl, nt)]))
                    out.append(mfma(acc(nt, m), Wf(sl, nt), Of(sl, m), 0 if first and not h else acc(nt, m), '16x16x32'))
                    if i % 3 == 1 and L: out += L[i // 3]
                    i += 1
        return out
    if CH:
        sWO2 = S(44)
        o += [s_mov(sWO2, 6144)]
        for gg in loads2(0): o += gg
    for k in range(0 if CH else D):
        for gg in loads(k): o += gg
    o += set_srd(srdOut, sOUT, 0, 1920 * 2304)
    o += [valu('v_lshrrev_b32', g, 4, l), smul(sT0, sW, 27648), valu('v_add_u32', vEr, sT0, vL)]
    for x in range(1, 4): o += [salu('s_xor_b32', sT0, sW, x), smul(sT0, sT0, 27648), salu('s_add_u32', sT0, sT0, (x - 1) * 9216), valu('v_add_u32', vEw[x - 1], sT0, vL)]
    o += [smul(sR1, sMT, 96 * 2304), smul(sR2, sP, 1152), salu('s_add_u32', sR1, sR1, sR2),
          smul(sR2, sNG, 192), salu('s_add_u32', sR1, sR1, sR2), smul(sR2, sMH, 48 * 2304),
          salu('s_add_u32', sR1, sR1, sR2), smul(sR2, sNH, 96), salu('s_add_u32', sR1, sR1, sR2),
          valu('v_and_b32', t0, 15, l), valu('v_mul_u32_u24', t0, 2304, t0),
          valu('v_mul_u32_u24', t1, 24, g), valu('v_add3_u32', vOut, t0, t1, sR1), s_mov(sR1, 16 * 2304), s_mov(sR2, 32 * 2304)]
    for k in range(4): o += (pair(k, first=(k == 0)) if k % 2 == 0 else []) if CH else step(k, first=(k == 0))
    body = [label('L_k2_loop')]
    for k in range(4): body += (pair(k) if k % 2 == 0 else []) if CH else step(k)
    body += [salu('s_sub_u32', sLOOP, sLOOP, 1), s_cmp('s_cmp_lg_u32', sLOOP, 0), s_branch('s_cbranch_scc1', 'L_k2_loop')]
    o += [s_mov(sLOOP, 6), Loop(body, 6)]
    if CH: o += pair(28)
    for k in range(28, 28 if CH else 31): o += step(k, ld=(k + D < 32))
    sl = 31 % R
    seq = [(nt, m) for nt in range(3) for m in range(6)] + [(nt, m) for nt in range(3, 6) for m in range(3)] + [(nt, m) for nt in range(3, 6) for m in range(3, 6)]
    def send(nt, m): return ds_write('ds_write_b128', vEw[2 - 2 * (m // 3) - nt // 3], acc(nt, m), ((m % 3) * 3 + nt % 3) * 1024, 'X')
    LAG = OPT['lag']
    for i, (nt, m) in enumerate(seq):
        if CH:
            if nt == 0 or m == 0: o.append(wait(vm=[Of(sl - 1, m), Wf(sl - 1, nt)]))
            o += [mfma(acc(nt, m), Wf(sl - 1, nt), Of(sl - 1, m), acc(nt, m), '16x16x32')]
        if nt == 0 or m == 0: o.append(wait(vm=[Of(sl, m), Wf(sl, nt)]))
        o += [mfma(acc(nt, m), Wf(sl, nt), Of(sl, m), acc(nt, m), '16x16x32')]
        if LAG <= i < 27 + LAG: o.append(send(*seq[i - LAG]))
    o += [send(*seq[i]) for i in range(36 - LAG, 27)]
    o += stamp(1) + [s_nop(7)]
    def part(s, T): return V(32 + (s * 9 + T) * 4, 4)
    for T in range(9): o += [valu('v_accvgpr_read_b32', part(3, T)[i], acc(3 + T % 3, 3 + T // 3)[i]) for i in range(4)]
    o += [wait(lg=0), s_barrier()]
    for T in range(9):
        for s in range(3): o.append(ds_read('ds_read_b128', part(s, T), vEr, s * 9216 + T * 1024, 'X'))
    for m in range(3):
        pk = V(192 + m * 8, 6)
        for nt in range(3):
            T = m * 3 + nt
            o.append(wait(lg=[part(s, T) for s in range(3)]))
            for i in range(4):
                o += [valu('v_add_f32', part(0, T)[i], part(0, T)[i], part(1, T)[i]), valu('v_add_f32', part(2, T)[i], part(2, T)[i], part(3, T)[i])]
            for i in range(4): o.append(valu('v_add_f32', part(0, T)[i], part(0, T)[i], part(2, T)[i]))
            for i in range(2): o.append(valu('v_cvt_pk_bf16_f32', pk[2 * nt + i], part(0, T)[2 * i], part(0, T)[2 * i + 1]))
        so = [0, sR1, sR2][m]
        o += [buf_store('buffer_store_dwordx4', pk.sub(0, 4), vOut, srdOut, so, 0, OPT['uf']), buf_store('buffer_store_dwordx2', pk.sub(4, 2), vOut, srdOut, so, 16, OPT['uf'])]
    o += stamp(2)
    if OPT['dbg']:
        o += [salu('s_lshl_b32', sT0, S(2), 2), salu('s_add_u32', sT0, sT0, sW), s_cmp('s_cmp_lg_u32', sT0, 4 * (OPT['dbg'] % 240)), s_branch('s_cbranch_scc1', 'L_k2_end')]
        o += set_srd(S(64, 4), sWS, 200 * 1024 * 1024, 64) + [s_mov(S(70), 64), s_mov(S(71), 0x20000), raw('s_waitcnt vmcnt(0)'), raw('s_memrealtime s[62:63]'),
              raw('v_lshlrev_b32 v21, 2, v12'), raw('s_nop 1'), raw('buffer_load_dword v20, v21, s[64:67], 0 offen sc1'), raw('s_waitcnt vmcnt(0) lgkmcnt(0)'),
              raw('v_writelane_b32 v20, s60, 14'), raw('v_writelane_b32 v20, s62, 15'), raw('s_nop 1'), raw('buffer_store_dword v20, v21, s[68:71], 0 offen')]
    o += [label('L_k2_end'), raw('s_endpgm')]
    return o
```

```python
import sys, os, math, struct
from asmlib import *
import asmlib

NAME = "concat_heads__mha_block_cached__gqa_block_cached__near_ridge"
OPT = dict(stamp=0, k2=1, k1=1, ost=' sc1', pst=' sc1', xf='', wf='', pf=' nt', kvf=' nt', rot=0, rep=0,
           depth=5, rot2=0, s16=1, tch=0, tf='', t0=5, tstep=4, pat='ggtNtttwwn', trk=0, tg=62, dbg=0, lag=4, rmul=1, d16=2, snake=0, uf='', of='', wof='', kv0=5, pk0=0, cinit=1, al=6, dc=8, forcefb=0, nodma=0, dg=3, nost=0,
           xr=3, dst=0, ch=1, cpp=0, cp2=0, cf='', cpf=40, kg='37,37,46,46,47,47,55,55', un=0, sk=3, tlb=0, wb='', ost2=' sc1', pl=1, e0=1, npl=2, st0=14, st1=-8, prd=80, nopk=0, la=4, g2=17, g3=85, gv=50)
RAW = ('pat', 'wb', 'kg')
STR = ('cf', 'ost2', 'uf', 'tf', 'ost', 'pst', 'xf', 'wf', 'pf', 'kvf', 'of', 'wof')
for a in sys.argv[2:]:
    k, v = a.split('=')
    OPT[k] = v if k in RAW else ((' ' + v.replace('+', ' ')) if v != '-' else '') if k in STR else int(v)
asmlib.COST['dma'] = OPT['dc']

def f2u(x): return struct.unpack('<I', struct.pack('<f', x))[0]
O_BYTES = 60 * 262144
OU = 1024 if OPT['s16'] else 2048
PACK_OFF = 32 * 1024 * 1024
PACK_BYTES = 4096 * 1152
HUGE = 0x7f000000
SH = '16x16x32'

def posn(ch): return [8 + i for i, c in enumerate(OPT['pat']) if c == ch] + [8 + i for i, c in enumerate(OPT['pat']) if c == ch.upper()]
def scat(ch, v): return sum(((v >> b) & 1) << p for b, p in enumerate(posn(ch)))
def mp(t): return scat('t', t & 15) | (t >> 4) << 18
LIN = posn('t') == [14, 15, 16, 17]
TMASK = 0xfffc0000 | scat('t', 15)
assert scat('n', 2) == 2048 and scat('n', 1) >= 1024 and posn('t') == sorted(posn('t'))
def next_tile(r): return [salu('s_add_u32', r, r, 16384)] if LIN else [salu('s_sub_u32', r, r, TMASK), salu('s_and_b32', r, r, TMASK)]
def s_scat(d, ch, src, tmp):
    o = []
    for b, p in enumerate(posn(ch)):
        o += [salu('s_bfe_u32', tmp, src, 0x10000 + b), salu('s_lshl_b32', tmp if b else d, tmp, p)] + ([salu('s_or_b32', d, d, tmp)] if b else [])
    return o

pX, pK, pV, pWQ, pWO, pWS = S(4, 2), S(6, 2), S(8, 2), S(10, 2), S(12, 2), S(14, 2)
srdP, srdQ = S(16, 4), S(20, 4)
sPU, sPV = [S(24), S(25), S(26)], [S(27), S(28), S(29)]
sLIM, sXR, sXK, sXV = S(30), S(31), S(12), S(13)
srdK, srdV, srdO = S(32, 4), S(36, 4), S(40, 4)
srdX, srdW = [S(44, 4), S(48, 4)], [S(52, 4), S(56, 4)]
sSCALE = S(60, 2)
sRET = S(62, 2)
sW, sB, sH, sP, sW4K, sT0, sT1, sT2 = S(64), S(65), S(66), S(67), S(68), S(3), S(69), S(80)
sSTAMP = S(70, 2)
sKOFF, sVOFF, sKM, sTG, sEND, sITEM = S(81), S(82), S(83), S(84), S(85), S(86)
sXC, sWC, sXM, sWM, sCNT = S(87), [S(88), S(89)], [S(90), S(91)], S(92), S(93)
sHI, sLO, sPM0, sPAD, sFH = S(94), S(95), S(96), S(97), S(98)
sOA = [S(99), S(100)]
sOB = [S(10), S(11)]
sMASK = S(4, 2)
sF, sF2, sFC = S(6), S(7), S(8)
sR0 = S(101)
vKr = [V(1 + i) for i in range(4)]
vVr = [V(5 + i) for i in range(8)]
vKd = [V(13 + i) for i in range(4)]
vVd = [V(17), V(18)]
vIDX = V(19)
vCI = V(20, 4)
vO = [V(24 + i) for i in range(4)]
vRC = V(28, 4)
vT = V(0)
def Sreg(qt, kt): return V(32 + qt * 8 + (4 * kt if qt % 2 else 4 - 4 * kt), 4)
def Preg(qt): return Sreg(qt, 0)
def Qreg(qt, s): return V(64 + qt * 16 + s * 4, 4)
def Oacc(dt, qt): return V(128 + qt * 32 + dt * 4, 4)
def QACC(h, s, tt, qt): return (V(128 + qt * 32 + s * 8 + tt * 4, 4) if h == 0 else A(qt * 32 + s * 8 + tt * 4, 4))
vXg = [V(32 + i) for i in range(8)]
vWd = [[V(40 + i) for i in range(4)], [V(44 + i) for i in range(4)]]
vXr = [[V(48), V(49)], [V(50), V(51)]]
vWr = [V(52 + i) for i in range(8)]
vTC, sTC, sTD = V(100), S(14), S(15)
def Kf(kt, s): return A(128 + (kt * 4 + s) * 4, 4)
def Vf(dt): return A(160 + dt * 4, 4)
def Wf(p): return A(160 + (p % 8) * 4, 4)
def XF(ks, qt): return A(192 + (ks * 4 + qt) * 4, 4)
def PKf(s, nt): return A(192 + (s * 3 + nt) * 4, 4)
def Lacc(i): return A(224 + 4 * i, 4)
aONE = A(232, 4)
aPd, aPr, aPq = [A(236), A(237), A(238)], A(239), A(240)
GRAY = [0, 1, 3, 2]
def Kn(t): return f"K{GRAY[t % 4]}"
def Vn(t): return f"V{GRAY[t % 4]}"
WN = ['E1', 'E0', 'V3', 'V2']
def Xn(c, part): return f"privX{c % 2}{part}"
XBASE = [[32768, 49152], [16384, 81920]]

def stamp(idx, t0=V(28), t1=V(29)):
    if not OPT['stamp']: return []
    if OPT['dbg']:
        mp = {0: 1, 1: 2, 2: 3, 3: 4, 4: 5, 18: 6, 19: 7, 21: 8, 20: 9}
        if idx not in mp: return []
        r = [raw(f"s_memtime {sSTAMP}", 'salu', [], [sSTAMP]), raw("s_memrealtime s[78:79]"), raw("s_waitcnt lgkmcnt(0)", 'salu'),
             valu('v_mov_b32', t0, S(78)), valu('v_mov_b32', t1, mp[idx] * 4), raw(f"s_nop 0", 'salu'),
             raw(f"buffer_store_dword {t0}, {t1}, s[72:75], 0 offen", 'vstore'), raw("s_nop 1")]
        if idx in (2, 3, 18, 19):
            r += [valu('v_mov_b32', t0, sSTAMP[0]), valu('v_mov_b32', t1, {2: 10, 3: 11, 18: 12, 19: 13}[idx] * 4), raw("s_nop 0"),
                  raw(f"buffer_store_dword {t0}, {t1}, s[72:75], 0 offen", 'vstore'), raw("s_nop 1")]
        return r
    return [raw(f"s_memtime {sSTAMP}", 'salu', [], [sSTAMP]), raw("s_memrealtime s[78:79]"), raw("s_waitcnt lgkmcnt(0)", 'salu'),
            valu('v_mov_b32', t0, sSTAMP[0]), valu('v_mov_b32', t1, idx * 4), raw(f"s_nop 0", 'salu'),
            raw(f"buffer_store_dword {t0}, {t1}, s[72:75], s76 offen", 'vstore'),
            raw("s_nop 1"), valu('v_mov_b32', t0, S(78)), raw("s_nop 0"),
            raw(f"buffer_store_dword {t0}, {t1}, s[72:75], s76 offen offset:32", 'vstore'), raw("s_nop 1")]

def istamp(base, reg, shift):
    if OPT['stamp'] != 2: return []
    t0, t1 = V(30), V(31)
    return [raw(f"s_memtime {sSTAMP}", 'salu', [], [sSTAMP]), raw(f"s_lshr_b32 s77, {reg}, {shift}"), raw("s_and_b32 s77, s77, 15"), raw(f"s_add_u32 s77, s77, {base}"),
            raw("s_lshl_b32 s77, s77, 2"), raw("s_waitcnt lgkmcnt(0)", 'salu'),
            valu('v_mov_b32', t0, sSTAMP[0]), valu('v_mov_b32', t1, S(77)), raw(f"s_nop 0", 'salu'),
            raw(f"buffer_store_dword {t0}, {t1}, s[72:75], s76 offen", 'vstore'), raw("s_nop 1")]

def probe(k):
    if OPT['stamp'] != 3: return []
    return [raw("s_memrealtime s[78:79]"), raw("s_waitcnt lgkmcnt(0)"), valu('v_mov_b32', V(120 + k), S(78))]
def probes_out(n):
    if OPT['stamp'] != 3: return []
    o = []
    for k in range(n): o += [valu('v_mov_b32', V(29), 4 * (48 + k)), raw("s_nop 0"), raw(f"buffer_store_dword v{120 + k}, v29, s[72:75], s76 offen", 'vstore'), raw("s_nop 1")]
    return o

def set_srd(srd, base, off_lo, nbytes):
    return [salu('s_add_u32', srd[0], base[0], off_lo), salu('s_addc_u32', srd[1], base[1], 0),
            s_mov(srd[2], nbytes), s_mov(srd[3], 0x20000)]
def smul(d, a, b): return salu('s_mul_i32', d, a, b, scc=False)
def flat(groups): return [x for g in groups for x in g]
def csel(d, a, b): return I('s_cselect_b32', f"s_cselect_b32 {d}, {a}, {b}", 'salu', [SCC, a, b], [d])
def advance(reg, step, first=0):
    return [salu('s_add_u32', reg, reg, step), s_cmp('s_cmp_eq_u32', reg, 9 * step + first), csel(reg, first, reg)]
def at(groups, gaps):
    assert len(groups) == len(gaps), (len(groups), len(gaps))
    return [F(g, p, p, tail=all(x.kind in ('wait', 'barrier') for x in g)) for g, p in zip(groups, gaps)]

def dma_K(name, m0, soff=sKOFF, adv=True):
    d = [[m0]] + [[buf_dma(vKd[n], srdK, soff, 1024 * n, name, OPT['kvf'])] for n in range(4)]
    if OPT['xr'] or (isinstance(soff, int) and soff): d = [[salu('s_xor_b32', sXK, soff, sXR), m0]] + [[buf_dma(vKd[n], srdK, sXK, 1024 * n, name, OPT['kvf'])] for n in range(4)]
    if OPT['nodma']: d = [[m0]] + [[s_nop(0)] for n in range(4)]
    return tag_m0(d + ([next_tile(sKOFF)] if adv else []))
def dma_V(name, m0, soff=sVOFF, adv=True):
    d = [[m0]] + [[buf_dma(vVd[n % 2], srdV, soff, 1024 * n, name, OPT['kvf'])] for n in range(4)]
    if OPT['xr'] or (isinstance(soff, int) and soff): d = [[salu('s_xor_b32', sXV, soff, sXR), m0]] + [[buf_dma(vVd[n % 2], srdV, sXV, 1024 * n, name, OPT['kvf'])] for n in range(4)]
    if OPT['nodma']: d = [[m0]] + [[s_nop(0)] for n in range(4)]
    return tag_m0(d + ([next_tile(sVOFF)] if adv else []))
def dma_X(part, name):
    return tag_m0([[s_mov(M0, sXM[part])]] + [[buf_dma(vXg[4 * part + n], srdX[part], sXC, 1024 * n, name, OPT['xf'])] for n in range(4)])
def dma_W(i, name, m0):
    return tag_m0([[m0]] + [[buf_dma(vWd[i][n], srdW[i], sWC[i], 1024 * n, name, OPT['wf'])] for n in range(4)])
def PK(s, nt): return A(192 + (s * 3 + nt) * 4, 4) if s * 3 + nt < 8 else A(244, 4)
def pack_in():
    t = [vRC[0], vRC[1], vRC[2]]
    out = [[valu('v_accvgpr_read_b32', t[u], aPd[u])] for u in range(3)]
    for s in range(3):
        out.append([salu('s_add_u32', M0, sPM0, s * 3072) if s < 2 else s_mov(M0, sW4K), s_nop(0)])
        out += [[buf_dma(t[u], srdP, sPU[s], 1024 * u, 'privP' if s < 2 else ('privP', Kn(28)), OPT['pf'])] for u in range(3)]
    return tag_m0(out)
def pack_rd():
    ra, rb = vRC[3], vRC[2]
    o = [[valu('v_accvgpr_read_b32', ra, aPr)], [valu('v_accvgpr_read_b32', rb, aPq), wait(vm=['privP'])]]
    for s in range(3):
        o += [[ds_read('ds_read_b64_tr_b16', PK(s, nt).sub(2 * h, 2), ra if s < 2 else rb, (s % 2) * 3072 + h * 1536 + 8 * nt, 'privP') for h in range(2)] for nt in range(3)]
    return o
def pack_st(units): return [[buf_store('buffer_store_dwordx4', PK(s, nt), vT, srdQ, sPV[s], nt * 1024, OPT['pst'])] for s in units for nt in range(3)]

def slot(name): return 16384 * int(name[1]) if OPT['un'] else 0
def rd_K(name, half, kt, s): return ds_read('ds_read_b128', Kf(kt, s), vKr[s], slot(name) + half * 8192 + kt * 4096, name)
def rd_V(name, half, dt): return [ds_read('ds_read_b64_tr_b16', Vf(dt).sub(2 * h, 2), vVr[dt], slot(name) + half * 8192 + h * 4096, name) for h in range(2)]
def rd_W(p, h, head, i):
    return [ds_read('ds_read_b64_tr_b16', Wf(p).sub(2 * j, 2), vWr[i], (1 - h % 2) * 16384 + j * 2048 + head * 256, WN[h % 4]) for j in range(2)]
def rd_X(c, ks, qt): return ds_read('ds_read_b128', XF(ks, qt), vXr[qt // 2][ks], (qt % 2) * 2048, Xn(c, qt // 2))

ST = [32, 40, 49, 57]
NP = 66
DG = [[[54, 55, 57, 59, 61, 62], [54, 55, 57, 59, 61, 62]], [[38, 39, 48, 55, 60, 62], [15, 16, 30, 45, 58, 60]],
      [[38, 39, 40, 59, 60, 62], [15, 16, 17, 44, 45, 60]], [[38, 39, 43, 57, 61, 62], [15, 16, 20, 41, 45, 60]],
      [[38, 39, 43, 75, 79, 80], [33, 34, 38, 59, 63, 64]], [[57, 58, 62, 83, 87, 88], [40, 41, 45, 59, 63, 64]]][OPT['dg']]
PEND = {}
REP = []
def period_parts(j, B=0, first=False, nxt=True, kg=None, dma=True, skip=False):
    t, odd = j // 2, j % 2
    mf = []
    for qt in range(4):
        for kt in range(2):
            for s in range(4):
                c = Sreg(qt, kt) if s else (vCI if (qt == 3 and OPT['cinit']) else 0)
                mf.append(mfma(Sreg(qt, kt), Kf(kt, s), Qreg(qt, s), c, SH) if not (skip and qt == 3) else s_nop(7) if kt + s == 0 else None)
    for qt in range(4):
        if qt % 2: mf.append(smfmac(Lacc(qt // 2), aONE, V(Preg(qt - 1).i, 8), vIDX))
        for dt in range(8): mf.append(mfma(Oacc(dt, qt), Vf(dt), Preg(qt), 0 if first else Oacc(dt, qt), SH) if not (skip and qt == 3) else None)
    fl = []
    prev = None
    for qt in range(3 if skip else 4):
        dl = B + ST[qt] - 3
        pc = None
        for kt in range(2):
            lo = B + 8 * qt + 4 * kt + 3 + 4
            ex = []
            for r in range(4):
                prev = F(valu('v_exp_f32', Sreg(qt, kt)[r], Sreg(qt, kt)[r]), lo, dl - 1, after=[prev]); ex.append(prev)
            fl += ex
            for h in range(2):
                pc = F(valu('v_cvt_pk_bf16_f32', Preg(qt)[2 * kt + h], Sreg(qt, kt)[2 * h], Sreg(qt, kt)[2 * h + 1]), lo, dl,
                       after=[(ex[2 * h + 1], 1), pc]); fl.append(pc)
    vr = at([rd_V(Vn(t), odd, dt) for dt in range(8)], [B + g for g in range(8)]); fl += vr
    fl += at([[wait(lg=[Vf(dt) for dt in range(8)])]], [B + 31])
    if nxt:
        kg = kg or [int(x) for x in OPT['kg'].split(',')]
        fl += at([[rd_K(Kn(t + odd), 1 - odd, i // 4, i % 4)] for i in range(8)], [B + g for g in kg])
        fl += at([[wait(lg=0)]], [B + 65])
        if odd:
            fl += at([[wait(vm=[Kn(t + 1), Vn(t + 1)]), s_barrier()]], [B + 36])
            if dma:
                d = dma_K(Kn(t + OPT['la']), salu('s_add_u32', M0, sW4K, slot(Kn(t + OPT['la']))) if OPT['un'] else s_mov(M0, sKM))
                n1 = sum(g < NP for g in DG[0])
                fl += at(d[:n1], [B + g for g in DG[0][:n1]])
                if n1 < 6: PEND[j + 1] = (tag_m0([[s_mov(M0, sKM)]] + d[n1:]), [DG[0][n1] - NP - 1] + [g - NP for g in DG[0][n1:]])
            if not OPT['un']: fl += [F(valu('v_xor_b32', vVr[dt], sTG, vVr[dt]), B + 31, B + 65) for dt in range(8)]
        else:
            if j in PEND: d, gs = PEND.pop(j); fl += at(d, [B + g for g in gs])
            if dma: fl += at(dma_V(Vn(t + OPT['la'] - 1), salu('s_add_u32', M0, sW4K, 65536 + slot(Vn(t + OPT['la'] - 1))) if OPT['un'] else salu('s_add_u32', M0, sKM, 65536)), [B + g for g in DG[1]])
            x = F([salu('s_xor_b32', sKM, sKM, sTG), salu('s_xor_b32', sTG, sTG, 49152)][::1 if OPT['la'] == 4 else -1], B + DG[1][0] + 1, B + 60)
            if not OPT['un']: fl += [x] + [F(valu('v_xor_b32', vKr[s], sTG, vKr[s]), B + 54, B + 65, after=[x]) for s in range(4)]
    return mf, fl
def period(j, extra=(), **kw):
    mf, fl = period_parts(j, **kw)
    return schedule(mf, fl + list(extra), 8, REP)

def q_half(c, hf, last, skip=False):
    h = 2 * c + hf
    mf = [mfma(QACC(i // 8, (i % 8) // 2, i % 2, qt), Wf(i), XF(hf, qt), QACC(i // 8, (i % 8) // 2, i % 2, qt), SH) if not (skip and qt == 3) else s_nop(0) if i == 15 else None
          for i in range(16) for qt in range(4)]
    fl = []
    for i in range(16):
        p = i + 4
        fl += at([rd_W(p, h, p // 8, p % 8) if p < 16 else rd_W(p, h + 1, 0, p - 16)], [4 * i])
    for i in range(2, 18, 2):
        w = [Wf(i), Wf(i + 1)] + ([XF(1 - hf, qt) for qt in range(4)] if i == 16 else [])
        fl += at([[wait(lg=w)]], [4 * i - 1])
    fl += at([[wait(vm=[WN[(h + 1) % 4]]), s_barrier()]], [46])
    if hf == 0:
        fl += at([[rd_X(c, 1, 0), rd_X(c, 1, 2)], [rd_X(c, 1, 1), rd_X(c, 1, 3)],
                  [valu('v_xor_b32', vXr[0][1], 0xC000, vXr[0][1]), valu('v_xor_b32', vXr[1][1], 0x18000, vXr[1][1])]], [1, 2, 5])
        if last and OPT['pl']: fl += at(dma_K((Xn(c, 0), Kn(1)), salu('s_add_u32', M0, sW4K, 16384), mp(1), False), [17, 18, 22, 26, 30])
        else:
            fl += at(dma_X(0, (Xn(c, 0), Kn(1)) if last else Xn(c, 0)), [17, 18, 22, 26, 30])
            fl += at([[salu('s_xor_b32', sXM[0], sXM[0], 0xC000)]], [33])
        fl += at(dma_W(0, WN[(h + 3) % 4], salu('s_xor_b32', M0, sWM, 0x38000)) + [advance(sWC[0], 524288, 262144)], [49, 50, 53, 57, 61, 62])
    else:
        if last and OPT['pl']: fl += at(dma_V((Xn(c, 1), Vn(1)), salu('s_add_u32', M0, sW4K, 81920), mp(1), False), [1, 2, 6, 10, 14])
        else:
            fl += at(dma_X(1, (Xn(c, 1), Vn(1)) if last else Xn(c, 1)), [1, 2, 6, 10, 14])
            fl += at([[salu('s_xor_b32', sXM[1], sXM[1], 0x18000)], advance(sXC, 128)], [17, 18])
        fl += at([[wait(vm=[Xn(c + 1, 0), Xn(c + 1, 1)])], [rd_X(c + 1, 0, 0), rd_X(c + 1, 0, 2)], [rd_X(c + 1, 0, 1), rd_X(c + 1, 0, 3)],
                  [valu('v_xor_b32', vXr[0][0], 0xC000, vXr[0][0]), valu('v_xor_b32', vXr[1][0], 0x18000, vXr[1][0])]], [37, 38, 41, 42])
        fl += at([[valu('v_xor_b32', vWr[i], 0x38000, vWr[i])] for i in range(8)], [19, 21, 25, 29, 33, 37, 43, 45])
        if last and OPT['pl']:
            if OPT['la'] == 4 and not OPT['gv']: fl += at(dma_V(Vn(2), salu('s_add_u32', M0, sW4K, 114688), mp(2), False), [49, 50, 53, 57, 61])
        else:
            fl += at(dma_W(1, WN[(h + 3) % 4], salu('s_add_u32', M0, sWM, 16384)) + [advance(sWC[1], 524288)], [49, 50, 53, 57, 61, 62])
            fl += at([[salu('s_xor_b32', sWM, sWM, 0x38000)]], [51])
    if not OPT['trk'] and not last:
        sN, sNX, sTA, sTB, vTK = S(6), S(7), S(8), S(9), V(64)
        same = scat('n', 1) == 1024
        sN2, sNX2 = (sN, sNX) if same else (S(10), S(11))
        if hf == 0:
            fl += at([[salu('s_or_b32', sTA, sXR, sN2), salu('s_lshr_b32', sTB, sN, 4)], [s_cmp('s_cmp_lt_u32', sCNT, 3), I('s_cselect_b32', f"s_cselect_b32 {sTA}, {HUGE}, {sTA}", 'salu', [SCC, sTA], [sTA])],
                      [valu('v_xor_b32', vTK, sTB, vKd[0])]], [34, 35, 37])
            fl += at(tag_m0([[salu('s_or_b32', M0, sW4K, sN)], [buf_dma(vTK, srdK, sTA, 0, Kn(0), OPT['kvf'])]]), [OPT['tg'], OPT['tg'] + 1])
        else:
            fl += at([[salu('s_lshr_b32', sTB, sN, 3), salu('s_and_b32', sTB, sTB, 128)], [valu('v_xor_b32', vTK, sTB, vVd[0])],
                      [salu('s_or_b32', sTB, sN, 65536), salu('s_xor_b32', sN, sN, sNX)], [salu('s_xor_b32', sNX, sNX, 3072)]], [34, 35, 55, 59])
            if not same: fl += at([[salu('s_xor_b32', sN2, sN2, sNX2), salu('s_xor_b32', sNX2, sNX2, scat('n', 3))]], [58])
            fl += at(tag_m0([[salu('s_or_b32', M0, sW4K, sTB)], [buf_dma(vTK, srdV, sTA, 0, Vn(0), OPT['kvf'])]]), [OPT['tg'], OPT['tg'] + 1])
    if OPT['tch'] and not last and (hf == 0 or OPT['tch'] == 2):
        if hf == 0: fl += at([[salu('s_xor_b32', sTD, sTC, sXR)], [salu('s_or_b32', sTC, sTC, ~TMASK & 0xffffffff), salu('s_add_u32', sTC, sTC, mp(OPT['tstep']) )], [salu('s_and_b32', sTC, sTC, TMASK)]], [38, 41, 42])
        fl += at([[buf_load('buffer_load_dword', V(101 + hf), vTC, [srdK, srdV][hf], sTD, 0, OPT['tf'])]], [63])
    return schedule(mf, fl, 8, REP)

def q_loop(skip=False):
    NR = 7 if OPT['pl'] else 8
    bodies = []
    lab = 'L_qs' if skip else 'L_q'
    for c in range(NR):
        b = [label(lab)] + istamp(32, sCNT, 0) + q_half(c, 0, c == 7, skip) + q_half(c, 1, c == 7, skip)
        b += [salu('s_add_u32', sCNT, sCNT, 1), s_cmp('s_cmp_lg_u32', sCNT, sLIM), s_branch('s_cbranch_scc1', lab)]
        bodies.append(b)
    rolled(lab, bodies)
    blk = {}
    for part in range(OPT['trk']):
        n0, n1 = part * 4 // OPT['trk'], (part + 1) * 4 // OPT['trk']
        a = dma_K(Kn(0), s_mov(M0, sW4K), 0, False); a = a[0] + [s_nop(0)] + flat(a[1 + n0:1 + n1])
        b = dma_V(Vn(0), salu('s_add_u32', M0, sW4K, 65536), 0, False); b = b[0] + [s_nop(0)] + flat(b[1 + n0:1 + n1])
        blk.setdefault(OPT['kv0'] + part, []).extend(a + b)
    if not OPT['pl']:
        sw = []
        for d, s in ((srdX[0], srdK), (srdX[1], srdV), (srdW[1], srdV)):
            sw += [s_mov(d[k], s[k]) for k in range(3)]
        sw += [salu('s_xor_b32', sXC, sXR, mp(1)), salu('s_xor_b32', sWC[1], sXR, mp(2))]
        for n in range(4):
            sw += [valu('v_mov_b32', vXg[n], vKd[n]), valu('v_mov_b32', vXg[4 + n], vVd[n % 2]), valu('v_mov_b32', vWd[1][n], vVd[n % 2])]
        blk.setdefault(6, []).extend(sw)
    cs = sorted(blk)
    static, trace = bodies[0][:], []
    full = {}
    for k, c in enumerate(cs):
        hd = [label(f'L_q{k}'), s_cmp('s_cmp_lg_u32', sCNT, c + 1), s_branch('s_cbranch_scc1', f'L_q{k + 1}' if k + 1 < len(cs) else 'L_qtail')]
        full[c] = hd + blk[c] + [s_mov(sLIM, (cs + [NR - 1])[k + 1] + 1), s_branch('s_branch', 'L_q')]
        static += full[c]
    for c in range(NR): trace += bodies[c] + full.get(c, [])
    return static, trace, (cs[0] + 1 if cs else NR)

def conv(h, qt, s, tmp=None, pk=True):
    q = Qreg(qt, s)
    g = []
    src = V(QACC(0, s, 0, qt).i, 8) if h == 0 else tmp
    if h == 1: g += [[valu('v_accvgpr_read_b32', tmp[i], A(QACC(1, s, 0, qt).i + i))] for i in range(8)]
    if pk: g += [[pk_mul_s(src.sub(2 * i, 2), sSCALE)] for i in range(4)]
    else: g += [[valu('v_mul_f32', src[i], sSCALE[0], src[i])] for i in range(8)]
    g += [[valu('v_cvt_pk_bf16_f32', q[i], src[2 * i], src[2 * i + 1])] for i in range(4)]
    return g, [[perm16(q[0], q[2])], [perm16(q[1], q[3])]]
def l_init():
    return [[valu('v_accvgpr_write_b32', Lacc(i // 4)[i % 4], sPAD if i == 6 else 0)] for i in range(8)]

def q_tail():
    seq = [(hd, ks, i) for hd in range(2) for ks in range(2) for i in range(8)]
    mf = [mfma(QACC(hd, i // 2, i % 2, qt), Wf(p), XF(ks, qt), QACC(hd, i // 2, i % 2, qt), SH)
          for p, (hd, ks, i) in enumerate(seq) for qt in range(4)]
    B = 128
    m0, fl = period_parts(0, B, first=True)
    mf += m0
    for p in range(4, 32): fl += at([rd_W(p, 16 + seq[p][1], seq[p][0], seq[p][2])], [4 * (p - 4)])
    for p in range(2, 32, 2): fl += at([[wait(lg=[Wf(p), Wf(p + 1)] + ([XF(1, qt) for qt in range(4)] if p == 8 else []))]], [4 * p - 1])
    fl += at([[rd_X(8, 1, 0), rd_X(8, 1, 2)], [rd_X(8, 1, 1), rd_X(8, 1, 3)], [wait(vm=['E0']), s_barrier()]], [1, 2, 14])
    fl += at(dma_K((Kn(2), Xn(8, 1)), salu('s_add_u32', M0, sW4K, 49152)), [OPT['g2'] + g for g in (0, 1, 4, 5, 8, 9)])
    if OPT['la'] == 4:
        fl += at(dma_K((Kn(3), Xn(8, 0)), s_mov(M0, sKM)), [OPT['g3'] + g for g in (0, 1, 4, 5, 8, 9)])
        if OPT['gv']: fl += at(dma_V(Vn(2), salu('s_add_u32', M0, sW4K, 114688), mp(2), False), [OPT['gv'] + g for g in (0, 1, 4, 5, 8)])
    fl += chain(l_init(), 5, 40, step=1)
    fl += at([[wait(vm=[Kn(0), Vn(0)], lg=0), s_barrier()]], [119])
    fl += at([[rd_K(Kn(0), 0, i // 4, i % 4)] for i in range(8)], [120, 120, 121, 121, 122, 122, 123, 123])
    fl += at([[wait(lg=[Kf(0, s) for s in range(4)])], [wait(lg=[Kf(1, s) for s in range(4)])]], [127, B + 3])
    prev, sw = None, []
    order = [(qt, s) for s in range(3) for qt in range(4)] + [(qt, 3) for qt in range(4)]
    order.sort(key=lambda x: (x[1] if x[1] < 2 else 2, x[0]))
    for qt, s in order:
        g, p16 = conv(0, qt, s, pk=OPT['pk0'])
        lo = 4 * (9 + 2 * s) + qt + 5
        hi = B + 8 * qt - 2
        ch = chain(g + [[s_nop(0)]] + p16[:1] + p16[1:], lo, hi, after=[prev], per=0); prev = ch[-1]; fl += ch
    return schedule(mf, fl, 8, REP)

sites = []
def check_parts():
    t = [V(32 + i) for i in range(8)]
    g = [[valu('v_accvgpr_read_b32', t[i], Lacc(i // 4)[i % 4])] for i in range(8)]
    g += [[valu('v_add_f32', vRC[q], t[2 * q], t[2 * q + 1])] for q in range(4)]
    g += [[valu('v_add_f32', t[0], vRC[0], vRC[1])], [valu('v_add_f32', t[1], vRC[2], vRC[3])], [valu('v_min3_f32', t[2], vRC[0], vRC[1], vRC[2])],
          [valu('v_add_f32', t[0], t[0], t[1])], [valu('v_min_f32', t[2], t[2], vRC[3])], [v_cmp('v_cmp_ngt_f32', sHI, t[0])],
          [I('v_cmp_gt_f32', f"v_cmp_gt_f32_e64 {sMASK}, {sLO}, {t[2]}", 'valu', [sLO, t[2]], [sMASK])]]
    k = len(sites); sites.append(k)
    br = [s_nop(0), I('s_or_b64', f"s_or_b64 {sMASK}, {sMASK}, vcc", 'salu', [sMASK, VCC], [sMASK, SCC]),
          s_branch('s_cbranch_scc0' if OPT['forcefb'] else 's_cbranch_scc1', f"L_tramp{k}"), label(f"L_ret{k}")]
    return g, br
def with_check(mf, fl, B, pad):
    ck, br = check_parts()
    c1 = chain(ck[:4], B + 50, B + 62, per=0)
    return schedule(mf, fl + c1 + chain([[s_nop(pad)]] + ck[4:], B + 64, B + 65, per=0, after=c1[-1:]), 8, REP) + br
def parked(qt):
    return [buf_store('buffer_store_dwordx4', A(32 * qt + 4 * m, 4), vO[qt], srdO, sOB[m // 2], (m % 2) * OU, OPT['ost']) for m in range(4)]
def epilogue(qt, mid=False):
    g = []
    for m in range(4):
        o = V(Oacc(2 * m, qt).i, 8)
        g += [[pk_mul_v(o.sub(2 * i, 2), vRC.sub(qt & 2, 2), qt & 1)] for i in range(4)]
        g += [[valu('v_cvt_pk_bf16_f32', o[i], o[2 * i], o[2 * i + 1])] for i in range(4)]
        if mid and not OPT['dst']: g += [[valu('v_accvgpr_write_b32', A(32 * qt + 4 * m + i), o[i])] for i in range(4)]
        else: g += [[buf_store('buffer_store_dwordx4', o.sub(0, 4), vO[qt], srdO, sOA[m // 2], (m % 2) * OU, OPT['ost2'])]]
    return g
def rcp(): return [valu('v_rcp_f32', vRC[q], vRC[q]) for q in range(4)]

def boundary():
    o = [label('L_mid')] + with_check(*period_parts(31), 0, 1) + stamp(4, V(32), V(33)) + stamp(16, V(32), V(33)) + stamp(17, V(32), V(33))
    o += rcp() + flat(l_init())
    o += [s_mov(sITEM, 1), s_mov(sFH, 262144), s_mov(sEND, mp(31 + OPT['la'] - OPT['npl'])), s_mov(sOB[0], sOA[0]), s_mov(sOB[1], sOA[1])]
    tmp = V(56, 8)
    def cv(qt):
        out, pend = [], []
        for s in range(4):
            g, p = conv(1, qt, s, tmp)
            out += g[:2] + pend + g[2:]; pend = p
        return out + [[s_nop(1)]] + pend
    o += flat(cv(0)) + flat(epilogue(0, True)) + [s_nop(1)]
    e, prev = [], None
    for qt in range(1, 4):
        ch = chain(cv(qt), 8 * qt - 8, 8 * qt - 2, after=[prev], per=0); prev = ch[-1]; e += ch
    for qt in range(1, 4):
        ch = chain(epilogue(qt, True), 20, ST[qt] - 3, after=[prev], per=0); prev = ch[-1]; e += ch
    e += chain([[salu('s_add_u32', sOA[0], sOA[0], 4 * OU), salu('s_add_u32', sOA[1], sOA[1], 4 * OU)]], 40, 65, after=[prev], per=0)
    if OPT['tlb']:
        t = [buf_load('buffer_load_dword', A(248 + q), vO[q], srdO, sOB[0], 0, ' nt') for q in range(4)]
        t += [buf_load('buffer_load_dword', A(252 + u), vT, srdQ, sPV[u], 0, ' nt') for u in range(3)] + [buf_load('buffer_load_dword', A(255), vT, srdP, sPU[0], 0, ' nt')]
        e += at([[x] for x in t], [56 + i for i in range(8)])
    return o + period(32, extra=e, first=True)
def final():
    mf, fl = [], []
    n = 2 * OPT['npl'] + 1
    for k in range(n):
        m, f = period_parts(64 - n + k, NP * k, nxt=k < n - 1, dma=False)
        mf += m; fl += f
    B = NP * (n - 1)
    if OPT['npl'] < 3: pi = chain(pack_in(), 0, 13, per=0); p0 = pi[-1:]
    else:
        g = pack_in()
        pi = chain(g[:11], 0, 10, per=0); p0 = pi[-1:]
        pi += chain(g[11:], 37, 44, per=0, after=p0)
    pr = chain(pack_rd(), OPT['prd'], OPT['prd'] + 40, step=3, per=0)
    pw = F(wait(lg=[PK(s, nt) for s in range(3) for nt in range(3)]), OPT['prd'] + 40, OPT['prd'] + 60, after=[pr[-1]])
    st = [[x] for qt in range(4) for x in parked(qt) if not OPT['dst']] + pack_st(range(3))
    lo, hi = (OPT['prd'] + 60 if OPT['dst'] else OPT['st0']), NP * n + OPT['st1']
    st = chain(st, lo, hi, step=(hi - lo) / len(st), per=0, slack=6, after=p0)
    st[-9].after.append((pw, 0))
    for k, g in enumerate(OPT['wb'].split(',') if OPT['wb'] else []):
        st += at([[salu('s_lshr_b32', sT1, S(2), 3), salu('s_lshl_b32', sT2, sW, 8), salu('s_or_b32', sT1, sT1, sT2), s_cmp('s_cmp_lg_u32', sT1, k),
                   s_branch('s_cbranch_scc1', f'L_wb{k}'), raw('buffer_wbl2 sc1'), label(f'L_wb{k}')]], [int(g)])
    if OPT['nopk'] == 1: st = st[:16]
    if OPT['nopk'] == 2: st = []
    o = [label('L_last')] + with_check(mf, fl + pi + pr + [pw] + st, B, 4) + stamp(21, V(40), V(41)) + rcp()
    for qt in range(4): o += flat(epilogue(qt))
    return o + stamp(20, V(32), V(33))

def fallback():
    vk, vv, ad, f, t, t2 = V(32), [V(33), V(34)], V(35), V(36), V(37), V(38)
    m, s8 = [V(40 + q) for q in range(4)], V(48, 8)
    l = [vRC[q] for q in range(4)]
    def FK(kt, s): return A(192 + (kt * 4 + s) * 4, 4)
    def xmax(op, x):
        return [valu('v_mov_b32', t2, x), s_nop(1), perm16(x, t2), valu(op, x, x, t2), valu('v_mov_b32', t2, x), s_nop(1), permswap(x, t2), valu(op, x, x, t2)]
    o = [label('L_fb'), s_nop(15), raw('s_waitcnt vmcnt(0) lgkmcnt(0)')]
    o += [raw(f"v_mbcnt_lo_u32_b32 {t}, -1, 0", 'valu', [], [t]), raw(f"v_mbcnt_hi_u32_b32 {t}, -1, {t}", 'valu', [t], [t]),
          valu('v_and_b32', t2, 15, t), valu('v_lshrrev_b32', t, 4, t), valu('v_lshlrev_b32', f, 1, t), valu('v_xor_b32', f, f, t2),
          valu('v_lshlrev_b32', ad, 8, t), valu('v_lshl_add_u32', vv[0], f, 4, ad), valu('v_xor_b32', vv[1], 128, vv[0]),
          valu('v_lshlrev_b32', t2, 8, t2), valu('v_lshl_add_u32', vk, t, 4, t2)]
    for q in range(4): o += [valu('v_mov_b32', m[q], f2u(-3.0e38)), valu('v_mov_b32', l[q], 0)]
    for i in range(128): o.append(valu('v_mov_b32', V(128 + i), 0))
    o += [s_mov(sF, sFH), s_mov(sFC, 32), label('L_fb_loop'), salu('s_add_u32', sF2, sF, 4096)]
    for kt in range(2):
        o += [buf_load('buffer_load_dwordx4', FK(kt, s), vk, srdK, [sF, sF2][kt], 64 * s) for s in range(4)]
        o += [salu('s_add_u32', M0, sPM0, 4096 * kt), s_nop(0)] + [buf_dma(vv[n % 2], srdV, [sF, sF2][kt], 1024 * n, 'privF') for n in range(4)]
    o += [wait(vm=0)]
    for dt in range(8):
        o += [valu('v_and_b32', ad, 0x1fff, vVr[dt]), valu('v_add_u32', ad, sPM0, ad), s_nop(0)]
        o += [ds_read('ds_read_b64_tr_b16', Vf(dt).sub(2 * h, 2), ad, h * 4096, 'privF') for h in range(2)]
    o += [wait(lg=0)]
    for q in range(4):
        for kt in range(2):
            d = s8.sub(4 * kt, 4)
            o += [mfma(d, FK(kt, s), Qreg(q, s), d if s else 0, SH) for s in range(4)]
        o += [s_nop(9), valu('v_max3_f32', t, s8[0], s8[1], s8[2]), valu('v_max3_f32', t, t, s8[3], s8[4]), valu('v_max3_f32', t, t, s8[5], s8[6]),
              valu('v_max3_f32', t, t, s8[7], m[q])] + xmax('v_max_f32', t)
        o += [valu('v_sub_f32', f, m[q], t), valu('v_exp_f32', f, f), valu('v_mov_b32', m[q], t)]
        for i in range(8): o += [valu('v_sub_f32', s8[i], s8[i], t), valu('v_exp_f32', s8[i], s8[i])]
        o += [valu('v_mul_f32', l[q], l[q], f)]
        o += [valu('v_cvt_pk_bf16_f32', s8[i], s8[2 * i], s8[2 * i + 1]) for i in range(4)]
        for i in range(4):
            o += [valu('v_lshlrev_b32', t, 16, s8[i]), valu('v_and_b32', t2, 0xffff0000, s8[i]), valu('v_add_f32', l[q], l[q], t), valu('v_add_f32', l[q], l[q], t2)]
        o += [valu('v_mul_f32', V(128 + 32 * q + i), V(128 + 32 * q + i), f) for i in range(32)]
        o += [s_nop(1)] + [mfma(Oacc(dt, q), Vf(dt), s8.sub(0, 4), Oacc(dt, q), SH) for dt in range(8)] + [s_nop(7)]
    o += [salu('s_add_u32', sF, sF, 8192), salu('s_sub_u32', sFC, sFC, 1), s_cmp('s_cmp_lg_u32', sFC, 0), s_branch('s_cbranch_scc1', 'L_fb_loop')]
    for q in range(4): o += xmax('v_add_f32', l[q])
    o += [s_nop(9), raw(f"s_setpc_b64 {sRET}", 'branch', [sRET])]
    return o

def k1_setup():
    u = [V(64 + i) for i in range(12)]
    l, g, q, t0, t1, t2, t3, r, c = u[:9]
    o = [s_cmp('s_cmp_ge_u32', S(2), 256), s_branch('s_cbranch_scc1', 'L_k1_end')]
    o += [s_load('s_load_dwordx8', S(4, 8), S(0, 2), 0), s_load('s_load_dwordx2', pWO, S(0, 2), 32),
          s_load('s_load_dwordx8', S(32, 8), S(0, 2), 40), s_load('s_load_dwordx2', S(40, 2), S(0, 2), 72),
          s_load('s_load_dwordx2', pWS, S(0, 2), 96)]
    o += [salu('s_bfe_u32', sP, S(2), 0x10002), salu('s_and_b32', sT0, S(2), 1), salu('s_lshl_b32', sT0, sT0, 2), salu('s_bfe_u32', sT1, S(2), 0x20003),
          salu('s_add_u32', sB, sT0, sT1), salu('s_lshl_b32', sT1, sT1, 1),
          salu('s_lshr_b32', sT2, S(2), 5), salu('s_add_u32', sR0, sT1, sT2), s_cmp('s_cmp_ge_u32', sR0, 9),
          csel(sT1, 9, 0), salu('s_sub_u32', sR0, sR0, sT1),
          salu('s_and_b32', sT0, S(2), 2), salu('s_lshl_b32', sT0, sT0, 2), salu('s_add_u32', sH, sT0, sT2), salu('s_lshl_b32', sH, sH, 1)]
    if not OPT['rot']: o.append(s_mov(sR0, 0))
    o += [salu('s_lshl_b32', sXC, sR0, 7), salu('s_lshl_b32', sWC[1], sR0, 19), salu('s_add_u32', sWC[0], sWC[1], 262144)]
    o += [valu('v_lshrrev_b32', t0, 6, vT), valu('v_and_b32', l, 63, vT), readfirstlane(sW, t0),
          valu('v_lshrrev_b32', g, 4, l), valu('v_and_b32', q, 15, l), valu('v_lshrrev_b32', t1, 3, l), salu('s_lshl_b32', sW4K, sW, 12)]
    o += [smul(sT0, sW, 64 * 1152), valu('v_mul_u32_u24', t0, 1152, t1), valu('v_and_b32', t2, 7, l), valu('v_xor_b32', t2, t2, g),
          valu('v_add_u32', t0, sT0, t0), valu('v_lshl_add_u32', vXg[0], t2, 4, t0), valu('v_xor_b32', t2, 4, t2), valu('v_lshl_add_u32', t3, t2, 4, t0)]
    for n in range(1, 8): o.append(valu('v_add_u32', vXg[n], n * 9216 - 1024 * (n % 4), t3 if n % 2 else vXg[0]))
    o += [valu('v_lshrrev_b32', t1, 5, l), valu('v_and_b32', t2, 31, l), valu('v_xor_b32', t2, t2, t1), salu('s_and_b32', sT0, sW, 1),
          salu('s_lshl_b32', sT0, sT0, 3), valu('v_xor_b32', t2, sT0, t2), salu('s_lshl_b32', sT1, sW, 16), valu('v_lshlrev_b32', t1, 13, t1),
          valu('v_add_u32', t0, sT1, t1), valu('v_lshl_add_u32', vWd[0][0], t2, 4, t0), valu('v_xor_b32', t2, 4, t2), valu('v_lshl_add_u32', t3, t2, 4, t0)]
    for n in range(1, 4): o.append(valu('v_add_u32', vWd[0][n], n * (16384 - 1024), t3 if n % 2 else vWd[0][0]))
    for n in range(4): o.append(valu('v_mov_b32', vWd[1][n], vWd[0][n]))
    o += [salu('s_add_u32', sXM[0], sW4K, XBASE[0][0]), salu('s_add_u32', sXM[1], sW4K, XBASE[0][1]), salu('s_add_u32', sWM, sW4K, 131072)]
    o += [wait(lg=0)] + probe(0) + [s_cmp('s_cmp_eq_u32', sP, 0)]
    for d, s1 in ((pX, S(32, 2)), (pWQ, S(38, 2)), (pK, S(34, 2)), (pV, S(36, 2)), (pWO, S(40, 2))):
        o.append(I('s_cselect_b64', f"s_cselect_b64 {d}, {d}, {s1}", 'salu', [d, s1, SCC], [d]))
    o += [smul(sT0, sB, 276480)] + set_srd(srdX[0], pX, sT0, 276480) + set_srd(srdX[1], pX, sT0, 276480)
    o += [salu('s_lshl_b32', sT0, sH, 8), salu('s_sub_u32', sT1, 576 * 8192, sT0)] + set_srd(srdW[0], pWQ, sT0, sT1) + set_srd(srdW[1], pWQ, sT0, sT1)
    def nop1(x): x = flat(x); x.insert(1, s_nop(0)); return x
    def xload(c):
        return nop1(dma_X(0, Xn(c, 0))) + nop1(dma_X(1, Xn(c, 1))) + advance(sXC, 128) + \
               [salu('s_xor_b32', sXM[0], sXM[0], 0xC000), salu('s_xor_b32', sXM[1], sXM[1], 0x18000)]
    o += xload(0) + nop1(dma_W(1, 'E1', salu('s_add_u32', M0, sWM, 16384))) + advance(sWC[1], 524288)
    if OPT['e0']: o += nop1(dma_W(0, 'E0', s_mov(M0, sWM))) + advance(sWC[0], 524288, 262144)
    o += probe(1)
    late = [] if OPT['e0'] else nop1(dma_W(0, 'E0', s_mov(M0, sWM))) + advance(sWC[0], 524288, 262144)
    late += xload(1) + nop1(dma_W(1, 'V3', salu('s_add_u32', M0, sW4K, 114688))) + advance(sWC[1], 524288)
    z = V(60, 4)
    o += [valu('v_mov_b32', z[i], 0) for i in range(4)] + [s_nop(1)]
    zero = [mfma(r, z, z, 0) for i in range(8) for r in (V(128 + 16 * i, 16), A(16 * i, 16))]
    mark = len(o)
    o += [salu('s_lshl_b32', sT0, sB, 5), salu('s_add_u32', sT0, sT0, sH), salu('s_lshl_b32', sT0, sT0, 18)]
    o += set_srd(srdK, pK, sT0, 524288) + set_srd(srdV, pV, sT0, 524288)
    o += [smul(sT0, sP, O_BYTES)] + set_srd(srdO, pWS, sT0, O_BYTES)
    o += set_srd(srdP, pWO, 0, PACK_BYTES)
    o += [smul(sT0, sP, PACK_BYTES), salu('s_add_u32', sT0, sT0, PACK_OFF)] + set_srd(srdQ, pWS, sT0, PACK_BYTES)
    if OPT['stamp']:
        if OPT['dbg']:
            o += set_srd(S(72, 4), pWS, 200 * 1024 * 1024, 0) + [salu('s_lshl_b32', S(76), S(2), 2), salu('s_add_u32', S(76), S(76), sW),
                  s_cmp('s_cmp_eq_u32', S(76), 4 * OPT['dbg']), raw("s_cselect_b32 s74, 64, 0"), s_mov(S(76), 0)]
        else:
            o += set_srd(S(72, 4), pWS, 200 * 1024 * 1024, 1024 * 1024)
            o += [salu('s_lshl_b32', S(76), S(2), 2), salu('s_add_u32', S(76), S(76), sW), salu('s_lshl_b32', S(76), S(76), 8)]
    if OPT['xr'] == 0: o += [s_mov(sXR, 0)]
    if OPT['xr'] == 1: o += [salu('s_bfe_u32', sXR, S(2), 0x40003), salu('s_lshl_b32', sXR, sXR, 14)]
    if OPT['xr'] == 2: o += [salu('s_and_b32', sXR, S(2), 15), salu('s_lshl_b32', sXR, sXR, 14)]
    if OPT['xr'] == 3: o += [salu('s_lshr_b32', sXR, S(2), 4), salu('s_xor_b32', sXR, sXR, S(2)), salu('s_and_b32', sXR, sXR, 15), salu('s_lshl_b32', sXR, sXR, 14)]
    if not LIN: o += [salu('s_lshr_b32', sT0, sXR, 14)] + s_scat(sXR, 't', sT0, sT1)
    o += [s_mov(sKOFF, mp(2)), s_mov(sVOFF, mp(OPT['la'] - 1)), s_mov(sITEM, 0), s_mov(sFH, 0), s_mov(sCNT, 0), s_mov(sTG, 32768), s_mov(sEND, mp(15 + OPT['la'])),
          salu('s_add_u32', sKM, sW4K, 32768 if OPT['la'] == 4 else 49152), salu('s_lshl_b32', sOA[0], sH, 12 if OPT['s16'] else 13), salu('s_add_u32', sOA[1], sOA[0], 2 * OU)]
    c_scale = math.log2(math.e) / math.sqrt(128.0)
    o += [s_mov(sHI, f2u(2.0 ** 40)), s_mov(sLO, f2u(2.0 ** -40)), s_mov(sSCALE[0], f2u(c_scale)), s_mov(sSCALE[1], f2u(c_scale))]
    o += [s_cmp('s_cmp_eq_u32', sW, 3), csel(sT0, f2u(-1.0e30), 0), csel(sPAD, f2u(1.0), 0)] + [valu('v_mov_b32', vCI[i], sT0) for i in range(4)]
    pg = posn('g')
    if pg[1] == pg[0] + 1: o += [valu('v_lshlrev_b32', t0, pg[0], g)]
    else: o += [valu('v_and_b32', t0, 1, g), valu('v_lshlrev_b32', t0, pg[0], t0), valu('v_lshrrev_b32', t3, 1, g), valu('v_lshl_add_u32', t0, t3, pg[1], t0)]
    if posn('w') == [12, 13]: o += [valu('v_add_u32', t0, sW4K, t0)]
    else: o += s_scat(sT0, 'w', sW, sT1) + [valu('v_add_u32', t0, sT0, t0)]
    for n in range(4):
        o += [valu('v_add_u32', t3, 4 * n, g), valu('v_xor_b32', t3, t3, q), valu('v_lshl_add_u32', vKd[n], t3, 4, t0)]
        if scat('n', n) != 1024 * n: o += [valu('v_add_u32', vKd[n], scat('n', n) - 1024 * n, vKd[n])]
    o += [valu('v_lshlrev_b32', t3, 1, g), valu('v_xor_b32', t3, t3, q), valu('v_lshl_add_u32', vVd[0], t3, 4, t0), valu('v_xor_b32', vVd[1], 128, vVd[0])]
    if scat('n', 1) != 1024: o += [valu('v_add_u32', vVd[1], scat('n', 1) - 1024, vVd[1])]
    if OPT['tch']:
        assert pg == [8, 9]
        pn = posn('n')
        o += [valu('v_and_b32', t3, 1, g), valu('v_lshlrev_b32', t3, pn[0], t3), valu('v_lshl_add_u32', t3, q, 6, t3), valu('v_lshrrev_b32', vTC, 1, g),
              valu('v_lshl_add_u32', vTC, vTC, pn[1], t3), valu('v_add_u32', vTC, sT0, vTC), s_mov(sTC, mp(OPT['t0']))]
    o += [valu('v_lshrrev_b32', t2, 1, q), valu('v_xor_b32', t2, t2, g), valu('v_lshlrev_b32', t1, 7, q), valu('v_add_u32', t1, sW4K, t1),
          valu('v_lshl_add_u32', t1, t2, 4, t1), valu('v_xor_b32', t3, 64, t1)]
    for part in range(2): o += [valu('v_add_u32', vXr[part][0], XBASE[0][part], t1), valu('v_add_u32', vXr[part][1], XBASE[0][part], t3)]
    o += [valu('v_xor_b32', t2, g, q), valu('v_lshlrev_b32', t1, 8, q), valu('v_lshl_add_u32', vKr[0], t2, 4, t1)]
    for s in range(1, 4): o.append(valu('v_xor_b32', vKr[s], 64 * s, vKr[0]))
    o += [valu('v_lshrrev_b32', r, 2, q), valu('v_and_b32', c, 3, l), valu('v_lshl_add_u32', t0, g, 2, r), valu('v_and_b32', t2, 7, t0),
          valu('v_lshlrev_b32', t1, 8, t0), valu('v_lshl_add_u32', t1, t2, 5, t1), valu('v_lshl_add_u32', t1, c, 3, t1), valu('v_add_u32', vVr[0], 65536, t1)]
    for dt in range(1, 8): o.append(valu('v_xor_b32', vVr[dt], 32 * dt, vVr[0]))
    o += [valu('v_lshl_add_u32', t0, g, 3, r), valu('v_lshlrev_b32', t0, 9, t0), valu('v_and_b32', t1, 1, c), valu('v_lshl_add_u32', t0, t1, 3, t0),
          valu('v_and_b32', t1, 2, c), valu('v_and_b32', t2, 1, r), valu('v_or_b32', t1, t1, t2), valu('v_and_b32', t2, 2, r), valu('v_lshl_or_b32', t1, t2, 1, t1),
          valu('v_and_b32', t2, 1, g), valu('v_lshl_or_b32', t1, t2, 3, t1), valu('v_lshl_add_u32', t0, t1, 4, t0), valu('v_add_u32', vWr[0], 131072, t0)]
    for i in range(1, 8): o.append(valu('v_xor_b32', vWr[i], (4 * (i // 2) + i % 2) * 16, vWr[0]))
    o += [valu('v_lshrrev_b32', t0, 5, l), valu('v_bfe_u32', t1, l, 1, 1), v_cmp('v_cmp_eq_u32', t0, t1), valu('v_mov_b32', t2, 0x3f803f80), valu('v_and_b32', t3, 1, l),
          valu('v_cndmask_b32', t2, 0, t2, VCC), valu('v_mul_u32_u24', t3, 0xaaaa, t3), valu('v_add_u32', vIDX, 0x4444, t3)]
    o += [valu('v_accvgpr_write_b32', aONE[i], t2) for i in range(4)]
    if OPT['s16']:
        o += [salu('s_lshl_b32', sPM0, sW, 13), salu('s_add_u32', sPM0, sPM0, 131072), valu('v_lshl_add_u32', t0, g, 2, r), valu('v_mul_u32_u24', t0, 96, t0),
              valu('v_mul_u32_u24', t1, 24, c), valu('v_add3_u32', t0, t0, t1, sPM0),
              valu('v_lshlrev_b32', vT, 4, l), valu('v_accvgpr_write_b32', aPr, t0), valu('v_subrev_u32', t0, sPM0, t0), valu('v_add_u32', t0, sW4K, t0),
              valu('v_accvgpr_write_b32', aPq, t0)]
        for k in range(3):
            o += [valu('v_add_u32', t0, 64 * k, l), valu('v_mul_u32_u24', t1, 171, t0), valu('v_lshrrev_b32', t1, 10, t1),
                  valu('v_mul_u32_u24', t2, 6, t1), valu('v_sub_u32', t2, t0, t2),
                  valu('v_mul_u32_u24', t1, 1152, t1), valu('v_lshl_add_u32', t1, t2, 4, t1), valu('v_subrev_u32', t1, 1024 * k, t1),
                  valu('v_accvgpr_write_b32', aPd[k], t1)]
        o += [smul(sT1, sB, 15), salu('s_lshl2_add_u32', sT1, sW, sT1), salu('s_lshl_b32', sT1, sT1, 17), valu('v_add_u32', vO[0], sT1, vT),
              s_mov(sT2, 3 * 131072), s_cmp('s_cmp_eq_u32', sW, 3), I('s_cselect_b32', f"s_cselect_b32 {sT1}, {HUGE}, {sT2}", 'salu', [SCC, sT2], [sT1]),
              valu('v_add_u32', vO[1], 131072, vO[0]), valu('v_add_u32', vO[2], 2 * 131072, vO[0]), valu('v_add_u32', vO[3], sT1, vO[0])]
        o += [salu('s_and_b32', sT0, S(2), 3), salu('s_lshl_b32', sT0, sT0, 5), salu('s_lshr_b32', sT1, S(2), 3), salu('s_add_u32', sT0, sT0, sT1),
              smul(sPU[0], sT0, 32 * 1152), smul(sT1, sW, 288), salu('s_add_u32', sPU[0], sPU[0], sT1),
              salu('s_add_u32', sPU[1], sPU[0], 96), salu('s_add_u32', sPU[2], sPU[0], 192), smul(sT0, sT0, 6144), smul(sT1, sW, 3)]
        for s in range(3):
            o += [salu('s_lshr_b32', sT2, sT1, 1), smul(sT2, sT2, 786432), salu('s_add_u32', sPV[s], sT0, sT2),
                  salu('s_and_b32', sT2, sT1, 1), smul(sT2, sT2, 3072), salu('s_add_u32', sPV[s], sPV[s], sT2)] + ([salu('s_add_u32', sT1, sT1, 1)] if s < 2 else [])
    else:
        o += [salu('s_lshl_b32', sPM0, sW, 13), salu('s_add_u32', sPM0, sPM0, 131072), valu('v_lshl_add_u32', t0, t0, 2, r), valu('v_mul_u32_u24', t0, 192, t0),
              valu('v_and_b32', t1, 1, g), valu('v_lshl_add_u32', t1, t1, 2, c), valu('v_mul_u32_u24', t1, 24, t1), valu('v_add3_u32', t0, t0, t1, sPM0),
              valu('v_lshlrev_b32', vT, 4, l), valu('v_accvgpr_write_b32', aPr, t0), valu('v_subrev_u32', t0, sPM0, t0), valu('v_add_u32', t0, sW4K, t0),
              valu('v_accvgpr_write_b32', aPq, t0)]
        for k in range(3):
            o += [valu('v_add_u32', t0, 64 * k, l), valu('v_mul_u32_u24', t1, 171, t0), valu('v_lshrrev_b32', t1, 11, t1),
                  valu('v_mul_u32_u24', t2, 12, t1), valu('v_sub_u32', t2, t0, t2), valu('v_and_b32', t3, 8, t1), valu('v_add_u32', t1, t1, t3),
                  valu('v_mul_u32_u24', t1, 1152, t1), valu('v_lshl_add_u32', t1, t2, 4, t1), valu('v_subrev_u32', t1, 1024 * k, t1),
                  valu('v_accvgpr_write_b32', aPd[k], t1)]
        o += [salu('s_lshl_b32', sT0, sW, 6), valu('v_add_u32', t0, sT0, q), smul(sT1, sB, 240)]
        for qt in range(4):
            o += [valu('v_add_u32', t1, 16 * qt, t0),
                  valu('v_add_u32', t2, sT1, t1), valu('v_lshrrev_b32', t3, 5, t2), valu('v_lshlrev_b32', t3, 18, t3),
                  valu('v_and_b32', t2, 31, t2), valu('v_lshl_add_u32', t3, t2, 4, t3), valu('v_lshl_add_u32', t3, g, 9, t3),
                  v_cmp('v_cmp_gt_u32', 240, t1), valu('v_mov_b32', t2, HUGE), s_nop(0),
                  valu('v_cndmask_b32', vO[qt], t2, t3, VCC)]
        o += [salu('s_and_b32', sT0, S(2), 3), salu('s_lshl_b32', sT0, sT0, 5), salu('s_lshr_b32', sT1, S(2), 3), salu('s_add_u32', sT0, sT0, sT1),
              salu('s_lshr_b32', sT2, sW, 1), salu('s_and_b32', sT1, sW, 1), smul(sPU[0], sT0, 32 * 1152), smul(sPU[1], sT2, 8 * 1152), smul(sPU[2], sT1, 576),
              salu('s_add_u32', sPU[0], sPU[0], sPU[1]), salu('s_add_u32', sPU[0], sPU[0], sPU[2]),
              salu('s_add_u32', sPU[1], sPU[0], 192), salu('s_add_u32', sPU[2], sPU[0], 384),
              salu('s_lshl1_add_u32', sT2, sT0, sT2), smul(sT2, sT2, 3072), smul(sPV[0], sT1, 3 * 786432), salu('s_add_u32', sPV[0], sPV[0], sT2),
              salu('s_add_u32', sPV[1], sPV[0], 786432), salu('s_add_u32', sPV[2], sPV[0], 2 * 786432)]
    rest, o = o[mark:], o[:mark]
    for i, x in enumerate(rest):
        if i % 12 == 0 and zero and x.kind != 'nop' and (not o or o[-1].kind != 'nop'): o.append(zero.pop(0))
        o.append(x)
    assert not zero
    return o + probe(2) + late + probe(3)

def code_fetch(lab, n, c, r=100, tid=V(0)):
    o = [raw(f's_getpc_b64 {c.sub(0, 2)}', 'salu', [], [c[0], c[1]]), label(lab), s_mov(c[3], 0x20000), raw(f's_mov_b32 {c[2]}, L_code_end-{lab}', 'salu', [], [c[2]]),
         valu('v_lshlrev_b32', V(r), 7, tid)]
    if n > 8:
        o += [v_cmp('v_cmp_gt_u32', n, tid), salu('s_bfe_u32', sT0, S(2), 0x30003), smul(sT0, sT0, 128 * n), valu('v_add_u32', V(r), sT0, V(r)),
              I('v_cndmask_b32', f'v_cndmask_b32_e32 {V(r)}, {V(r + 1)}, {V(r)}, vcc', 'valu', [VCC, V(r), V(r + 1)], [V(r)])]
        o.insert(4, valu('v_mov_b32', V(r + 1), HUGE))
        n = 1
    for i in range(n): o += ([valu('v_add_u32', V(r), 32768, V(r))] if i else []) + [buf_load('buffer_load_dword', V(r + 1 + i), V(r), c, 0, 0, OPT['cf'])]
    return o
def kernel1():
    qs, qtr, lim = q_loop()
    head = k1_setup() + [s_mov(sLIM, lim)] + ([] if OPT['trk'] else [s_mov(S(6), 0), s_mov(S(7), 1024), s_mov(S(10), 0), s_mov(S(11), scat('n', 1))]) + stamp(0)
    if OPT['stamp']:
        head[2:2] = [raw("s_memrealtime s[78:79]"), raw("s_waitcnt lgkmcnt(0)"), valu('v_mov_b32', V(31), S(78))]
        head += [valu('v_mov_b32', V(29), 0 if OPT['dbg'] else 60), raw("s_nop 0"), raw("buffer_store_dword v31, v29, s[72:75], s76 offen", 'vstore'), raw("s_nop 1")]
    if OPT['cpf'] and OPT['cpp']: head += code_fetch('L_here', OPT['cpf'], S(12, 4) if OPT['stamp'] else S(72, 4))
    elif OPT['cpf']:
        k = max(i for i, x in enumerate(head[:12]) if x.text.startswith('s_load')) + 1
        head[k:k] = code_fetch('L_here', OPT['cpf'], S(56, 4) if OPT['stamp'] else S(72, 4))
    head += [wait(vm=[Xn(0, 0), Xn(0, 1)])] + probe(4) + [rd_X(0, 0, qt) for qt in range(4)]
    head += [valu('v_xor_b32', vXr[0][0], 0xC000, vXr[0][0]), valu('v_xor_b32', vXr[1][0], 0x18000, vXr[1][0])]
    head += [wait(vm=['E1']), s_barrier()] + flat([rd_W(p, 0, 0, p) for p in range(4)]) + [wait(lg=[Wf(0), Wf(1)])] + probe(5) + probes_out(8)
    tail = [label('L_qtail')] + (istamp(32, sCNT, 0) + q_half(7, 0, True) + q_half(7, 1, True) if OPT['pl'] else []) + stamp(1) + q_tail() + stamp(2)
    def loop(skip):
        bodies, lab = [], 'L_atts' if skip else 'L_att'
        U = 4 if OPT['un'] else 1
        pos = [[] for _ in range(U)]
        for hd in range(2):
            for t in range(15 - hd * OPT['npl']):
                j = 32 * hd + 2 * t + 1
                bodies.append([label(lab)] * (t % U == 0) + istamp(48, sKOFF, 14) + period(j, skip=skip) + period(j + 1, skip=skip) + [s_cmp('s_cmp_lg_u32', sKOFF, sEND),
                              s_branch('s_cbranch_scc1', lab) if t % U == U - 1 else s_branch('s_cbranch_scc0', 'L_after')])
                pos[t % U].append(bodies[-1])
                if len(bodies) > 1: del REP[-2:]
        for k in range(U): rolled(f'{lab}{k}', pos[k])
        return bodies, flat(bodies[:U])
    bodies, text = loop(False)
    def pick(bit, lab): return [s_cmp('s_cmp_eq_u32', sW, 3), s_branch('s_cbranch_scc1', lab)] if OPT['sk'] & bit else []
    head += pick(2, 'L_qs'); tail += pick(1, 'L_atts')
    after = [label('L_after'), s_cmp('s_cmp_lg_u32', sITEM, 0), s_branch('s_cbranch_scc1', 'L_last')]
    mid = boundary()
    mid = mid[:1] + stamp(3) + mid[1:] + stamp(18) + pick(1, 'L_atts') + [s_branch('s_branch', 'L_att')]
    last = final()
    last = last[:1] + stamp(19) + last[1:] + [label('L_k1_end'), raw('s_endpgm')]
    al = [raw(f".p2align {OPT['al']}", 'label')] if OPT['al'] else []
    static = head + al + qs + tail + al + text + after + mid + last
    trace = [head + qtr + tail + flat(bodies[:15]) + after + mid + flat(bodies[15:]) + after + last]
    if OPT['sk']:
        if OPT['sk'] & 2:
            assert not OPT['trk'] and OPT['pl']
            qs, qtr, _ = q_loop(True); static += al + qs + [s_branch('s_branch', 'L_qtail')]
        if OPT['sk'] & 1: bodies, text = loop(True); static += al + text + [s_branch('s_branch', 'L_after')]
        trace.append(head + qtr + tail + flat(bodies[:15]) + after + mid + flat(bodies[15:]) + after + last)
    tramps = []
    for i in sites:
        tramps += [label(f"L_tramp{i}"), raw(f"s_call_b64 {sRET}, L_fb", 'branch', [], [sRET]), s_branch('s_branch', f"L_ret{i}")]
    return static, trace, tramps + fallback()

def descriptor(name, vgpr, accum, sgpr=96):
    return f""".amdhsa_kernel {name}
  .amdhsa_next_free_vgpr {vgpr}
  .amdhsa_next_free_sgpr {sgpr}
  .amdhsa_accum_offset {accum}
  .amdhsa_group_segment_fixed_size 0
  .amdhsa_kernarg_size 104
  .amdhsa_user_sgpr_count 2
  .amdhsa_user_sgpr_kernarg_segment_ptr 1
  .amdhsa_system_sgpr_workgroup_id_x 1
.end_amdhsa_kernel
"""

def finish(static, trace, rare, name):
    trs = [expand(t) for t in (trace if isinstance(trace[0], list) else [trace])]
    val = {}
    for tr in trs:
        resolve_waits(tr)
        for x in tr:
            if x.kind == 'wait':
                o = val.get(id(x), x.val)
                val[id(x)] = tuple(b if a is None else a if b is None else min(a, b) for a, b in zip(o, x.val))
    errs = []
    for tr in trs:
        for x in tr:
            if x.kind == 'wait': x.val = val[id(x)]
    for tr in trs: errs += check(tr, name)
    if rare:
        resolve_waits(rare)
        errs += check(rare, name + "_rare")
    seen = set()
    for e in errs:
        k = e.split('] ', 1)[1]
        if k not in seen and len(seen) < 40: print("CHECK:", e, file=sys.stderr)
        seen.add(k)
    if errs: print(f"{len(errs)} check errors in {name}", file=sys.stderr)
    return render(static) + "\n" + (render(rare) if rare else "")

def main():
    ref = open(os.path.join(os.path.dirname(os.path.abspath(__file__)), '..', 'cdna_kernels', NAME + '.s.ref')).read().splitlines()
    hdr = [l for l in ref if l.startswith(';') and '@launch' not in l and 'Override launch' not in l and 'grid=ceil' not in l]
    st, tr, rare = kernel1()
    if OPT['rep']:
        for r in REP: print(len(r), sum(max(0, x - 8) for x in r), r, file=sys.stderr)
    out = hdr[:]
    out.append("; OLAY=17" if OPT["s16"] else "; OLAY=16")
    if OPT['k1']: out.append("; @launch kernel=attn_kernel grid=(256,1,1) block=(256,1,1) lds=163840")
    import gen4, gen7k2
    if OPT['s16']: gen4 = gen7k2
    if OPT['k2']: out.append(f"; @launch kernel=oproj_kernel grid=(240,1,1) block=(256,1,1) lds={gen4.LDS}")
    out += ['.amdgcn_target "amdgcn-amd-amdhsa--gfx950"', '.text', '.globl attn_kernel', '.p2align 8', '.type attn_kernel,@function', 'attn_kernel:']
    out.append(finish(st, tr, rare, 'k1'))
    if OPT['k2']:
        if OPT['dbg']: OPT['stamp'] = 0
        k2 = gen4.kernel2(OPT)
        if OPT['cp2']: k2[2:2] = code_fetch('L_here2', 1, S(44, 4), 24)
        out += ['.globl oproj_kernel', '.p2align 8', '.type oproj_kernel,@function', 'oproj_kernel:']
        out.append(finish(k2, k2, None, 'k2'))
    out += ['L_code_end:'] * (OPT['cpf'] + OPT['cp2'] > 0) + ['.section .rodata,"a"', '.p2align 6', descriptor('attn_kernel', 512, 256, 102)]
    if OPT['k2']:
        out += ['.p2align 6', descriptor('oproj_kernel', 512, 256)]
    open(sys.argv[1], 'w').write("\n".join(out))

if __name__ == '__main__':
    main()
```

```python
from asmlib import *
O_BYTES = 60 * 262144
PACK_OFF = 32 * 1024 * 1024
PACK_BYTES = 4096 * 1152
LDS = 147456

def set_srd(srd, base, off_lo, nbytes):
    return [salu('s_add_u32', srd[0], base[0], off_lo), salu('s_addc_u32', srd[1], base[1], 0),
            s_mov(srd[2], nbytes), s_mov(srd[3], 0x20000)]
def smul(d, a, b): return salu('s_mul_i32', d, a, b, scc=False)

def kernel2(OPT):
    D = OPT['d16']; R = 4
    sOUT, sWS = S(8, 2), S(10, 2)
    srdO, srdW, srdOut = S(16, 4), S(20, 4), S(24, 4)
    sW, sP, sMT, sNG, sT0, sT1, sT2 = S(28), S(29), S(30), S(31), S(32), S(33), S(34)
    sOO, sWO, sLOOP, sLIN, sROT = S(35), S(36), S(37), S(38), S(39)
    WN = OPT['rot2']
    sR1, sR2, sMH, sNH = S(40), S(41), S(42), S(43)
    vTID = V(0)
    vOa = [V(1 + i) for i in range(6)]; vWb = V(7); vEw = [V(8), V(9), V(16)]; vEr = V(10); vOut = V(11); vL = V(17); vWa = V(18)
    l, g, t0, t1 = V(12), V(13), V(14), V(15)
    def acc(nt, m): return A((nt * 6 + m) * 4, 4)
    def Of(slot, m): return V(32 + (slot * 12 + m) * 4, 4)
    def Wf(slot, nt): return V(32 + (slot * 12 + 6 + nt) * 4, 4)
    o = [s_cmp('s_cmp_ge_u32', S(2), OPT.get('k2n', 240)), s_branch('s_cbranch_scc1', 'L_k2_end')]
    o += [s_load('s_load_dwordx2', sWS, S(0, 2), 96), s_load('s_load_dwordx2', sOUT, S(0, 2), 80)]
    o += [salu('s_bfe_u32', sP, S(2), 0x10002), salu('s_lshr_b32', sT0, S(2), 3), smul(sT1, sT0, 43),
          salu('s_lshr_b32', sT1, sT1, 8), smul(sT2, sT1, 6), salu('s_sub_u32', sNG, sT0, sT2), salu('s_add_u32', sROT, sT1, sNG),
          salu('s_and_b32', sT0, S(2), 3), smul(sT0, sT0, 5), salu('s_add_u32', sMT, sT0, sT1)]
    o += [valu('v_lshrrev_b32', t0, 6, vTID), valu('v_and_b32', l, 63, vTID), readfirstlane(sW, t0), valu('v_lshlrev_b32', vL, 4, l)]
    o += [s_nop(2), salu('s_lshr_b32', sMH, sW, 1), salu('s_and_b32', sNH, sW, 1), smul(sT0, sMH, 3 * 131072), smul(sT1, sNH, 3072),
          valu('v_add_u32', vOa[3], sT0, vL), salu('s_sub_u32', sT0, 3 * 131072, sT0), valu('v_add_u32', vWb, sT1, vL), salu('s_sub_u32', sT1, 3072, sT1),
          valu('v_add_u32', vOa[0], sT0, vL), valu('v_add_u32', vWa, sT1, vL)]
    o += [valu('v_add_u32', vOa[i], 131072 * (i % 3), vOa[i - i % 3]) for i in (1, 2, 4, 5)]
    o += [smul(sT0, sP, O_BYTES), smul(sT1, sMT, 6 * 131072), salu('s_add_u32', sT0, sT0, sT1),
          salu('s_lshl_b32', sT1, sW, 15), salu('s_add_u32', sT0, sT0, sT1),
          smul(sT1, sP, PACK_BYTES), smul(sT2, sNG, 786432), salu('s_add_u32', sT1, sT1, sT2), smul(sT2, sW, 196608),
          salu('s_add_u32', sT1, sT1, sT2), salu('s_add_u32', sT1, sT1, PACK_OFF)]
    if WN: o += [smul(sROT, sROT, OPT['rmul']), salu('s_and_b32', sT2, sROT, WN - 1), salu('s_lshl_b32', sOO, sT2, 10), smul(sWO, sT2, 6144), s_mov(sLIN, 0)]
    else: o += [s_mov(sOO, 0), s_mov(sWO, 0)]
    if OPT['dbg']: o += [raw('s_memrealtime s[60:61]'), s_load('s_load_dwordx2', S(68, 2), S(0, 2), 88)]
    o += [wait(lg=0)]
    o += set_srd(srdO, sWS, sT0, 5 * 131072 + 32768) + set_srd(srdW, sWS, sT1, 196608)
    def stamp(idx):
        if not OPT['stamp']: return []
        return [raw("s_memtime s[70:71]"), raw("s_memrealtime s[78:79]"), raw("s_waitcnt lgkmcnt(0)"),
                valu('v_mov_b32', V(20), S(70)), valu('v_mov_b32', V(21), idx * 4), raw("s_nop 0"),
                raw("buffer_store_dword v20, v21, s[72:75], s76 offen", 'vstore'), raw("s_nop 1"), valu('v_mov_b32', V(20), S(78)), raw("s_nop 0"),
                raw("buffer_store_dword v20, v21, s[72:75], s76 offen offset:32", 'vstore'), raw("s_nop 1"),
                raw("s_getreg_b32 s70, hwreg(HW_REG_XCC_ID)"), valu('v_mov_b32', V(20), S(70)), raw("s_nop 0"),
                raw("buffer_store_dword v20, v21, s[72:75], s76 offen offset:64", 'vstore'), raw("s_nop 1")]
    if OPT['stamp']:
        o += set_srd(S(72, 4), sWS, 201 * 1024 * 1024, 1024 * 1024)
        o += [salu('s_lshl_b32', S(76), S(2), 2), salu('s_add_u32', S(76), S(76), sW), salu('s_lshl_b32', S(76), S(76), 8)]
    o += stamp(0)

    def loads(k):
        sl = k % R
        W = [[buf_load('buffer_load_dwordx4', Wf(sl, i), vWa if i < 3 else vWb, srdW, sWO, 1024 * (i % 3), OPT['wof'])] for i in range(6)]
        O = [[buf_load('buffer_load_dwordx4', Of(sl, i), vOa[i], srdO, sOO, 0, OPT['of'])] for i in range(6)]
        r = W[:1] + O + W[1:]
        if WN:
            r[-3] = r[-3] + [salu('s_add_u32', sROT, sROT, 1), salu('s_add_u32', sLIN, sLIN, 1), salu('s_and_b32', sT0, sROT, WN - 1)]
            r[-2] = r[-2] + [salu('s_and_b32', sT1, sLIN, 0 if OPT.get('wrapk') else 256 - WN), salu('s_or_b32', sT0, sT0, sT1)]
            r[-1] = r[-1] + [salu('s_lshl_b32', sOO, sT0, 10), smul(sWO, sT0, 6144)]
        else: r[-1] = r[-1] + [salu('s_add_u32', sWO, sWO, 6144), salu('s_add_u32', sOO, sOO, 1024)]
        return r
    def step(k, first=False, ld=True):
        sl = k % R
        out = []
        L = loads(k + D) if ld else []
        i = 0
        for nt in range(6):
            for mm in range(6):
                m = mm if nt % 2 == 0 or not OPT['snake'] else 5 - mm
                if nt == 0: out.append(wait(vm=[Of(sl, m), Wf(sl, 0)]))
                elif mm == 0: out.append(wait(vm=[Wf(sl, nt)]))
                out.append(mfma(acc(nt, m), Wf(sl, nt), Of(sl, m), 0 if first else acc(nt, m), '16x16x32'))
                if i % 3 == 1 and L: out += L[i // 3]
                i += 1
        return out
    CH = OPT['ch']
    def loads2(k):
        r = []
        for kind, i in [('W', 0)] + [('O', i) for i in range(6)] + [('W', i) for i in range(1, 6)]:
            for h in range(2):
                sl = (k + h) % R
                r.append([buf_load('buffer_load_dwordx4', Wf(sl, i), vWa if i < 3 else vWb, srdW, sWO2 if h else sWO, 1024 * (i % 3), OPT['wof'])] if kind == 'W' else
                         [buf_load('buffer_load_dwordx4', Of(sl, i), vOa[i], srdO, sOO, 1024 * h, OPT['of'])])
        r[-1] = r[-1] + [salu('s_add_u32', sWO, sWO, 12288), salu('s_add_u32', sWO2, sWO2, 12288), salu('s_add_u32', sOO, sOO, 2048)]
        return r
    def pair(k, first=False, ld=True):
        out, L, i = [], loads2(k + 2) if ld else [], 0
        for nt in range(6):
            for mm in range(6):
                m = 5 - mm if CH == 3 and nt % 2 else mm
                for h in range(2):
                    sl = (k + (h ^ (mm & 1) if CH > 1 else h)) % R
                    if nt == 0: out.append(wait(vm=[Of(sl, m), Wf(sl, 0)]))
                    elif mm == 0: out.append(wait(vm=[Wf(sl, nt)]))
                    out.append(mfma(acc(nt, m), Wf(sl, nt), Of(sl, m), 0 if first and not h else acc(nt, m), '16x16x32'))
                    if i % 3 == 1 and L: out += L[i // 3]
                    i += 1
        return out
    if CH:
        sWO2 = S(44)
        o += [s_mov(sWO2, 6144)]
        for gg in loads2(0): o += gg
    for k in range(0 if CH else D):
        for gg in loads(k): o += gg
    o += set_srd(srdOut, sOUT, 0, 1920 * 2304)
    o += [valu('v_lshrrev_b32', g, 4, l), smul(sT0, sW, 27648), valu('v_add_u32', vEr, sT0, vL)]
    for x in range(1, 4): o += [salu('s_xor_b32', sT0, sW, x), smul(sT0, sT0, 27648), salu('s_add_u32', sT0, sT0, (x - 1) * 9216), valu('v_add_u32', vEw[x - 1], sT0, vL)]
    o += [smul(sR1, sMT, 96 * 2304), smul(sR2, sP, 1152), salu('s_add_u32', sR1, sR1, sR2),
          smul(sR2, sNG, 192), salu('s_add_u32', sR1, sR1, sR2), smul(sR2, sMH, 48 * 2304),
          salu('s_add_u32', sR1, sR1, sR2), smul(sR2, sNH, 96), salu('s_add_u32', sR1, sR1, sR2),
          valu('v_and_b32', t0, 15, l), valu('v_mul_u32_u24', t0, 2304, t0),
          valu('v_mul_u32_u24', t1, 24, g), valu('v_add3_u32', vOut, t0, t1, sR1), s_mov(sR1, 16 * 2304), s_mov(sR2, 32 * 2304)]
    for k in range(4): o += (pair(k, first=(k == 0)) if k % 2 == 0 else []) if CH else step(k, first=(k == 0))
    body = [label('L_k2_loop')]
    for k in range(4): body += (pair(k) if k % 2 == 0 else []) if CH else step(k)
    body += [salu('s_sub_u32', sLOOP, sLOOP, 1), s_cmp('s_cmp_lg_u32', sLOOP, 0), s_branch('s_cbranch_scc1', 'L_k2_loop')]
    o += [s_mov(sLOOP, 6), Loop(body, 6)]
    if CH: o += pair(28)
    for k in range(28, 28 if CH else 31): o += step(k, ld=(k + D < 32))
    sl = 31 % R
    seq = [(nt, m) for nt in range(3) for m in range(6)] + [(nt, m) for nt in range(3, 6) for m in range(3)] + [(nt, m) for nt in range(3, 6) for m in range(3, 6)]
    def send(nt, m): return ds_write('ds_write_b128', vEw[2 - 2 * (m // 3) - nt // 3], acc(nt, m), ((m % 3) * 3 + nt % 3) * 1024, 'X')
    LAG = OPT['lag']
    for i, (nt, m) in enumerate(seq):
        if CH:
            if nt == 0 or m == 0: o.append(wait(vm=[Of(sl - 1, m), Wf(sl - 1, nt)]))
            o += [mfma(acc(nt, m), Wf(sl - 1, nt), Of(sl - 1, m), acc(nt, m), '16x16x32')]
        if nt == 0 or m == 0: o.append(wait(vm=[Of(sl, m), Wf(sl, nt)]))
        o += [mfma(acc(nt, m), Wf(sl, nt), Of(sl, m), acc(nt, m), '16x16x32')]
        if LAG <= i < 27 + LAG: o.append(send(*seq[i - LAG]))
    o += [send(*seq[i]) for i in range(36 - LAG, 27)]
    o += stamp(1) + [s_nop(7)]
    def part(s, T): return V(32 + (s * 9 + T) * 4, 4)
    for T in range(9): o += [valu('v_accvgpr_read_b32', part(3, T)[i], acc(3 + T % 3, 3 + T // 3)[i]) for i in range(4)]
    o += [wait(lg=0), s_barrier()]
    for T in range(9):
        for s in range(3): o.append(ds_read('ds_read_b128', part(s, T), vEr, s * 9216 + T * 1024, 'X'))
    for m in range(3):
        pk = V(192 + m * 8, 6)
        for nt in range(3):
            T = m * 3 + nt
            o.append(wait(lg=[part(s, T) for s in range(3)]))
            for i in range(4):
                o += [valu('v_add_f32', part(0, T)[i], part(0, T)[i], part(1, T)[i]), valu('v_add_f32', part(2, T)[i], part(2, T)[i], part(3, T)[i])]
            for i in range(4): o.append(valu('v_add_f32', part(0, T)[i], part(0, T)[i], part(2, T)[i]))
            for i in range(2): o.append(valu('v_cvt_pk_bf16_f32', pk[2 * nt + i], part(0, T)[2 * i], part(0, T)[2 * i + 1]))
        so = [0, sR1, sR2][m]
        o += [buf_store('buffer_store_dwordx4', pk.sub(0, 4), vOut, srdOut, so, 0, OPT['uf']), buf_store('buffer_store_dwordx2', pk.sub(4, 2), vOut, srdOut, so, 16, OPT['uf'])]
    o += stamp(2)
    if OPT['dbg']:
        o += [salu('s_lshl_b32', sT0, S(2), 2), salu('s_add_u32', sT0, sT0, sW), s_cmp('s_cmp_lg_u32', sT0, 4 * (OPT['dbg'] % 240)), s_branch('s_cbranch_scc1', 'L_k2_end')]
        o += set_srd(S(64, 4), sWS, 200 * 1024 * 1024, 64) + [s_mov(S(70), 64), s_mov(S(71), 0x20000), raw('s_waitcnt vmcnt(0)'), raw('s_memrealtime s[62:63]'),
              raw('v_lshlrev_b32 v21, 2, v12'), raw('s_nop 1'), raw('buffer_load_dword v20, v21, s[64:67], 0 offen sc1'), raw('s_waitcnt vmcnt(0) lgkmcnt(0)'),
              raw('v_writelane_b32 v20, s60, 14'), raw('v_writelane_b32 v20, s62, 15'), raw('s_nop 1'), raw('buffer_store_dword v20, v21, s[68:71], 0 offen')]
    o += [label('L_k2_end'), raw('s_endpgm')]
    return o
```

```python
import sys, os, math, struct
from asmlib import *
import asmlib

NAME = "concat_heads__mha_block_cached__gqa_block_cached__near_ridge"
OPT = dict(stamp=0, k2=1, k1=1, ost=' sc1', pst=' sc1', xf='', wf='', pf=' nt', kvf=' nt', rot=0, rep=0,
           depth=5, rot2=0, s16=1, tch=0, tf='', t0=5, tstep=4, pat='ggtNtttwwn', trk=0, tg=62, dbg=0, lag=4, rmul=1, d16=2, snake=0, uf='', of='', wof='', kv0=5, pk0=0, cinit=1, al=6, dc=8, forcefb=0, nodma=0, dg=3, nost=0,
           xr=3, dst=0, pg=47, pe=0, ch=1, cpp=0, cp2=0, cf='', cpf=40, kg='37,37,46,46,47,47,55,55', un=0, sk=3, tlb=0, wb='', ost2=' sc1', pl=1, e0=1, npl=2, st0=14, st1=-8, prd=80, nopk=0, la=4, g2=17, g3=85, gv=50)
RAW = ('pat', 'wb', 'kg')
STR = ('cf', 'ost2', 'uf', 'tf', 'ost', 'pst', 'xf', 'wf', 'pf', 'kvf', 'of', 'wof')
for a in sys.argv[2:]:
    k, v = a.split('=')
    OPT[k] = v if k in RAW else ((' ' + v.replace('+', ' ')) if v != '-' else '') if k in STR else int(v)
asmlib.COST['dma'] = OPT['dc']

def f2u(x): return struct.unpack('<I', struct.pack('<f', x))[0]
O_BYTES = 60 * 262144
OU = 1024 if OPT['s16'] else 2048
PACK_OFF = 32 * 1024 * 1024
PACK_BYTES = 4096 * 1152
HUGE = 0x7f000000
SH = '16x16x32'

def posn(ch): return [8 + i for i, c in enumerate(OPT['pat']) if c == ch] + [8 + i for i, c in enumerate(OPT['pat']) if c == ch.upper()]
def scat(ch, v): return sum(((v >> b) & 1) << p for b, p in enumerate(posn(ch)))
def mp(t): return scat('t', t & 15) | (t >> 4) << 18
LIN = posn('t') == [14, 15, 16, 17]
TMASK = 0xfffc0000 | scat('t', 15)
assert scat('n', 2) == 2048 and scat('n', 1) >= 1024 and posn('t') == sorted(posn('t'))
def next_tile(r): return [salu('s_add_u32', r, r, 16384)] if LIN else [salu('s_sub_u32', r, r, TMASK), salu('s_and_b32', r, r, TMASK)]
def s_scat(d, ch, src, tmp):
    o = []
    for b, p in enumerate(posn(ch)):
        o += [salu('s_bfe_u32', tmp, src, 0x10000 + b), salu('s_lshl_b32', tmp if b else d, tmp, p)] + ([salu('s_or_b32', d, d, tmp)] if b else [])
    return o

pX, pK, pV, pWQ, pWO, pWS = S(4, 2), S(6, 2), S(8, 2), S(10, 2), S(12, 2), S(14, 2)
srdP, srdQ = S(16, 4), S(20, 4)
sPU, sPV = [S(24), S(25), S(26)], [S(27), S(28), S(29)]
sLIM, sXR, sXK, sXV = S(30), S(31), S(12), S(13)
srdK, srdV, srdO = S(32, 4), S(36, 4), S(40, 4)
srdX, srdW = [S(44, 4), S(48, 4)], [S(52, 4), S(56, 4)]
sSCALE = S(60, 2)
sRET = S(62, 2)
sW, sB, sH, sP, sW4K, sT0, sT1, sT2 = S(64), S(65), S(66), S(67), S(68), S(3), S(69), S(80)
sSTAMP = S(70, 2)
sKOFF, sVOFF, sKM, sTG, sEND, sITEM = S(81), S(82), S(83), S(84), S(85), S(86)
sXC, sWC, sXM, sWM, sCNT = S(87), [S(88), S(89)], [S(90), S(91)], S(92), S(93)
sHI, sLO, sPM0, sPAD, sFH = S(94), S(95), S(96), S(97), S(98)
sOA = [S(99), S(100)]
sOB = [S(10), S(11)]
sMASK = S(4, 2)
sF, sF2, sFC = S(6), S(7), S(8)
sR0 = S(101)
vKr = [V(1 + i) for i in range(4)]
vVr = [V(5 + i) for i in range(8)]
vKd = [V(13 + i) for i in range(4)]
vVd = [V(17), V(18)]
vIDX = V(19)
vCI = V(20, 4)
vO = [V(24 + i) for i in range(4)]
vRC = V(28, 4)
vT = V(0)
def Sreg(qt, kt): return V(32 + qt * 8 + (4 * kt if qt % 2 else 4 - 4 * kt), 4)
def Preg(qt): return Sreg(qt, 0)
def Qreg(qt, s): return V(64 + qt * 16 + s * 4, 4)
def Oacc(dt, qt): return V(128 + qt * 32 + dt * 4, 4)
def QACC(h, s, tt, qt): return (V(128 + qt * 32 + s * 8 + tt * 4, 4) if h == 0 else A(qt * 32 + s * 8 + tt * 4, 4))
vXg = [V(32 + i) for i in range(8)]
vWd = [[V(40 + i) for i in range(4)], [V(44 + i) for i in range(4)]]
vXr = [[V(48), V(49)], [V(50), V(51)]]
vWr = [V(52 + i) for i in range(8)]
vTC, sTC, sTD = V(100), S(14), S(15)
def Kf(kt, s): return A(128 + (kt * 4 + s) * 4, 4)
def Vf(dt): return A(160 + dt * 4, 4)
def Wf(p): return A(160 + (p % 8) * 4, 4)
def XF(ks, qt): return A(192 + (ks * 4 + qt) * 4, 4)
def PKf(s, nt): return A(192 + (s * 3 + nt) * 4, 4)
def Lacc(i): return A(224 + 4 * i, 4)
aONE = A(232, 4)
aPd, aPr, aPq = [A(236), A(237), A(238)], A(239), A(240)
GRAY = [0, 1, 3, 2]
def Kn(t): return f"K{GRAY[t % 4]}"
def Vn(t): return f"V{GRAY[t % 4]}"
WN = ['E1', 'E0', 'V3', 'V2']
def Xn(c, part): return f"privX{c % 2}{part}"
XBASE = [[32768, 49152], [16384, 81920]]

def stamp(idx, t0=V(28), t1=V(29)):
    if not OPT['stamp']: return []
    if OPT['dbg']:
        mp = {0: 1, 1: 2, 2: 3, 3: 4, 4: 5, 18: 6, 19: 7, 21: 8, 20: 9}
        if idx not in mp: return []
        r = [raw(f"s_memtime {sSTAMP}", 'salu', [], [sSTAMP]), raw("s_memrealtime s[78:79]"), raw("s_waitcnt lgkmcnt(0)", 'salu'),
             valu('v_mov_b32', t0, S(78)), valu('v_mov_b32', t1, mp[idx] * 4), raw(f"s_nop 0", 'salu'),
             raw(f"buffer_store_dword {t0}, {t1}, s[72:75], 0 offen", 'vstore'), raw("s_nop 1")]
        if idx in (2, 3, 18, 19):
            r += [valu('v_mov_b32', t0, sSTAMP[0]), valu('v_mov_b32', t1, {2: 10, 3: 11, 18: 12, 19: 13}[idx] * 4), raw("s_nop 0"),
                  raw(f"buffer_store_dword {t0}, {t1}, s[72:75], 0 offen", 'vstore'), raw("s_nop 1")]
        return r
    return [raw(f"s_memtime {sSTAMP}", 'salu', [], [sSTAMP]), raw("s_memrealtime s[78:79]"), raw("s_waitcnt lgkmcnt(0)", 'salu'),
            valu('v_mov_b32', t0, sSTAMP[0]), valu('v_mov_b32', t1, idx * 4), raw(f"s_nop 0", 'salu'),
            raw(f"buffer_store_dword {t0}, {t1}, s[72:75], s76 offen", 'vstore'),
            raw("s_nop 1"), valu('v_mov_b32', t0, S(78)), raw("s_nop 0"),
            raw(f"buffer_store_dword {t0}, {t1}, s[72:75], s76 offen offset:32", 'vstore'), raw("s_nop 1")]

def istamp(base, reg, shift):
    if OPT['stamp'] != 2: return []
    t0, t1 = V(30), V(31)
    return [raw(f"s_memtime {sSTAMP}", 'salu', [], [sSTAMP]), raw(f"s_lshr_b32 s77, {reg}, {shift}"), raw("s_and_b32 s77, s77, 15"), raw(f"s_add_u32 s77, s77, {base}"),
            raw("s_lshl_b32 s77, s77, 2"), raw("s_waitcnt lgkmcnt(0)", 'salu'),
            valu('v_mov_b32', t0, sSTAMP[0]), valu('v_mov_b32', t1, S(77)), raw(f"s_nop 0", 'salu'),
            raw(f"buffer_store_dword {t0}, {t1}, s[72:75], s76 offen", 'vstore'), raw("s_nop 1")]

def probe(k):
    if OPT['stamp'] != 3: return []
    return [raw("s_memrealtime s[78:79]"), raw("s_waitcnt lgkmcnt(0)"), valu('v_mov_b32', V(120 + k), S(78))]
def probes_out(n):
    if OPT['stamp'] != 3: return []
    o = []
    for k in range(n): o += [valu('v_mov_b32', V(29), 4 * (48 + k)), raw("s_nop 0"), raw(f"buffer_store_dword v{120 + k}, v29, s[72:75], s76 offen", 'vstore'), raw("s_nop 1")]
    return o

def set_srd(srd, base, off_lo, nbytes):
    return [salu('s_add_u32', srd[0], base[0], off_lo), salu('s_addc_u32', srd[1], base[1], 0),
            s_mov(srd[2], nbytes), s_mov(srd[3], 0x20000)]
def smul(d, a, b): return salu('s_mul_i32', d, a, b, scc=False)
def flat(groups): return [x for g in groups for x in g]
def csel(d, a, b): return I('s_cselect_b32', f"s_cselect_b32 {d}, {a}, {b}", 'salu', [SCC, a, b], [d])
def advance(reg, step, first=0):
    return [salu('s_add_u32', reg, reg, step), s_cmp('s_cmp_eq_u32', reg, 9 * step + first), csel(reg, first, reg)]
def at(groups, gaps):
    assert len(groups) == len(gaps), (len(groups), len(gaps))
    return [F(g, p, p, tail=all(x.kind in ('wait', 'barrier') for x in g)) for g, p in zip(groups, gaps)]

def dma_K(name, m0, soff=sKOFF, adv=True):
    d = [[m0]] + [[buf_dma(vKd[n], srdK, soff, 1024 * n, name, OPT['kvf'])] for n in range(4)]
    if OPT['xr'] or (isinstance(soff, int) and soff): d = [[salu('s_xor_b32', sXK, soff, sXR), m0]] + [[buf_dma(vKd[n], srdK, sXK, 1024 * n, name, OPT['kvf'])] for n in range(4)]
    if OPT['nodma']: d = [[m0]] + [[s_nop(0)] for n in range(4)]
    return tag_m0(d + ([next_tile(sKOFF)] if adv else []))
def dma_V(name, m0, soff=sVOFF, adv=True):
    d = [[m0]] + [[buf_dma(vVd[n % 2], srdV, soff, 1024 * n, name, OPT['kvf'])] for n in range(4)]
    if OPT['xr'] or (isinstance(soff, int) and soff): d = [[salu('s_xor_b32', sXV, soff, sXR), m0]] + [[buf_dma(vVd[n % 2], srdV, sXV, 1024 * n, name, OPT['kvf'])] for n in range(4)]
    if OPT['nodma']: d = [[m0]] + [[s_nop(0)] for n in range(4)]
    return tag_m0(d + ([next_tile(sVOFF)] if adv else []))
def dma_X(part, name):
    return tag_m0([[s_mov(M0, sXM[part])]] + [[buf_dma(vXg[4 * part + n], srdX[part], sXC, 1024 * n, name, OPT['xf'])] for n in range(4)])
def dma_W(i, name, m0):
    return tag_m0([[m0]] + [[buf_dma(vWd[i][n], srdW[i], sWC[i], 1024 * n, name, OPT['wf'])] for n in range(4)])
def PK(s, nt): return A(192 + (s * 3 + nt) * 4, 4) if s * 3 + nt < 8 else A(244, 4)
def pack_in():
    t = [vRC[0], vRC[1], vRC[2]]
    out = [[valu('v_accvgpr_read_b32', t[u], aPd[u])] for u in range(3)]
    for s in range(3):
        out.append([salu('s_add_u32', M0, sPM0, s * 3072) if s < 2 else s_mov(M0, sW4K), s_nop(0)])
        out += [[buf_dma(t[u], srdP, sPU[s], 1024 * u, 'privP' if s < 2 else ('privP', Kn(28)), OPT['pf'])] for u in range(3)]
    return tag_m0(out)
def pack_rd():
    ra, rb = vRC[3], vRC[2]
    o = [[valu('v_accvgpr_read_b32', ra, aPr)], [valu('v_accvgpr_read_b32', rb, aPq), wait(vm=['privP'])]]
    for s in range(3):
        o += [[ds_read('ds_read_b64_tr_b16', PK(s, nt).sub(2 * h, 2), ra if s < 2 else rb, (s % 2) * 3072 + h * 1536 + 8 * nt, 'privP') for h in range(2)] for nt in range(3)]
    return o
def pack_in2(units, t, name='privP'):
    out = [[valu('v_accvgpr_read_b32', t[u], aPd[u])] for u in range(3)]
    for s in units:
        out.append([salu('s_add_u32', M0, sPM0, (s % 2) * 3072), s_nop(0)])
        out += [[buf_dma(t[u], srdP, sPU[s], 1024 * u, name, OPT['pf'])] for u in range(3)]
    return tag_m0(out)
def pack_rd2(units, ra=vRC[3]):
    o = [[valu('v_accvgpr_read_b32', ra, aPr), wait(vm=['privP'])]]
    for s in units:
        o += [[ds_read('ds_read_b64_tr_b16', PK(s, nt).sub(2 * h, 2), ra, (s % 2) * 3072 + h * 1536 + 8 * nt, 'privP') for h in range(2)] for nt in range(3)]
    return o
def pack_st(units): return [[buf_store('buffer_store_dwordx4', PK(s, nt), vT, srdQ, sPV[s], nt * 1024, OPT['pst'])] for s in units for nt in range(3)]

def slot(name): return 16384 * int(name[1]) if OPT['un'] else 0
def rd_K(name, half, kt, s): return ds_read('ds_read_b128', Kf(kt, s), vKr[s], slot(name) + half * 8192 + kt * 4096, name)
def rd_V(name, half, dt): return [ds_read('ds_read_b64_tr_b16', Vf(dt).sub(2 * h, 2), vVr[dt], slot(name) + half * 8192 + h * 4096, name) for h in range(2)]
def rd_W(p, h, head, i):
    return [ds_read('ds_read_b64_tr_b16', Wf(p).sub(2 * j, 2), vWr[i], (1 - h % 2) * 16384 + j * 2048 + head * 256, WN[h % 4]) for j in range(2)]
def rd_X(c, ks, qt): return ds_read('ds_read_b128', XF(ks, qt), vXr[qt // 2][ks], (qt % 2) * 2048, Xn(c, qt // 2))

ST = [32, 40, 49, 57]
NP = 66
DG = [[[54, 55, 57, 59, 61, 62], [54, 55, 57, 59, 61, 62]], [[38, 39, 48, 55, 60, 62], [15, 16, 30, 45, 58, 60]],
      [[38, 39, 40, 59, 60, 62], [15, 16, 17, 44, 45, 60]], [[38, 39, 43, 57, 61, 62], [15, 16, 20, 41, 45, 60]],
      [[38, 39, 43, 75, 79, 80], [33, 34, 38, 59, 63, 64]], [[57, 58, 62, 83, 87, 88], [40, 41, 45, 59, 63, 64]]][OPT['dg']]
PEND = {}
REP = []
def period_parts(j, B=0, first=False, nxt=True, kg=None, dma=True, skip=False):
    t, odd = j // 2, j % 2
    mf = []
    for qt in range(4):
        for kt in range(2):
            for s in range(4):
                c = Sreg(qt, kt) if s else (vCI if (qt == 3 and OPT['cinit']) else 0)
                mf.append(mfma(Sreg(qt, kt), Kf(kt, s), Qreg(qt, s), c, SH) if not (skip and qt == 3) else s_nop(7) if kt + s == 0 else None)
    for qt in range(4):
        if qt % 2: mf.append(smfmac(Lacc(qt // 2), aONE, V(Preg(qt - 1).i, 8), vIDX))
        for dt in range(8): mf.append(mfma(Oacc(dt, qt), Vf(dt), Preg(qt), 0 if first else Oacc(dt, qt), SH) if not (skip and qt == 3) else None)
    fl = []
    prev = None
    for qt in range(3 if skip else 4):
        dl = B + ST[qt] - 3
        pc = None
        for kt in range(2):
            lo = B + 8 * qt + 4 * kt + 3 + 4
            ex = []
            for r in range(4):
                prev = F(valu('v_exp_f32', Sreg(qt, kt)[r], Sreg(qt, kt)[r]), lo, dl - 1, after=[prev]); ex.append(prev)
            fl += ex
            for h in range(2):
                pc = F(valu('v_cvt_pk_bf16_f32', Preg(qt)[2 * kt + h], Sreg(qt, kt)[2 * h], Sreg(qt, kt)[2 * h + 1]), lo, dl,
                       after=[(ex[2 * h + 1], 1), pc]); fl.append(pc)
    vr = at([rd_V(Vn(t), odd, dt) for dt in range(8)], [B + g for g in range(8)]); fl += vr
    fl += at([[wait(lg=[Vf(dt) for dt in range(8)])]], [B + 31])
    if nxt:
        kg = kg or [int(x) for x in OPT['kg'].split(',')]
        fl += at([[rd_K(Kn(t + odd), 1 - odd, i // 4, i % 4)] for i in range(8)], [B + g for g in kg])
        fl += at([[wait(lg=0)]], [B + 65])
        if odd:
            fl += at([[wait(vm=[Kn(t + 1), Vn(t + 1)]), s_barrier()]], [B + 36])
            if dma:
                d = dma_K(Kn(t + OPT['la']), salu('s_add_u32', M0, sW4K, slot(Kn(t + OPT['la']))) if OPT['un'] else s_mov(M0, sKM))
                n1 = sum(g < NP for g in DG[0])
                fl += at(d[:n1], [B + g for g in DG[0][:n1]])
                if n1 < 6: PEND[j + 1] = (tag_m0([[s_mov(M0, sKM)]] + d[n1:]), [DG[0][n1] - NP - 1] + [g - NP for g in DG[0][n1:]])
            if not OPT['un']: fl += [F(valu('v_xor_b32', vVr[dt], sTG, vVr[dt]), B + 31, B + 65) for dt in range(8)]
        else:
            if j in PEND: d, gs = PEND.pop(j); fl += at(d, [B + g for g in gs])
            if dma: fl += at(dma_V(Vn(t + OPT['la'] - 1), salu('s_add_u32', M0, sW4K, 65536 + slot(Vn(t + OPT['la'] - 1))) if OPT['un'] else salu('s_add_u32', M0, sKM, 65536)), [B + g for g in DG[1]])
            x = F([salu('s_xor_b32', sKM, sKM, sTG), salu('s_xor_b32', sTG, sTG, 49152)][::1 if OPT['la'] == 4 else -1], B + DG[1][0] + 1, B + 60)
            if not OPT['un']: fl += [x] + [F(valu('v_xor_b32', vKr[s], sTG, vKr[s]), B + 54, B + 65, after=[x]) for s in range(4)]
    return mf, fl
def period(j, extra=(), **kw):
    mf, fl = period_parts(j, **kw)
    return schedule(mf, fl + list(extra), 8, REP)

def q_half(c, hf, last, skip=False):
    h = 2 * c + hf
    mf = [mfma(QACC(i // 8, (i % 8) // 2, i % 2, qt), Wf(i), XF(hf, qt), QACC(i // 8, (i % 8) // 2, i % 2, qt), SH) if not (skip and qt == 3) else s_nop(0) if i == 15 else None
          for i in range(16) for qt in range(4)]
    fl = []
    for i in range(16):
        p = i + 4
        fl += at([rd_W(p, h, p // 8, p % 8) if p < 16 else rd_W(p, h + 1, 0, p - 16)], [4 * i])
    for i in range(2, 18, 2):
        w = [Wf(i), Wf(i + 1)] + ([XF(1 - hf, qt) for qt in range(4)] if i == 16 else [])
        fl += at([[wait(lg=w)]], [4 * i - 1])
    fl += at([[wait(vm=[WN[(h + 1) % 4]]), s_barrier()]], [46])
    if hf == 0:
        fl += at([[rd_X(c, 1, 0), rd_X(c, 1, 2)], [rd_X(c, 1, 1), rd_X(c, 1, 3)],
                  [valu('v_xor_b32', vXr[0][1], 0xC000, vXr[0][1]), valu('v_xor_b32', vXr[1][1], 0x18000, vXr[1][1])]], [1, 2, 5])
        if last and OPT['pl']: fl += at(dma_K((Xn(c, 0), Kn(1)), salu('s_add_u32', M0, sW4K, 16384), mp(1), False), [17, 18, 22, 26, 30])
        else:
            fl += at(dma_X(0, (Xn(c, 0), Kn(1)) if last else Xn(c, 0)), [17, 18, 22, 26, 30])
            fl += at([[salu('s_xor_b32', sXM[0], sXM[0], 0xC000)]], [33])
        fl += at(dma_W(0, WN[(h + 3) % 4], salu('s_xor_b32', M0, sWM, 0x38000)) + [advance(sWC[0], 524288, 262144)], [49, 50, 53, 57, 61, 62])
    else:
        if last and OPT['pl']: fl += at(dma_V((Xn(c, 1), Vn(1)), salu('s_add_u32', M0, sW4K, 81920), mp(1), False), [1, 2, 6, 10, 14])
        else:
            fl += at(dma_X(1, (Xn(c, 1), Vn(1)) if last else Xn(c, 1)), [1, 2, 6, 10, 14])
            fl += at([[salu('s_xor_b32', sXM[1], sXM[1], 0x18000)], advance(sXC, 128)], [17, 18])
        fl += at([[wait(vm=[Xn(c + 1, 0), Xn(c + 1, 1)])], [rd_X(c + 1, 0, 0), rd_X(c + 1, 0, 2)], [rd_X(c + 1, 0, 1), rd_X(c + 1, 0, 3)],
                  [valu('v_xor_b32', vXr[0][0], 0xC000, vXr[0][0]), valu('v_xor_b32', vXr[1][0], 0x18000, vXr[1][0])]], [37, 38, 41, 42])
        fl += at([[valu('v_xor_b32', vWr[i], 0x38000, vWr[i])] for i in range(8)], [19, 21, 25, 29, 33, 37, 43, 45])
        if last and OPT['pl']:
            if OPT['la'] == 4 and not OPT['gv']: fl += at(dma_V(Vn(2), salu('s_add_u32', M0, sW4K, 114688), mp(2), False), [49, 50, 53, 57, 61])
        else:
            fl += at(dma_W(1, WN[(h + 3) % 4], salu('s_add_u32', M0, sWM, 16384)) + [advance(sWC[1], 524288)], [49, 50, 53, 57, 61, 62])
            fl += at([[salu('s_xor_b32', sWM, sWM, 0x38000)]], [51])
    if not OPT['trk'] and not last:
        sN, sNX, sTA, sTB, vTK = S(6), S(7), S(8), S(9), V(64)
        same = scat('n', 1) == 1024
        sN2, sNX2 = (sN, sNX) if same else (S(10), S(11))
        if hf == 0:
            fl += at([[salu('s_or_b32', sTA, sXR, sN2), salu('s_lshr_b32', sTB, sN, 4)], [s_cmp('s_cmp_lt_u32', sCNT, 3), I('s_cselect_b32', f"s_cselect_b32 {sTA}, {HUGE}, {sTA}", 'salu', [SCC, sTA], [sTA])],
                      [valu('v_xor_b32', vTK, sTB, vKd[0])]], [34, 35, 37])
            fl += at(tag_m0([[salu('s_or_b32', M0, sW4K, sN)], [buf_dma(vTK, srdK, sTA, 0, Kn(0), OPT['kvf'])]]), [OPT['tg'], OPT['tg'] + 1])
        else:
            fl += at([[salu('s_lshr_b32', sTB, sN, 3), salu('s_and_b32', sTB, sTB, 128)], [valu('v_xor_b32', vTK, sTB, vVd[0])],
                      [salu('s_or_b32', sTB, sN, 65536), salu('s_xor_b32', sN, sN, sNX)], [salu('s_xor_b32', sNX, sNX, 3072)]], [34, 35, 55, 59])
            if not same: fl += at([[salu('s_xor_b32', sN2, sN2, sNX2), salu('s_xor_b32', sNX2, sNX2, scat('n', 3))]], [58])
            fl += at(tag_m0([[salu('s_or_b32', M0, sW4K, sTB)], [buf_dma(vTK, srdV, sTA, 0, Vn(0), OPT['kvf'])]]), [OPT['tg'], OPT['tg'] + 1])
    if OPT['tch'] and not last and (hf == 0 or OPT['tch'] == 2):
        if hf == 0: fl += at([[salu('s_xor_b32', sTD, sTC, sXR)], [salu('s_or_b32', sTC, sTC, ~TMASK & 0xffffffff), salu('s_add_u32', sTC, sTC, mp(OPT['tstep']) )], [salu('s_and_b32', sTC, sTC, TMASK)]], [38, 41, 42])
        fl += at([[buf_load('buffer_load_dword', V(101 + hf), vTC, [srdK, srdV][hf], sTD, 0, OPT['tf'])]], [63])
    return schedule(mf, fl, 8, REP)

def q_loop(skip=False):
    NR = 7 if OPT['pl'] else 8
    bodies = []
    lab = 'L_qs' if skip else 'L_q'
    for c in range(NR):
        b = [label(lab)] + istamp(32, sCNT, 0) + q_half(c, 0, c == 7, skip) + q_half(c, 1, c == 7, skip)
        b += [salu('s_add_u32', sCNT, sCNT, 1), s_cmp('s_cmp_lg_u32', sCNT, sLIM), s_branch('s_cbranch_scc1', lab)]
        bodies.append(b)
    rolled(lab, bodies)
    blk = {}
    for part in range(OPT['trk']):
        n0, n1 = part * 4 // OPT['trk'], (part + 1) * 4 // OPT['trk']
        a = dma_K(Kn(0), s_mov(M0, sW4K), 0, False); a = a[0] + [s_nop(0)] + flat(a[1 + n0:1 + n1])
        b = dma_V(Vn(0), salu('s_add_u32', M0, sW4K, 65536), 0, False); b = b[0] + [s_nop(0)] + flat(b[1 + n0:1 + n1])
        blk.setdefault(OPT['kv0'] + part, []).extend(a + b)
    if not OPT['pl']:
        sw = []
        for d, s in ((srdX[0], srdK), (srdX[1], srdV), (srdW[1], srdV)):
            sw += [s_mov(d[k], s[k]) for k in range(3)]
        sw += [salu('s_xor_b32', sXC, sXR, mp(1)), salu('s_xor_b32', sWC[1], sXR, mp(2))]
        for n in range(4):
            sw += [valu('v_mov_b32', vXg[n], vKd[n]), valu('v_mov_b32', vXg[4 + n], vVd[n % 2]), valu('v_mov_b32', vWd[1][n], vVd[n % 2])]
        blk.setdefault(6, []).extend(sw)
    cs = sorted(blk)
    static, trace = bodies[0][:], []
    full = {}
    for k, c in enumerate(cs):
        hd = [label(f'L_q{k}'), s_cmp('s_cmp_lg_u32', sCNT, c + 1), s_branch('s_cbranch_scc1', f'L_q{k + 1}' if k + 1 < len(cs) else 'L_qtail')]
        full[c] = hd + blk[c] + [s_mov(sLIM, (cs + [NR - 1])[k + 1] + 1), s_branch('s_branch', 'L_q')]
        static += full[c]
    for c in range(NR): trace += bodies[c] + full.get(c, [])
    return static, trace, (cs[0] + 1 if cs else NR)

def conv(h, qt, s, tmp=None, pk=True):
    q = Qreg(qt, s)
    g = []
    src = V(QACC(0, s, 0, qt).i, 8) if h == 0 else tmp
    if h == 1: g += [[valu('v_accvgpr_read_b32', tmp[i], A(QACC(1, s, 0, qt).i + i))] for i in range(8)]
    if pk: g += [[pk_mul_s(src.sub(2 * i, 2), sSCALE)] for i in range(4)]
    else: g += [[valu('v_mul_f32', src[i], sSCALE[0], src[i])] for i in range(8)]
    g += [[valu('v_cvt_pk_bf16_f32', q[i], src[2 * i], src[2 * i + 1])] for i in range(4)]
    return g, [[perm16(q[0], q[2])], [perm16(q[1], q[3])]]
def l_init():
    return [[valu('v_accvgpr_write_b32', Lacc(i // 4)[i % 4], sPAD if i == 6 else 0)] for i in range(8)]

def q_tail():
    seq = [(hd, ks, i) for hd in range(2) for ks in range(2) for i in range(8)]
    mf = [mfma(QACC(hd, i // 2, i % 2, qt), Wf(p), XF(ks, qt), QACC(hd, i // 2, i % 2, qt), SH)
          for p, (hd, ks, i) in enumerate(seq) for qt in range(4)]
    B = 128
    m0, fl = period_parts(0, B, first=True)
    mf += m0
    for p in range(4, 32): fl += at([rd_W(p, 16 + seq[p][1], seq[p][0], seq[p][2])], [4 * (p - 4)])
    for p in range(2, 32, 2): fl += at([[wait(lg=[Wf(p), Wf(p + 1)] + ([XF(1, qt) for qt in range(4)] if p == 8 else []))]], [4 * p - 1])
    fl += at([[rd_X(8, 1, 0), rd_X(8, 1, 2)], [rd_X(8, 1, 1), rd_X(8, 1, 3)], [wait(vm=['E0']), s_barrier()]], [1, 2, 14])
    fl += at(dma_K((Kn(2), Xn(8, 1)), salu('s_add_u32', M0, sW4K, 49152)), [OPT['g2'] + g for g in (0, 1, 4, 5, 8, 9)])
    if OPT['la'] == 4:
        fl += at(dma_K((Kn(3), Xn(8, 0)), s_mov(M0, sKM)), [OPT['g3'] + g for g in (0, 1, 4, 5, 8, 9)])
        if OPT['gv']: fl += at(dma_V(Vn(2), salu('s_add_u32', M0, sW4K, 114688), mp(2), False), [OPT['gv'] + g for g in (0, 1, 4, 5, 8)])
    if OPT['pe'] == 3: fl += chain(pack_in2([0, 1], [vRC[0], vRC[1], vRC[2]], ('privP', 'E0', 'E1')), B + OPT['pg'], B + 64, step=1, per=0)
    fl += chain(l_init(), 5, 40, step=1)
    fl += at([[wait(vm=[Kn(0), Vn(0)], lg=0), s_barrier()]], [119])
    fl += at([[rd_K(Kn(0), 0, i // 4, i % 4)] for i in range(8)], [120, 120, 121, 121, 122, 122, 123, 123])
    fl += at([[wait(lg=[Kf(0, s) for s in range(4)])], [wait(lg=[Kf(1, s) for s in range(4)])]], [127, B + 3])
    prev, sw = None, []
    order = [(qt, s) for s in range(3) for qt in range(4)] + [(qt, 3) for qt in range(4)]
    order.sort(key=lambda x: (x[1] if x[1] < 2 else 2, x[0]))
    for qt, s in order:
        g, p16 = conv(0, qt, s, pk=OPT['pk0'])
        lo = 4 * (9 + 2 * s) + qt + 5
        hi = B + 8 * qt - 2
        ch = chain(g + [[s_nop(0)]] + p16[:1] + p16[1:], lo, hi, after=[prev], per=0); prev = ch[-1]; fl += ch
    return schedule(mf, fl, 8, REP)

sites = []
def check_parts():
    t = [V(32 + i) for i in range(8)]
    g = [[valu('v_accvgpr_read_b32', t[i], Lacc(i // 4)[i % 4])] for i in range(8)]
    g += [[valu('v_add_f32', vRC[q], t[2 * q], t[2 * q + 1])] for q in range(4)]
    g += [[valu('v_add_f32', t[0], vRC[0], vRC[1])], [valu('v_add_f32', t[1], vRC[2], vRC[3])], [valu('v_min3_f32', t[2], vRC[0], vRC[1], vRC[2])],
          [valu('v_add_f32', t[0], t[0], t[1])], [valu('v_min_f32', t[2], t[2], vRC[3])], [v_cmp('v_cmp_ngt_f32', sHI, t[0])],
          [I('v_cmp_gt_f32', f"v_cmp_gt_f32_e64 {sMASK}, {sLO}, {t[2]}", 'valu', [sLO, t[2]], [sMASK])]]
    k = len(sites); sites.append(k)
    br = [s_nop(0), I('s_or_b64', f"s_or_b64 {sMASK}, {sMASK}, vcc", 'salu', [sMASK, VCC], [sMASK, SCC]),
          s_branch('s_cbranch_scc0' if OPT['forcefb'] else 's_cbranch_scc1', f"L_tramp{k}"), label(f"L_ret{k}")]
    return g, br
def with_check(mf, fl, B, pad):
    ck, br = check_parts()
    c1 = chain(ck[:4], B + 50, B + 62, per=0)
    return schedule(mf, fl + c1 + chain([[s_nop(pad)]] + ck[4:], B + 64, B + 65, per=0, after=c1[-1:]), 8, REP) + br
def parked(qt):
    return [buf_store('buffer_store_dwordx4', A(32 * qt + 4 * m, 4), vO[qt], srdO, sOB[m // 2], (m % 2) * OU, OPT['ost']) for m in range(4)]
def epilogue(qt, mid=False):
    g = []
    for m in range(4):
        o = V(Oacc(2 * m, qt).i, 8)
        g += [[pk_mul_v(o.sub(2 * i, 2), vRC.sub(qt & 2, 2), qt & 1)] for i in range(4)]
        g += [[valu('v_cvt_pk_bf16_f32', o[i], o[2 * i], o[2 * i + 1])] for i in range(4)]
        if mid and not OPT['dst']: g += [[valu('v_accvgpr_write_b32', A(32 * qt + 4 * m + i), o[i])] for i in range(4)]
        else: g += [[buf_store('buffer_store_dwordx4', o.sub(0, 4), vO[qt], srdO, sOA[m // 2], (m % 2) * OU, OPT['ost2'])]]
    return g
def rcp(): return [valu('v_rcp_f32', vRC[q], vRC[q]) for q in range(4)]

def boundary():
    o = [label('L_mid')] + with_check(*period_parts(31), 0, 1) + stamp(4, V(32), V(33)) + stamp(16, V(32), V(33)) + stamp(17, V(32), V(33))
    if OPT['pe'] in (1, 2, 4): o += flat(pack_in2([0, 1], [V(48), V(49), V(50)]))
    if OPT['pe'] == 3: o += flat(pack_rd2([0, 1], V(48)))
    o += rcp() + flat(l_init())
    o += [s_mov(sITEM, 1), s_mov(sFH, 262144), s_mov(sEND, mp(31 + OPT['la'] - OPT['npl'])), s_mov(sOB[0], sOA[0]), s_mov(sOB[1], sOA[1])]
    tmp = V(56, 8)
    def cv(qt):
        out, pend = [], []
        for s in range(4):
            g, p = conv(1, qt, s, tmp)
            out += g[:2] + pend + g[2:]; pend = p
        return out + [[s_nop(1)]] + pend
    o += flat(cv(0)) + flat(epilogue(0, True)) + [s_nop(1)]
    e, prev = [], None
    for qt in range(1, 4):
        ch = chain(cv(qt), 8 * qt - 8, 8 * qt - 2, after=[prev], per=0); prev = ch[-1]; e += ch
    for qt in range(1, 4):
        ch = chain(epilogue(qt, True), 20, ST[qt] - 3, after=[prev], per=0); prev = ch[-1]; e += ch
    e += chain([[salu('s_add_u32', sOA[0], sOA[0], 4 * OU), salu('s_add_u32', sOA[1], sOA[1], 4 * OU)]], 40, 65, after=[prev], per=0)
    if OPT['pe'] in (1, 2, 3):
        g = pack_in2([2], [vRC[0], vRC[1], vRC[2]])
        e += chain((pack_rd2([0, 1]) if OPT['pe'] < 3 else []) + g[:3] + [[wait(lg=[PK(u, nt) for u in range(2) for nt in range(3)])] + g[3]] + g[4:], 55, 65, after=[prev], per=0)
    if OPT['tlb']:
        t = [buf_load('buffer_load_dword', A(248 + q), vO[q], srdO, sOB[0], 0, ' nt') for q in range(4)]
        t += [buf_load('buffer_load_dword', A(252 + u), vT, srdQ, sPV[u], 0, ' nt') for u in range(3)] + [buf_load('buffer_load_dword', A(255), vT, srdP, sPU[0], 0, ' nt')]
        e += at([[x] for x in t], [56 + i for i in range(8)])
    return o + period(32, extra=e, first=True)
def final():
    mf, fl = [], []
    n = 2 * OPT['npl'] + 1
    for k in range(n):
        m, f = period_parts(64 - n + k, NP * k, nxt=k < n - 1, dma=False)
        mf += m; fl += f
    B = NP * (n - 1)
    if OPT['npl'] < 3: pi = chain(pack_in(), 0, 13, per=0); p0 = pi[-1:]
    else:
        g = pack_in()
        pi = chain(g[:11], 0, 10, per=0); p0 = pi[-1:]
        pi += chain(g[11:], 37, 44, per=0, after=p0)
    pr = chain(pack_rd(), OPT['prd'], OPT['prd'] + 40, step=3, per=0)
    pw = F(wait(lg=[PK(s, nt) for s in range(3) for nt in range(3)]), OPT['prd'] + 40, OPT['prd'] + 60, after=[pr[-1]])
    st = [[x] for qt in range(4) for x in parked(qt) if not OPT['dst']] + pack_st(range(3))
    lo, hi = (OPT['prd'] + 60 if OPT['dst'] else OPT['st0']), NP * n + OPT['st1']
    if OPT['pe']:
        pi, p0 = [], []
        pr = chain(pack_rd2([2]), 0, 6, per=0)
        pw = F(wait(lg=[PK(2, nt) for nt in range(3)]), 31, 31, after=[pr[-1]])
        if OPT['pe'] == 2: st = st[-9:-3] + st[:-9] + st[-3:]
    if OPT['pe'] == 4:
        t = [vRC[0], vRC[1], vRC[2]]
        pi = chain(tag_m0([[valu('v_accvgpr_read_b32', t[u], aPd[u])] for u in range(3)] + [[s_mov(M0, sW4K), s_nop(0)]] +
                          [[buf_dma(t[u], srdP, sPU[2], 1024 * u, ('privQ', Kn(28)), OPT['pf'])] for u in range(3)]), 0, 7, per=0)
        p0 = pi[-1:]
        pr = chain(pack_rd2([0, 1]), 55, 65, per=0, after=p0)
        p2 = chain([[valu('v_accvgpr_read_b32', vRC[2], aPq), wait(vm=['privQ'])]] +
                   [[ds_read('ds_read_b64_tr_b16', PK(2, nt).sub(2 * h, 2), vRC[2], h * 1536 + 8 * nt, 'privQ') for h in range(2)] for nt in range(3)],
                   OPT['prd'], OPT['prd'] + 8, per=0, after=pr[-1:])
        pr += p2
        pw = F(wait(lg=[PK(2, nt) for nt in range(3)]), OPT['prd'] + 9, OPT['prd'] + 20, after=[pr[-1]])
    st = chain(st, lo, hi, step=(hi - lo) / len(st), per=0, slack=6, after=p0)
    st[-3 if OPT['pe'] else -9].after.append((pw, 0))
    for k, g in enumerate(OPT['wb'].split(',') if OPT['wb'] else []):
        st += at([[salu('s_lshr_b32', sT1, S(2), 3), salu('s_lshl_b32', sT2, sW, 8), salu('s_or_b32', sT1, sT1, sT2), s_cmp('s_cmp_lg_u32', sT1, k),
                   s_branch('s_cbranch_scc1', f'L_wb{k}'), raw('buffer_wbl2 sc1'), label(f'L_wb{k}')]], [int(g)])
    if OPT['nopk'] == 1: st = st[:16]
    if OPT['nopk'] == 2: st = []
    if OPT['nopk'] == 3:
        pi, pr = [], []; pw = F(s_nop(0), 5, 6)
        st = chain([[x] for qt in range(4) for x in parked(qt)], lo, hi, step=(hi - lo) / 16, per=0, slack=6)
    o = [label('L_last')] + with_check(mf, fl + pi + pr + [pw] + st, B, 4) + stamp(21, V(40), V(41)) + rcp()
    for qt in range(4): o += flat(epilogue(qt))
    return o + stamp(20, V(32), V(33))

def fallback():
    vk, vv, ad, f, t, t2 = V(32), [V(33), V(34)], V(35), V(36), V(37), V(38)
    m, s8 = [V(40 + q) for q in range(4)], V(48, 8)
    l = [vRC[q] for q in range(4)]
    def FK(kt, s): return A(192 + (kt * 4 + s) * 4, 4)
    def xmax(op, x):
        return [valu('v_mov_b32', t2, x), s_nop(1), perm16(x, t2), valu(op, x, x, t2), valu('v_mov_b32', t2, x), s_nop(1), permswap(x, t2), valu(op, x, x, t2)]
    o = [label('L_fb'), s_nop(15), raw('s_waitcnt vmcnt(0) lgkmcnt(0)')]
    o += [raw(f"v_mbcnt_lo_u32_b32 {t}, -1, 0", 'valu', [], [t]), raw(f"v_mbcnt_hi_u32_b32 {t}, -1, {t}", 'valu', [t], [t]),
          valu('v_and_b32', t2, 15, t), valu('v_lshrrev_b32', t, 4, t), valu('v_lshlrev_b32', f, 1, t), valu('v_xor_b32', f, f, t2),
          valu('v_lshlrev_b32', ad, 8, t), valu('v_lshl_add_u32', vv[0], f, 4, ad), valu('v_xor_b32', vv[1], 128, vv[0]),
          valu('v_lshlrev_b32', t2, 8, t2), valu('v_lshl_add_u32', vk, t, 4, t2)]
    for q in range(4): o += [valu('v_mov_b32', m[q], f2u(-3.0e38)), valu('v_mov_b32', l[q], 0)]
    for i in range(128): o.append(valu('v_mov_b32', V(128 + i), 0))
    o += [s_mov(sF, sFH), s_mov(sFC, 32), label('L_fb_loop'), salu('s_add_u32', sF2, sF, 4096)]
    for kt in range(2):
        o += [buf_load('buffer_load_dwordx4', FK(kt, s), vk, srdK, [sF, sF2][kt], 64 * s) for s in range(4)]
        o += [salu('s_add_u32', M0, sPM0, 4096 * kt), s_nop(0)] + [buf_dma(vv[n % 2], srdV, [sF, sF2][kt], 1024 * n, 'privF') for n in range(4)]
    o += [wait(vm=0)]
    for dt in range(8):
        o += [valu('v_and_b32', ad, 0x1fff, vVr[dt]), valu('v_add_u32', ad, sPM0, ad), s_nop(0)]
        o += [ds_read('ds_read_b64_tr_b16', Vf(dt).sub(2 * h, 2), ad, h * 4096, 'privF') for h in range(2)]
    o += [wait(lg=0)]
    for q in range(4):
        for kt in range(2):
            d = s8.sub(4 * kt, 4)
            o += [mfma(d, FK(kt, s), Qreg(q, s), d if s else 0, SH) for s in range(4)]
        o += [s_nop(9), valu('v_max3_f32', t, s8[0], s8[1], s8[2]), valu('v_max3_f32', t, t, s8[3], s8[4]), valu('v_max3_f32', t, t, s8[5], s8[6]),
              valu('v_max3_f32', t, t, s8[7], m[q])] + xmax('v_max_f32', t)
        o += [valu('v_sub_f32', f, m[q], t), valu('v_exp_f32', f, f), valu('v_mov_b32', m[q], t)]
        for i in range(8): o += [valu('v_sub_f32', s8[i], s8[i], t), valu('v_exp_f32', s8[i], s8[i])]
        o += [valu('v_mul_f32', l[q], l[q], f)]
        o += [valu('v_cvt_pk_bf16_f32', s8[i], s8[2 * i], s8[2 * i + 1]) for i in range(4)]
        for i in range(4):
            o += [valu('v_lshlrev_b32', t, 16, s8[i]), valu('v_and_b32', t2, 0xffff0000, s8[i]), valu('v_add_f32', l[q], l[q], t), valu('v_add_f32', l[q], l[q], t2)]
        o += [valu('v_mul_f32', V(128 + 32 * q + i), V(128 + 32 * q + i), f) for i in range(32)]
        o += [s_nop(1)] + [mfma(Oacc(dt, q), Vf(dt), s8.sub(0, 4), Oacc(dt, q), SH) for dt in range(8)] + [s_nop(7)]
    o += [salu('s_add_u32', sF, sF, 8192), salu('s_sub_u32', sFC, sFC, 1), s_cmp('s_cmp_lg_u32', sFC, 0), s_branch('s_cbranch_scc1', 'L_fb_loop')]
    for q in range(4): o += xmax('v_add_f32', l[q])
    o += [s_nop(9), raw(f"s_setpc_b64 {sRET}", 'branch', [sRET])]
    return o

def k1_setup():
    u = [V(64 + i) for i in range(12)]
    l, g, q, t0, t1, t2, t3, r, c = u[:9]
    o = [s_cmp('s_cmp_ge_u32', S(2), 256), s_branch('s_cbranch_scc1', 'L_k1_end')]
    o += [s_load('s_load_dwordx8', S(4, 8), S(0, 2), 0), s_load('s_load_dwordx2', pWO, S(0, 2), 32),
          s_load('s_load_dwordx8', S(32, 8), S(0, 2), 40), s_load('s_load_dwordx2', S(40, 2), S(0, 2), 72),
          s_load('s_load_dwordx2', pWS, S(0, 2), 96)]
    o += [salu('s_bfe_u32', sP, S(2), 0x10002), salu('s_and_b32', sT0, S(2), 1), salu('s_lshl_b32', sT0, sT0, 2), salu('s_bfe_u32', sT1, S(2), 0x20003),
          salu('s_add_u32', sB, sT0, sT1), salu('s_lshl_b32', sT1, sT1, 1),
          salu('s_lshr_b32', sT2, S(2), 5), salu('s_add_u32', sR0, sT1, sT2), s_cmp('s_cmp_ge_u32', sR0, 9),
          csel(sT1, 9, 0), salu('s_sub_u32', sR0, sR0, sT1),
          salu('s_and_b32', sT0, S(2), 2), salu('s_lshl_b32', sT0, sT0, 2), salu('s_add_u32', sH, sT0, sT2), salu('s_lshl_b32', sH, sH, 1)]
    if not OPT['rot']: o.append(s_mov(sR0, 0))
    o += [salu('s_lshl_b32', sXC, sR0, 7), salu('s_lshl_b32', sWC[1], sR0, 19), salu('s_add_u32', sWC[0], sWC[1], 262144)]
    o += [valu('v_lshrrev_b32', t0, 6, vT), valu('v_and_b32', l, 63, vT), readfirstlane(sW, t0),
          valu('v_lshrrev_b32', g, 4, l), valu('v_and_b32', q, 15, l), valu('v_lshrrev_b32', t1, 3, l), salu('s_lshl_b32', sW4K, sW, 12)]
    o += [smul(sT0, sW, 64 * 1152), valu('v_mul_u32_u24', t0, 1152, t1), valu('v_and_b32', t2, 7, l), valu('v_xor_b32', t2, t2, g),
          valu('v_add_u32', t0, sT0, t0), valu('v_lshl_add_u32', vXg[0], t2, 4, t0), valu('v_xor_b32', t2, 4, t2), valu('v_lshl_add_u32', t3, t2, 4, t0)]
    for n in range(1, 8): o.append(valu('v_add_u32', vXg[n], n * 9216 - 1024 * (n % 4), t3 if n % 2 else vXg[0]))
    o += [valu('v_lshrrev_b32', t1, 5, l), valu('v_and_b32', t2, 31, l), valu('v_xor_b32', t2, t2, t1), salu('s_and_b32', sT0, sW, 1),
          salu('s_lshl_b32', sT0, sT0, 3), valu('v_xor_b32', t2, sT0, t2), salu('s_lshl_b32', sT1, sW, 16), valu('v_lshlrev_b32', t1, 13, t1),
          valu('v_add_u32', t0, sT1, t1), valu('v_lshl_add_u32', vWd[0][0], t2, 4, t0), valu('v_xor_b32', t2, 4, t2), valu('v_lshl_add_u32', t3, t2, 4, t0)]
    for n in range(1, 4): o.append(valu('v_add_u32', vWd[0][n], n * (16384 - 1024), t3 if n % 2 else vWd[0][0]))
    for n in range(4): o.append(valu('v_mov_b32', vWd[1][n], vWd[0][n]))
    o += [salu('s_add_u32', sXM[0], sW4K, XBASE[0][0]), salu('s_add_u32', sXM[1], sW4K, XBASE[0][1]), salu('s_add_u32', sWM, sW4K, 131072)]
    o += [wait(lg=0)] + probe(0) + [s_cmp('s_cmp_eq_u32', sP, 0)]
    for d, s1 in ((pX, S(32, 2)), (pWQ, S(38, 2)), (pK, S(34, 2)), (pV, S(36, 2)), (pWO, S(40, 2))):
        o.append(I('s_cselect_b64', f"s_cselect_b64 {d}, {d}, {s1}", 'salu', [d, s1, SCC], [d]))
    o += [smul(sT0, sB, 276480)] + set_srd(srdX[0], pX, sT0, 276480) + set_srd(srdX[1], pX, sT0, 276480)
    o += [salu('s_lshl_b32', sT0, sH, 8), salu('s_sub_u32', sT1, 576 * 8192, sT0)] + set_srd(srdW[0], pWQ, sT0, sT1) + set_srd(srdW[1], pWQ, sT0, sT1)
    def nop1(x): x = flat(x); x.insert(1, s_nop(0)); return x
    def xload(c):
        return nop1(dma_X(0, Xn(c, 0))) + nop1(dma_X(1, Xn(c, 1))) + advance(sXC, 128) + \
               [salu('s_xor_b32', sXM[0], sXM[0], 0xC000), salu('s_xor_b32', sXM[1], sXM[1], 0x18000)]
    o += xload(0) + nop1(dma_W(1, 'E1', salu('s_add_u32', M0, sWM, 16384))) + advance(sWC[1], 524288)
    if OPT['e0']: o += nop1(dma_W(0, 'E0', s_mov(M0, sWM))) + advance(sWC[0], 524288, 262144)
    o += probe(1)
    late = [] if OPT['e0'] else nop1(dma_W(0, 'E0', s_mov(M0, sWM))) + advance(sWC[0], 524288, 262144)
    late += xload(1) + nop1(dma_W(1, 'V3', salu('s_add_u32', M0, sW4K, 114688))) + advance(sWC[1], 524288)
    z = V(60, 4)
    o += [valu('v_mov_b32', z[i], 0) for i in range(4)] + [s_nop(1)]
    zero = [mfma(r, z, z, 0) for i in range(8) for r in (V(128 + 16 * i, 16), A(16 * i, 16))]
    mark = len(o)
    o += [salu('s_lshl_b32', sT0, sB, 5), salu('s_add_u32', sT0, sT0, sH), salu('s_lshl_b32', sT0, sT0, 18)]
    o += set_srd(srdK, pK, sT0, 524288) + set_srd(srdV, pV, sT0, 524288)
    o += [smul(sT0, sP, O_BYTES)] + set_srd(srdO, pWS, sT0, O_BYTES)
    o += set_srd(srdP, pWO, 0, PACK_BYTES)
    o += [smul(sT0, sP, PACK_BYTES), salu('s_add_u32', sT0, sT0, PACK_OFF)] + set_srd(srdQ, pWS, sT0, PACK_BYTES)
    if OPT['stamp']:
        if OPT['dbg']:
            o += set_srd(S(72, 4), pWS, 200 * 1024 * 1024, 0) + [salu('s_lshl_b32', S(76), S(2), 2), salu('s_add_u32', S(76), S(76), sW),
                  s_cmp('s_cmp_eq_u32', S(76), 4 * OPT['dbg']), raw("s_cselect_b32 s74, 64, 0"), s_mov(S(76), 0)]
        else:
            o += set_srd(S(72, 4), pWS, 200 * 1024 * 1024, 1024 * 1024)
            o += [salu('s_lshl_b32', S(76), S(2), 2), salu('s_add_u32', S(76), S(76), sW), salu('s_lshl_b32', S(76), S(76), 8)]
    if OPT['xr'] == 0: o += [s_mov(sXR, 0)]
    if OPT['xr'] == 1: o += [salu('s_bfe_u32', sXR, S(2), 0x40003), salu('s_lshl_b32', sXR, sXR, 14)]
    if OPT['xr'] == 2: o += [salu('s_and_b32', sXR, S(2), 15), salu('s_lshl_b32', sXR, sXR, 14)]
    if OPT['xr'] == 3: o += [salu('s_lshr_b32', sXR, S(2), 4), salu('s_xor_b32', sXR, sXR, S(2)), salu('s_and_b32', sXR, sXR, 15), salu('s_lshl_b32', sXR, sXR, 14)]
    if not LIN: o += [salu('s_lshr_b32', sT0, sXR, 14)] + s_scat(sXR, 't', sT0, sT1)
    o += [s_mov(sKOFF, mp(2)), s_mov(sVOFF, mp(OPT['la'] - 1)), s_mov(sITEM, 0), s_mov(sFH, 0), s_mov(sCNT, 0), s_mov(sTG, 32768), s_mov(sEND, mp(15 + OPT['la'])),
          salu('s_add_u32', sKM, sW4K, 32768 if OPT['la'] == 4 else 49152), salu('s_lshl_b32', sOA[0], sH, 12 if OPT['s16'] else 13), salu('s_add_u32', sOA[1], sOA[0], 2 * OU)]
    c_scale = math.log2(math.e) / math.sqrt(128.0)
    o += [s_mov(sHI, f2u(2.0 ** 40)), s_mov(sLO, f2u(2.0 ** -40)), s_mov(sSCALE[0], f2u(c_scale)), s_mov(sSCALE[1], f2u(c_scale))]
    o += [s_cmp('s_cmp_eq_u32', sW, 3), csel(sT0, f2u(-1.0e30), 0), csel(sPAD, f2u(1.0), 0)] + [valu('v_mov_b32', vCI[i], sT0) for i in range(4)]
    pg = posn('g')
    if pg[1] == pg[0] + 1: o += [valu('v_lshlrev_b32', t0, pg[0], g)]
    else: o += [valu('v_and_b32', t0, 1, g), valu('v_lshlrev_b32', t0, pg[0], t0), valu('v_lshrrev_b32', t3, 1, g), valu('v_lshl_add_u32', t0, t3, pg[1], t0)]
    if posn('w') == [12, 13]: o += [valu('v_add_u32', t0, sW4K, t0)]
    else: o += s_scat(sT0, 'w', sW, sT1) + [valu('v_add_u32', t0, sT0, t0)]
    for n in range(4):
        o += [valu('v_add_u32', t3, 4 * n, g), valu('v_xor_b32', t3, t3, q), valu('v_lshl_add_u32', vKd[n], t3, 4, t0)]
        if scat('n', n) != 1024 * n: o += [valu('v_add_u32', vKd[n], scat('n', n) - 1024 * n, vKd[n])]
    o += [valu('v_lshlrev_b32', t3, 1, g), valu('v_xor_b32', t3, t3, q), valu('v_lshl_add_u32', vVd[0], t3, 4, t0), valu('v_xor_b32', vVd[1], 128, vVd[0])]
    if scat('n', 1) != 1024: o += [valu('v_add_u32', vVd[1], scat('n', 1) - 1024, vVd[1])]
    if OPT['tch']:
        assert pg == [8, 9]
        pn = posn('n')
        o += [valu('v_and_b32', t3, 1, g), valu('v_lshlrev_b32', t3, pn[0], t3), valu('v_lshl_add_u32', t3, q, 6, t3), valu('v_lshrrev_b32', vTC, 1, g),
              valu('v_lshl_add_u32', vTC, vTC, pn[1], t3), valu('v_add_u32', vTC, sT0, vTC), s_mov(sTC, mp(OPT['t0']))]
    o += [valu('v_lshrrev_b32', t2, 1, q), valu('v_xor_b32', t2, t2, g), valu('v_lshlrev_b32', t1, 7, q), valu('v_add_u32', t1, sW4K, t1),
          valu('v_lshl_add_u32', t1, t2, 4, t1), valu('v_xor_b32', t3, 64, t1)]
    for part in range(2): o += [valu('v_add_u32', vXr[part][0], XBASE[0][part], t1), valu('v_add_u32', vXr[part][1], XBASE[0][part], t3)]
    o += [valu('v_xor_b32', t2, g, q), valu('v_lshlrev_b32', t1, 8, q), valu('v_lshl_add_u32', vKr[0], t2, 4, t1)]
    for s in range(1, 4): o.append(valu('v_xor_b32', vKr[s], 64 * s, vKr[0]))
    o += [valu('v_lshrrev_b32', r, 2, q), valu('v_and_b32', c, 3, l), valu('v_lshl_add_u32', t0, g, 2, r), valu('v_and_b32', t2, 7, t0),
          valu('v_lshlrev_b32', t1, 8, t0), valu('v_lshl_add_u32', t1, t2, 5, t1), valu('v_lshl_add_u32', t1, c, 3, t1), valu('v_add_u32', vVr[0], 65536, t1)]
    for dt in range(1, 8): o.append(valu('v_xor_b32', vVr[dt], 32 * dt, vVr[0]))
    o += [valu('v_lshl_add_u32', t0, g, 3, r), valu('v_lshlrev_b32', t0, 9, t0), valu('v_and_b32', t1, 1, c), valu('v_lshl_add_u32', t0, t1, 3, t0),
          valu('v_and_b32', t1, 2, c), valu('v_and_b32', t2, 1, r), valu('v_or_b32', t1, t1, t2), valu('v_and_b32', t2, 2, r), valu('v_lshl_or_b32', t1, t2, 1, t1),
          valu('v_and_b32', t2, 1, g), valu('v_lshl_or_b32', t1, t2, 3, t1), valu('v_lshl_add_u32', t0, t1, 4, t0), valu('v_add_u32', vWr[0], 131072, t0)]
    for i in range(1, 8): o.append(valu('v_xor_b32', vWr[i], (4 * (i // 2) + i % 2) * 16, vWr[0]))
    o += [valu('v_lshrrev_b32', t0, 5, l), valu('v_bfe_u32', t1, l, 1, 1), v_cmp('v_cmp_eq_u32', t0, t1), valu('v_mov_b32', t2, 0x3f803f80), valu('v_and_b32', t3, 1, l),
          valu('v_cndmask_b32', t2, 0, t2, VCC), valu('v_mul_u32_u24', t3, 0xaaaa, t3), valu('v_add_u32', vIDX, 0x4444, t3)]
    o += [valu('v_accvgpr_write_b32', aONE[i], t2) for i in range(4)]
    if OPT['s16']:
        o += [salu('s_lshl_b32', sPM0, sW, 13), salu('s_add_u32', sPM0, sPM0, 131072), valu('v_lshl_add_u32', t0, g, 2, r), valu('v_mul_u32_u24', t0, 96, t0),
              valu('v_mul_u32_u24', t1, 24, c), valu('v_add3_u32', t0, t0, t1, sPM0),
              valu('v_lshlrev_b32', vT, 4, l), valu('v_accvgpr_write_b32', aPr, t0), valu('v_subrev_u32', t0, sPM0, t0), valu('v_add_u32', t0, sW4K, t0),
              valu('v_accvgpr_write_b32', aPq, t0)]
        for k in range(3):
            o += [valu('v_add_u32', t0, 64 * k, l), valu('v_mul_u32_u24', t1, 171, t0), valu('v_lshrrev_b32', t1, 10, t1),
                  valu('v_mul_u32_u24', t2, 6, t1), valu('v_sub_u32', t2, t0, t2),
                  valu('v_mul_u32_u24', t1, 1152, t1), valu('v_lshl_add_u32', t1, t2, 4, t1), valu('v_subrev_u32', t1, 1024 * k, t1),
                  valu('v_accvgpr_write_b32', aPd[k], t1)]
        o += [smul(sT1, sB, 15), salu('s_lshl2_add_u32', sT1, sW, sT1), salu('s_lshl_b32', sT1, sT1, 17), valu('v_add_u32', vO[0], sT1, vT),
              s_mov(sT2, 3 * 131072), s_cmp('s_cmp_eq_u32', sW, 3), I('s_cselect_b32', f"s_cselect_b32 {sT1}, {HUGE}, {sT2}", 'salu', [SCC, sT2], [sT1]),
              valu('v_add_u32', vO[1], 131072, vO[0]), valu('v_add_u32', vO[2], 2 * 131072, vO[0]), valu('v_add_u32', vO[3], sT1, vO[0])]
        o += [salu('s_and_b32', sT0, S(2), 3), salu('s_lshl_b32', sT0, sT0, 5), salu('s_lshr_b32', sT1, S(2), 3), salu('s_add_u32', sT0, sT0, sT1),
              smul(sPU[0], sT0, 32 * 1152), smul(sT1, sW, 288), salu('s_add_u32', sPU[0], sPU[0], sT1),
              salu('s_add_u32', sPU[1], sPU[0], 96), salu('s_add_u32', sPU[2], sPU[0], 192), smul(sT0, sT0, 6144), smul(sT1, sW, 3)]
        for s in range(3):
            o += [salu('s_lshr_b32', sT2, sT1, 1), smul(sT2, sT2, 786432), salu('s_add_u32', sPV[s], sT0, sT2),
                  salu('s_and_b32', sT2, sT1, 1), smul(sT2, sT2, 3072), salu('s_add_u32', sPV[s], sPV[s], sT2)] + ([salu('s_add_u32', sT1, sT1, 1)] if s < 2 else [])
    else:
        o += [salu('s_lshl_b32', sPM0, sW, 13), salu('s_add_u32', sPM0, sPM0, 131072), valu('v_lshl_add_u32', t0, t0, 2, r), valu('v_mul_u32_u24', t0, 192, t0),
              valu('v_and_b32', t1, 1, g), valu('v_lshl_add_u32', t1, t1, 2, c), valu('v_mul_u32_u24', t1, 24, t1), valu('v_add3_u32', t0, t0, t1, sPM0),
              valu('v_lshlrev_b32', vT, 4, l), valu('v_accvgpr_write_b32', aPr, t0), valu('v_subrev_u32', t0, sPM0, t0), valu('v_add_u32', t0, sW4K, t0),
              valu('v_accvgpr_write_b32', aPq, t0)]
        for k in range(3):
            o += [valu('v_add_u32', t0, 64 * k, l), valu('v_mul_u32_u24', t1, 171, t0), valu('v_lshrrev_b32', t1, 11, t1),
                  valu('v_mul_u32_u24', t2, 12, t1), valu('v_sub_u32', t2, t0, t2), valu('v_and_b32', t3, 8, t1), valu('v_add_u32', t1, t1, t3),
                  valu('v_mul_u32_u24', t1, 1152, t1), valu('v_lshl_add_u32', t1, t2, 4, t1), valu('v_subrev_u32', t1, 1024 * k, t1),
                  valu('v_accvgpr_write_b32', aPd[k], t1)]
        o += [salu('s_lshl_b32', sT0, sW, 6), valu('v_add_u32', t0, sT0, q), smul(sT1, sB, 240)]
        for qt in range(4):
            o += [valu('v_add_u32', t1, 16 * qt, t0),
                  valu('v_add_u32', t2, sT1, t1), valu('v_lshrrev_b32', t3, 5, t2), valu('v_lshlrev_b32', t3, 18, t3),
                  valu('v_and_b32', t2, 31, t2), valu('v_lshl_add_u32', t3, t2, 4, t3), valu('v_lshl_add_u32', t3, g, 9, t3),
                  v_cmp('v_cmp_gt_u32', 240, t1), valu('v_mov_b32', t2, HUGE), s_nop(0),
                  valu('v_cndmask_b32', vO[qt], t2, t3, VCC)]
        o += [salu('s_and_b32', sT0, S(2), 3), salu('s_lshl_b32', sT0, sT0, 5), salu('s_lshr_b32', sT1, S(2), 3), salu('s_add_u32', sT0, sT0, sT1),
              salu('s_lshr_b32', sT2, sW, 1), salu('s_and_b32', sT1, sW, 1), smul(sPU[0], sT0, 32 * 1152), smul(sPU[1], sT2, 8 * 1152), smul(sPU[2], sT1, 576),
              salu('s_add_u32', sPU[0], sPU[0], sPU[1]), salu('s_add_u32', sPU[0], sPU[0], sPU[2]),
              salu('s_add_u32', sPU[1], sPU[0], 192), salu('s_add_u32', sPU[2], sPU[0], 384),
              salu('s_lshl1_add_u32', sT2, sT0, sT2), smul(sT2, sT2, 3072), smul(sPV[0], sT1, 3 * 786432), salu('s_add_u32', sPV[0], sPV[0], sT2),
              salu('s_add_u32', sPV[1], sPV[0], 786432), salu('s_add_u32', sPV[2], sPV[0], 2 * 786432)]
    rest, o = o[mark:], o[:mark]
    for i, x in enumerate(rest):
        if i % 12 == 0 and zero and x.kind != 'nop' and (not o or o[-1].kind != 'nop'): o.append(zero.pop(0))
        o.append(x)
    assert not zero
    return o + probe(2) + late + probe(3)

def code_fetch(lab, n, c, r=100, tid=V(0)):
    o = [raw(f's_getpc_b64 {c.sub(0, 2)}', 'salu', [], [c[0], c[1]]), label(lab), s_mov(c[3], 0x20000), raw(f's_mov_b32 {c[2]}, L_code_end-{lab}', 'salu', [], [c[2]]),
         valu('v_lshlrev_b32', V(r), 7, tid)]
    if n > 8:
        o += [v_cmp('v_cmp_gt_u32', n, tid), salu('s_bfe_u32', sT0, S(2), 0x30003), smul(sT0, sT0, 128 * n), valu('v_add_u32', V(r), sT0, V(r)),
              I('v_cndmask_b32', f'v_cndmask_b32_e32 {V(r)}, {V(r + 1)}, {V(r)}, vcc', 'valu', [VCC, V(r), V(r + 1)], [V(r)])]
        o.insert(4, valu('v_mov_b32', V(r + 1), HUGE))
        n = 1
    for i in range(n): o += ([valu('v_add_u32', V(r), 32768, V(r))] if i else []) + [buf_load('buffer_load_dword', V(r + 1 + i), V(r), c, 0, 0, OPT['cf'])]
    return o
def kernel1():
    qs, qtr, lim = q_loop()
    head = k1_setup() + [s_mov(sLIM, lim)] + ([] if OPT['trk'] else [s_mov(S(6), 0), s_mov(S(7), 1024), s_mov(S(10), 0), s_mov(S(11), scat('n', 1))]) + stamp(0)
    if OPT['stamp']:
        head[2:2] = [raw("s_memrealtime s[78:79]"), raw("s_waitcnt lgkmcnt(0)"), valu('v_mov_b32', V(31), S(78))]
        head += [valu('v_mov_b32', V(29), 0 if OPT['dbg'] else 60), raw("s_nop 0"), raw("buffer_store_dword v31, v29, s[72:75], s76 offen", 'vstore'), raw("s_nop 1")]
    if OPT['cpf'] and OPT['cpp']: head += code_fetch('L_here', OPT['cpf'], S(12, 4) if OPT['stamp'] else S(72, 4))
    elif OPT['cpf']:
        k = max(i for i, x in enumerate(head[:12]) if x.text.startswith('s_load')) + 1
        head[k:k] = code_fetch('L_here', OPT['cpf'], S(56, 4) if OPT['stamp'] else S(72, 4))
    head += [wait(vm=[Xn(0, 0), Xn(0, 1)])] + probe(4) + [rd_X(0, 0, qt) for qt in range(4)]
    head += [valu('v_xor_b32', vXr[0][0], 0xC000, vXr[0][0]), valu('v_xor_b32', vXr[1][0], 0x18000, vXr[1][0])]
    head += [wait(vm=['E1']), s_barrier()] + flat([rd_W(p, 0, 0, p) for p in range(4)]) + [wait(lg=[Wf(0), Wf(1)])] + probe(5) + probes_out(8)
    tail = [label('L_qtail')] + (istamp(32, sCNT, 0) + q_half(7, 0, True) + q_half(7, 1, True) if OPT['pl'] else []) + stamp(1) + q_tail() + stamp(2)
    def loop(skip):
        bodies, lab = [], 'L_atts' if skip else 'L_att'
        U = 4 if OPT['un'] else 1
        pos = [[] for _ in range(U)]
        for hd in range(2):
            for t in range(15 - hd * OPT['npl']):
                j = 32 * hd + 2 * t + 1
                bodies.append([label(lab)] * (t % U == 0) + istamp(48, sKOFF, 14) + period(j, skip=skip) + period(j + 1, skip=skip) + [s_cmp('s_cmp_lg_u32', sKOFF, sEND),
                              s_branch('s_cbranch_scc1', lab) if t % U == U - 1 else s_branch('s_cbranch_scc0', 'L_after')])
                pos[t % U].append(bodies[-1])
                if len(bodies) > 1: del REP[-2:]
        for k in range(U): rolled(f'{lab}{k}', pos[k])
        return bodies, flat(bodies[:U])
    bodies, text = loop(False)
    def pick(bit, lab): return [s_cmp('s_cmp_eq_u32', sW, 3), s_branch('s_cbranch_scc1', lab)] if OPT['sk'] & bit else []
    head += pick(2, 'L_qs'); tail += pick(1, 'L_atts')
    after = [label('L_after'), s_cmp('s_cmp_lg_u32', sITEM, 0), s_branch('s_cbranch_scc1', 'L_last')]
    mid = boundary()
    mid = mid[:1] + stamp(3) + mid[1:] + stamp(18) + pick(1, 'L_atts') + [s_branch('s_branch', 'L_att')]
    last = final()
    last = last[:1] + stamp(19) + last[1:] + [label('L_k1_end'), raw('s_endpgm')]
    al = [raw(f".p2align {OPT['al']}", 'label')] if OPT['al'] else []
    static = head + al + qs + tail + al + text + after + mid + last
    trace = [head + qtr + tail + flat(bodies[:15]) + after + mid + flat(bodies[15:]) + after + last]
    if OPT['sk']:
        if OPT['sk'] & 2:
            assert not OPT['trk'] and OPT['pl']
            qs, qtr, _ = q_loop(True); static += al + qs + [s_branch('s_branch', 'L_qtail')]
        if OPT['sk'] & 1: bodies, text = loop(True); static += al + text + [s_branch('s_branch', 'L_after')]
        trace.append(head + qtr + tail + flat(bodies[:15]) + after + mid + flat(bodies[15:]) + after + last)
    tramps = []
    for i in sites:
        tramps += [label(f"L_tramp{i}"), raw(f"s_call_b64 {sRET}, L_fb", 'branch', [], [sRET])]
        if OPT['pe'] == 3 and i == 0: tramps += [s_nop(1)] + flat(pack_in2([0, 1], [V(48), V(49), V(50)])) + [raw('s_waitcnt vmcnt(0)')]
        tramps += [s_branch('s_branch', f"L_ret{i}")]
    return static, trace, tramps + fallback()

def descriptor(name, vgpr, accum, sgpr=96):
    return f""".amdhsa_kernel {name}
  .amdhsa_next_free_vgpr {vgpr}
  .amdhsa_next_free_sgpr {sgpr}
  .amdhsa_accum_offset {accum}
  .amdhsa_group_segment_fixed_size 0
  .amdhsa_kernarg_size 104
  .amdhsa_user_sgpr_count 2
  .amdhsa_user_sgpr_kernarg_segment_ptr 1
  .amdhsa_system_sgpr_workgroup_id_x 1
.end_amdhsa_kernel
"""

def finish(static, trace, rare, name):
    trs = [expand(t) for t in (trace if isinstance(trace[0], list) else [trace])]
    val = {}
    for tr in trs:
        resolve_waits(tr)
        for x in tr:
            if x.kind == 'wait':
                o = val.get(id(x), x.val)
                val[id(x)] = tuple(b if a is None else a if b is None else min(a, b) for a, b in zip(o, x.val))
    errs = []
    for tr in trs:
        for x in tr:
            if x.kind == 'wait': x.val = val[id(x)]
    for tr in trs: errs += check(tr, name)
    if rare:
        resolve_waits(rare)
        errs += check(rare, name + "_rare")
    seen = set()
    for e in errs:
        k = e.split('] ', 1)[1]
        if k not in seen and len(seen) < 40: print("CHECK:", e, file=sys.stderr)
        seen.add(k)
    if errs: print(f"{len(errs)} check errors in {name}", file=sys.stderr)
    return render(static) + "\n" + (render(rare) if rare else "")

def main():
    ref = open(os.path.join(os.path.dirname(os.path.abspath(__file__)), '..', 'cdna_kernels', NAME + '.s.ref')).read().splitlines()
    hdr = [l for l in ref if l.startswith(';') and '@launch' not in l and 'Override launch' not in l and 'grid=ceil' not in l]
    st, tr, rare = kernel1()
    if OPT['rep']:
        for r in REP: print(len(r), sum(max(0, x - 8) for x in r), r, file=sys.stderr)
    out = hdr[:]
    out.append("; OLAY=17" if OPT["s16"] else "; OLAY=16")
    if OPT['k1']: out.append("; @launch kernel=attn_kernel grid=(256,1,1) block=(256,1,1) lds=163840")
    import gen4, gen7k2
    if OPT['s16']: gen4 = gen7k2
    if OPT['k2']: out.append(f"; @launch kernel=oproj_kernel grid=(240,1,1) block=(256,1,1) lds={gen4.LDS}")
    out += ['.amdgcn_target "amdgcn-amd-amdhsa--gfx950"', '.text', '.globl attn_kernel', '.p2align 8', '.type attn_kernel,@function', 'attn_kernel:']
    out.append(finish(st, tr, rare, 'k1'))
    if OPT['k2']:
        if OPT['dbg']: OPT['stamp'] = 0
        k2 = gen4.kernel2(OPT)
        if OPT['cp2']: k2[2:2] = code_fetch('L_here2', 1, S(44, 4), 24)
        out += ['.globl oproj_kernel', '.p2align 8', '.type oproj_kernel,@function', 'oproj_kernel:']
        out.append(finish(k2, k2, None, 'k2'))
    out += ['L_code_end:'] * (OPT['cpf'] + OPT['cp2'] > 0) + ['.section .rodata,"a"', '.p2align 6', descriptor('attn_kernel', 512, 256, 102)]
    if OPT['k2']:
        out += ['.p2align 6', descriptor('oproj_kernel', 512, 256)]
    open(sys.argv[1], 'w').write("\n".join(out))

if __name__ == '__main__':
    main()
```

```python
import sys, os, math, struct
from asmlib import *
import asmlib

NAME = "concat_heads__mha_block_cached__gqa_block_cached__near_ridge"
OPT = dict(stamp=0, k2=1, k1=1, ost=' sc1', pst=' sc1', xf='', wf='', pf='', kvf=' nt', rot=0, rep=0,
           depth=5, rot2=0, s16=1, tch=0, tf='', t0=5, tstep=4, pat='ggtNtttwwn', trk=0, tg=62, dbg=0, lag=4, rmul=1, d16=2, snake=0, uf='', of='', wof='', kv0=5, pk0=0, cinit=1, al=6, dc=8, forcefb=0, nodma=0, dg=3, nost=0,
           xr=3, dst=0, pil=0, pg=47, pe=1, ch=1, cpp=0, cp2=0, cf='', cpf=40, kg='37,37,46,46,47,47,55,55', un=0, sk=3, tlb=0, wb='', ost2=' sc1', pl=1, e0=1, npl=2, st0=2, st1=-8, prd=80, nopk=0, la=4, g2=17, g3=85, gv=50)
RAW = ('pat', 'wb', 'kg')
STR = ('cf', 'ost2', 'uf', 'tf', 'ost', 'pst', 'xf', 'wf', 'pf', 'kvf', 'of', 'wof')
for a in sys.argv[2:]:
    k, v = a.split('=')
    OPT[k] = v if k in RAW else ((' ' + v.replace('+', ' ')) if v != '-' else '') if k in STR else int(v)
asmlib.COST['dma'] = OPT['dc']

def f2u(x): return struct.unpack('<I', struct.pack('<f', x))[0]
O_BYTES = 60 * 262144
OU = 1024 if OPT['s16'] else 2048
PACK_OFF = 32 * 1024 * 1024
PACK_BYTES = 4096 * 1152
HUGE = 0x7f000000
SH = '16x16x32'

def posn(ch): return [8 + i for i, c in enumerate(OPT['pat']) if c == ch] + [8 + i for i, c in enumerate(OPT['pat']) if c == ch.upper()]
def scat(ch, v): return sum(((v >> b) & 1) << p for b, p in enumerate(posn(ch)))
def mp(t): return scat('t', t & 15) | (t >> 4) << 18
LIN = posn('t') == [14, 15, 16, 17]
TMASK = 0xfffc0000 | scat('t', 15)
assert scat('n', 2) == 2048 and scat('n', 1) >= 1024 and posn('t') == sorted(posn('t'))
def next_tile(r): return [salu('s_add_u32', r, r, 16384)] if LIN else [salu('s_sub_u32', r, r, TMASK), salu('s_and_b32', r, r, TMASK)]
def s_scat(d, ch, src, tmp):
    o = []
    for b, p in enumerate(posn(ch)):
        o += [salu('s_bfe_u32', tmp, src, 0x10000 + b), salu('s_lshl_b32', tmp if b else d, tmp, p)] + ([salu('s_or_b32', d, d, tmp)] if b else [])
    return o

pX, pK, pV, pWQ, pWO, pWS = S(4, 2), S(6, 2), S(8, 2), S(10, 2), S(12, 2), S(14, 2)
srdP, srdQ = S(16, 4), S(20, 4)
sPU, sPV = [S(24), S(25), S(26)], [S(27), S(28), S(29)]
sLIM, sXR, sXK, sXV = S(30), S(31), S(12), S(13)
srdK, srdV, srdO = S(32, 4), S(36, 4), S(40, 4)
srdX, srdW = [S(44, 4), S(48, 4)], [S(52, 4), S(56, 4)]
sSCALE = S(60, 2)
sRET = S(62, 2)
sW, sB, sH, sP, sW4K, sT0, sT1, sT2 = S(64), S(65), S(66), S(67), S(68), S(3), S(69), S(80)
sSTAMP = S(70, 2)
sKOFF, sVOFF, sKM, sTG, sEND, sITEM = S(81), S(82), S(83), S(84), S(85), S(86)
sXC, sWC, sXM, sWM, sCNT = S(87), [S(88), S(89)], [S(90), S(91)], S(92), S(93)
sHI, sLO, sPM0, sPAD, sFH = S(94), S(95), S(96), S(97), S(98)
sOA = [S(99), S(100)]
sOB = [S(10), S(11)]
sMASK = S(4, 2)
sF, sF2, sFC = S(6), S(7), S(8)
sR0 = S(101)
vKr = [V(1 + i) for i in range(4)]
vVr = [V(5 + i) for i in range(8)]
vKd = [V(13 + i) for i in range(4)]
vVd = [V(17), V(18)]
vIDX = V(19)
vCI = V(20, 4)
vO = [V(24 + i) for i in range(4)]
vRC = V(28, 4)
vT = V(0)
def Sreg(qt, kt): return V(32 + qt * 8 + (4 * kt if qt % 2 else 4 - 4 * kt), 4)
def Preg(qt): return Sreg(qt, 0)
def Qreg(qt, s): return V(64 + qt * 16 + s * 4, 4)
def Oacc(dt, qt): return V(128 + qt * 32 + dt * 4, 4)
def QACC(h, s, tt, qt): return (V(128 + qt * 32 + s * 8 + tt * 4, 4) if h == 0 else A(qt * 32 + s * 8 + tt * 4, 4))
vXg = [V(32 + i) for i in range(8)]
vWd = [[V(40 + i) for i in range(4)], [V(44 + i) for i in range(4)]]
vXr = [[V(48), V(49)], [V(50), V(51)]]
vWr = [V(52 + i) for i in range(8)]
vTC, sTC, sTD = V(100), S(14), S(15)
def Kf(kt, s): return A(128 + (kt * 4 + s) * 4, 4)
def Vf(dt): return A(160 + dt * 4, 4)
def Wf(p): return A(160 + (p % 8) * 4, 4)
def XF(ks, qt): return A(192 + (ks * 4 + qt) * 4, 4)
def PKf(s, nt): return A(192 + (s * 3 + nt) * 4, 4)
def Lacc(i): return A(224 + 4 * i, 4)
aONE = A(232, 4)
aPd, aPr, aPq = [A(236), A(237), A(238)], A(239), A(240)
GRAY = [0, 1, 3, 2]
def Kn(t): return f"K{GRAY[t % 4]}"
def Vn(t): return f"V{GRAY[t % 4]}"
WN = ['E1', 'E0', 'V3', 'V2']
def Xn(c, part): return f"privX{c % 2}{part}"
XBASE = [[32768, 49152], [16384, 81920]]

def stamp(idx, t0=V(28), t1=V(29)):
    if not OPT['stamp']: return []
    if OPT['dbg']:
        mp = {0: 1, 1: 2, 2: 3, 3: 4, 4: 5, 18: 6, 19: 7, 21: 8, 20: 9}
        if idx not in mp: return []
        r = [raw(f"s_memtime {sSTAMP}", 'salu', [], [sSTAMP]), raw("s_memrealtime s[78:79]"), raw("s_waitcnt lgkmcnt(0)", 'salu'),
             valu('v_mov_b32', t0, S(78)), valu('v_mov_b32', t1, mp[idx] * 4), raw(f"s_nop 0", 'salu'),
             raw(f"buffer_store_dword {t0}, {t1}, s[72:75], 0 offen", 'vstore'), raw("s_nop 1")]
        if idx in (2, 3, 18, 19):
            r += [valu('v_mov_b32', t0, sSTAMP[0]), valu('v_mov_b32', t1, {2: 10, 3: 11, 18: 12, 19: 13}[idx] * 4), raw("s_nop 0"),
                  raw(f"buffer_store_dword {t0}, {t1}, s[72:75], 0 offen", 'vstore'), raw("s_nop 1")]
        return r
    return [raw(f"s_memtime {sSTAMP}", 'salu', [], [sSTAMP]), raw("s_memrealtime s[78:79]"), raw("s_waitcnt lgkmcnt(0)", 'salu'),
            valu('v_mov_b32', t0, sSTAMP[0]), valu('v_mov_b32', t1, idx * 4), raw(f"s_nop 0", 'salu'),
            raw(f"buffer_store_dword {t0}, {t1}, s[72:75], s76 offen", 'vstore'),
            raw("s_nop 1"), valu('v_mov_b32', t0, S(78)), raw("s_nop 0"),
            raw(f"buffer_store_dword {t0}, {t1}, s[72:75], s76 offen offset:32", 'vstore'), raw("s_nop 1")]

def istamp(base, reg, shift):
    if OPT['stamp'] != 2: return []
    t0, t1 = V(30), V(31)
    return [raw(f"s_memtime {sSTAMP}", 'salu', [], [sSTAMP]), raw(f"s_lshr_b32 s77, {reg}, {shift}"), raw("s_and_b32 s77, s77, 15"), raw(f"s_add_u32 s77, s77, {base}"),
            raw("s_lshl_b32 s77, s77, 2"), raw("s_waitcnt lgkmcnt(0)", 'salu'),
            valu('v_mov_b32', t0, sSTAMP[0]), valu('v_mov_b32', t1, S(77)), raw(f"s_nop 0", 'salu'),
            raw(f"buffer_store_dword {t0}, {t1}, s[72:75], s76 offen", 'vstore'), raw("s_nop 1")]

def probe(k):
    if OPT['stamp'] != 3: return []
    return [raw("s_memrealtime s[78:79]"), raw("s_waitcnt lgkmcnt(0)"), valu('v_mov_b32', V(120 + k), S(78))]
def probes_out(n):
    if OPT['stamp'] != 3: return []
    o = []
    for k in range(n): o += [valu('v_mov_b32', V(29), 4 * (48 + k)), raw("s_nop 0"), raw(f"buffer_store_dword v{120 + k}, v29, s[72:75], s76 offen", 'vstore'), raw("s_nop 1")]
    return o

def set_srd(srd, base, off_lo, nbytes):
    return [salu('s_add_u32', srd[0], base[0], off_lo), salu('s_addc_u32', srd[1], base[1], 0),
            s_mov(srd[2], nbytes), s_mov(srd[3], 0x20000)]
def smul(d, a, b): return salu('s_mul_i32', d, a, b, scc=False)
def flat(groups): return [x for g in groups for x in g]
def csel(d, a, b): return I('s_cselect_b32', f"s_cselect_b32 {d}, {a}, {b}", 'salu', [SCC, a, b], [d])
def advance(reg, step, first=0):
    return [salu('s_add_u32', reg, reg, step), s_cmp('s_cmp_eq_u32', reg, 9 * step + first), csel(reg, first, reg)]
def at(groups, gaps):
    assert len(groups) == len(gaps), (len(groups), len(gaps))
    return [F(g, p, p, tail=all(x.kind in ('wait', 'barrier') for x in g)) for g, p in zip(groups, gaps)]

def dma_K(name, m0, soff=sKOFF, adv=True):
    d = [[m0]] + [[buf_dma(vKd[n], srdK, soff, 1024 * n, name, OPT['kvf'])] for n in range(4)]
    if OPT['xr'] or (isinstance(soff, int) and soff): d = [[salu('s_xor_b32', sXK, soff, sXR), m0]] + [[buf_dma(vKd[n], srdK, sXK, 1024 * n, name, OPT['kvf'])] for n in range(4)]
    if OPT['nodma']: d = [[m0]] + [[s_nop(0)] for n in range(4)]
    return tag_m0(d + ([next_tile(sKOFF)] if adv else []))
def dma_V(name, m0, soff=sVOFF, adv=True):
    d = [[m0]] + [[buf_dma(vVd[n % 2], srdV, soff, 1024 * n, name, OPT['kvf'])] for n in range(4)]
    if OPT['xr'] or (isinstance(soff, int) and soff): d = [[salu('s_xor_b32', sXV, soff, sXR), m0]] + [[buf_dma(vVd[n % 2], srdV, sXV, 1024 * n, name, OPT['kvf'])] for n in range(4)]
    if OPT['nodma']: d = [[m0]] + [[s_nop(0)] for n in range(4)]
    return tag_m0(d + ([next_tile(sVOFF)] if adv else []))
def dma_X(part, name):
    return tag_m0([[s_mov(M0, sXM[part])]] + [[buf_dma(vXg[4 * part + n], srdX[part], sXC, 1024 * n, name, OPT['xf'])] for n in range(4)])
def dma_W(i, name, m0):
    return tag_m0([[m0]] + [[buf_dma(vWd[i][n], srdW[i], sWC[i], 1024 * n, name, OPT['wf'])] for n in range(4)])
def PK(s, nt): return A(192 + (s * 3 + nt) * 4, 4) if s * 3 + nt < 8 else A(244, 4)
def pack_in():
    t = [vRC[0], vRC[1], vRC[2]]
    out = [[valu('v_accvgpr_read_b32', t[u], aPd[u])] for u in range(3)]
    for s in range(3):
        out.append([salu('s_add_u32', M0, sPM0, s * 3072) if s < 2 else s_mov(M0, sW4K), s_nop(0)])
        out += [[buf_dma(t[u], srdP, sPU[s], 1024 * u, 'privP' if s < 2 else ('privP', Kn(28)), OPT['pf'])] for u in range(3)]
    return tag_m0(out)
def pack_rd():
    ra, rb = vRC[3], vRC[2]
    o = [[valu('v_accvgpr_read_b32', ra, aPr)], [valu('v_accvgpr_read_b32', rb, aPq), wait(vm=['privP'])]]
    for s in range(3):
        o += [[ds_read('ds_read_b64_tr_b16', PK(s, nt).sub(2 * h, 2), ra if s < 2 else rb, (s % 2) * 3072 + h * 1536 + 8 * nt, 'privP') for h in range(2)] for nt in range(3)]
    return o
def pack_in2(units, t, name='privP'):
    out = [[valu('v_accvgpr_read_b32', t[u], aPd[u])] for u in range(3)]
    for s in units:
        out.append([salu('s_add_u32', M0, sPM0, (s % 2) * 3072), s_nop(0)])
        out += [[buf_dma(t[u], srdP, sPU[s], 1024 * u, name, OPT['pf'])] for u in range(3)]
    return tag_m0(out)
def pack_rd2(units, ra=vRC[3]):
    o = [[valu('v_accvgpr_read_b32', ra, aPr), wait(vm=['privP'])]]
    for s in units:
        o += [[ds_read('ds_read_b64_tr_b16', PK(s, nt).sub(2 * h, 2), ra, (s % 2) * 3072 + h * 1536 + 8 * nt, 'privP') for h in range(2)] for nt in range(3)]
    return o
def pack_st(units): return [[buf_store('buffer_store_dwordx4', PK(s, nt), vT, srdQ, sPV[s], nt * 1024, OPT['pst'])] for s in units for nt in range(3)]

def slot(name): return 16384 * int(name[1]) if OPT['un'] else 0
def rd_K(name, half, kt, s): return ds_read('ds_read_b128', Kf(kt, s), vKr[s], slot(name) + half * 8192 + kt * 4096, name)
def rd_V(name, half, dt): return [ds_read('ds_read_b64_tr_b16', Vf(dt).sub(2 * h, 2), vVr[dt], slot(name) + half * 8192 + h * 4096, name) for h in range(2)]
def rd_W(p, h, head, i):
    return [ds_read('ds_read_b64_tr_b16', Wf(p).sub(2 * j, 2), vWr[i], (1 - h % 2) * 16384 + j * 2048 + head * 256, WN[h % 4]) for j in range(2)]
def rd_X(c, ks, qt): return ds_read('ds_read_b128', XF(ks, qt), vXr[qt // 2][ks], (qt % 2) * 2048, Xn(c, qt // 2))

ST = [32, 40, 49, 57]
NP = 66
DG = [[[54, 55, 57, 59, 61, 62], [54, 55, 57, 59, 61, 62]], [[38, 39, 48, 55, 60, 62], [15, 16, 30, 45, 58, 60]],
      [[38, 39, 40, 59, 60, 62], [15, 16, 17, 44, 45, 60]], [[38, 39, 43, 57, 61, 62], [15, 16, 20, 41, 45, 60]],
      [[38, 39, 43, 75, 79, 80], [33, 34, 38, 59, 63, 64]], [[57, 58, 62, 83, 87, 88], [40, 41, 45, 59, 63, 64]]][OPT['dg']]
PEND = {}
REP = []
def period_parts(j, B=0, first=False, nxt=True, kg=None, dma=True, skip=False):
    t, odd = j // 2, j % 2
    mf = []
    for qt in range(4):
        for kt in range(2):
            for s in range(4):
                c = Sreg(qt, kt) if s else (vCI if (qt == 3 and OPT['cinit']) else 0)
                mf.append(mfma(Sreg(qt, kt), Kf(kt, s), Qreg(qt, s), c, SH) if not (skip and qt == 3) else s_nop(7) if kt + s == 0 else None)
    for qt in range(4):
        if qt % 2: mf.append(smfmac(Lacc(qt // 2), aONE, V(Preg(qt - 1).i, 8), vIDX))
        for dt in range(8): mf.append(mfma(Oacc(dt, qt), Vf(dt), Preg(qt), 0 if first else Oacc(dt, qt), SH) if not (skip and qt == 3) else None)
    fl = []
    prev = None
    for qt in range(3 if skip else 4):
        dl = B + ST[qt] - 3
        pc = None
        for kt in range(2):
            lo = B + 8 * qt + 4 * kt + 3 + 4
            ex = []
            for r in range(4):
                prev = F(valu('v_exp_f32', Sreg(qt, kt)[r], Sreg(qt, kt)[r]), lo, dl - 1, after=[prev]); ex.append(prev)
            fl += ex
            for h in range(2):
                pc = F(valu('v_cvt_pk_bf16_f32', Preg(qt)[2 * kt + h], Sreg(qt, kt)[2 * h], Sreg(qt, kt)[2 * h + 1]), lo, dl,
                       after=[(ex[2 * h + 1], 1), pc]); fl.append(pc)
    vr = at([rd_V(Vn(t), odd, dt) for dt in range(8)], [B + g for g in range(8)]); fl += vr
    fl += at([[wait(lg=[Vf(dt) for dt in range(8)])]], [B + 31])
    if nxt:
        kg = kg or [int(x) for x in OPT['kg'].split(',')]
        fl += at([[rd_K(Kn(t + odd), 1 - odd, i // 4, i % 4)] for i in range(8)], [B + g for g in kg])
        fl += at([[wait(lg=0)]], [B + 65])
        if odd:
            fl += at([[wait(vm=[Kn(t + 1), Vn(t + 1)]), s_barrier()]], [B + 36])
            if dma:
                d = dma_K(Kn(t + OPT['la']), salu('s_add_u32', M0, sW4K, slot(Kn(t + OPT['la']))) if OPT['un'] else s_mov(M0, sKM))
                n1 = sum(g < NP for g in DG[0])
                fl += at(d[:n1], [B + g for g in DG[0][:n1]])
                if n1 < 6: PEND[j + 1] = (tag_m0([[s_mov(M0, sKM)]] + d[n1:]), [DG[0][n1] - NP - 1] + [g - NP for g in DG[0][n1:]])
            if not OPT['un']: fl += [F(valu('v_xor_b32', vVr[dt], sTG, vVr[dt]), B + 31, B + 65) for dt in range(8)]
        else:
            if j in PEND: d, gs = PEND.pop(j); fl += at(d, [B + g for g in gs])
            if dma: fl += at(dma_V(Vn(t + OPT['la'] - 1), salu('s_add_u32', M0, sW4K, 65536 + slot(Vn(t + OPT['la'] - 1))) if OPT['un'] else salu('s_add_u32', M0, sKM, 65536)), [B + g for g in DG[1]])
            x = F([salu('s_xor_b32', sKM, sKM, sTG), salu('s_xor_b32', sTG, sTG, 49152)][::1 if OPT['la'] == 4 else -1], B + DG[1][0] + 1, B + 60)
            if not OPT['un']: fl += [x] + [F(valu('v_xor_b32', vKr[s], sTG, vKr[s]), B + 54, B + 65, after=[x]) for s in range(4)]
    return mf, fl
def period(j, extra=(), **kw):
    mf, fl = period_parts(j, **kw)
    return schedule(mf, fl + list(extra), 8, REP)

def q_half(c, hf, last, skip=False):
    h = 2 * c + hf
    mf = [mfma(QACC(i // 8, (i % 8) // 2, i % 2, qt), Wf(i), XF(hf, qt), QACC(i // 8, (i % 8) // 2, i % 2, qt), SH) if not (skip and qt == 3) else s_nop(0) if i == 15 else None
          for i in range(16) for qt in range(4)]
    fl = []
    for i in range(16):
        p = i + 4
        fl += at([rd_W(p, h, p // 8, p % 8) if p < 16 else rd_W(p, h + 1, 0, p - 16)], [4 * i])
    for i in range(2, 18, 2):
        w = [Wf(i), Wf(i + 1)] + ([XF(1 - hf, qt) for qt in range(4)] if i == 16 else [])
        fl += at([[wait(lg=w)]], [4 * i - 1])
    fl += at([[wait(vm=[WN[(h + 1) % 4]]), s_barrier()]], [46])
    if hf == 0:
        fl += at([[rd_X(c, 1, 0), rd_X(c, 1, 2)], [rd_X(c, 1, 1), rd_X(c, 1, 3)],
                  [valu('v_xor_b32', vXr[0][1], 0xC000, vXr[0][1]), valu('v_xor_b32', vXr[1][1], 0x18000, vXr[1][1])]], [1, 2, 5])
        if last and OPT['pl']: fl += at(dma_K((Xn(c, 0), Kn(1)), salu('s_add_u32', M0, sW4K, 16384), mp(1), False), [17, 18, 22, 26, 30])
        else:
            fl += at(dma_X(0, (Xn(c, 0), Kn(1)) if last else Xn(c, 0)), [17, 18, 22, 26, 30])
            fl += at([[salu('s_xor_b32', sXM[0], sXM[0], 0xC000)]], [33])
        fl += at(dma_W(0, WN[(h + 3) % 4], salu('s_xor_b32', M0, sWM, 0x38000)) + [advance(sWC[0], 524288, 262144)], [49, 50, 53, 57, 61, 62])
    else:
        if last and OPT['pl']: fl += at(dma_V((Xn(c, 1), Vn(1)), salu('s_add_u32', M0, sW4K, 81920), mp(1), False), [1, 2, 6, 10, 14])
        else:
            fl += at(dma_X(1, (Xn(c, 1), Vn(1)) if last else Xn(c, 1)), [1, 2, 6, 10, 14])
            fl += at([[salu('s_xor_b32', sXM[1], sXM[1], 0x18000)], advance(sXC, 128)], [17, 18])
        fl += at([[wait(vm=[Xn(c + 1, 0), Xn(c + 1, 1)])], [rd_X(c + 1, 0, 0), rd_X(c + 1, 0, 2)], [rd_X(c + 1, 0, 1), rd_X(c + 1, 0, 3)],
                  [valu('v_xor_b32', vXr[0][0], 0xC000, vXr[0][0]), valu('v_xor_b32', vXr[1][0], 0x18000, vXr[1][0])]], [37, 38, 41, 42])
        fl += at([[valu('v_xor_b32', vWr[i], 0x38000, vWr[i])] for i in range(8)], [19, 21, 25, 29, 33, 37, 43, 45])
        if last and OPT['pl']:
            if OPT['la'] == 4 and not OPT['gv']: fl += at(dma_V(Vn(2), salu('s_add_u32', M0, sW4K, 114688), mp(2), False), [49, 50, 53, 57, 61])
        else:
            fl += at(dma_W(1, WN[(h + 3) % 4], salu('s_add_u32', M0, sWM, 16384)) + [advance(sWC[1], 524288)], [49, 50, 53, 57, 61, 62])
            fl += at([[salu('s_xor_b32', sWM, sWM, 0x38000)]], [51])
    if not OPT['trk'] and not last:
        sN, sNX, sTA, sTB, vTK = S(6), S(7), S(8), S(9), V(64)
        same = scat('n', 1) == 1024
        sN2, sNX2 = (sN, sNX) if same else (S(10), S(11))
        if hf == 0:
            fl += at([[salu('s_or_b32', sTA, sXR, sN2), salu('s_lshr_b32', sTB, sN, 4)], [s_cmp('s_cmp_lt_u32', sCNT, 3), I('s_cselect_b32', f"s_cselect_b32 {sTA}, {HUGE}, {sTA}", 'salu', [SCC, sTA], [sTA])],
                      [valu('v_xor_b32', vTK, sTB, vKd[0])]], [34, 35, 37])
            fl += at(tag_m0([[salu('s_or_b32', M0, sW4K, sN)], [buf_dma(vTK, srdK, sTA, 0, Kn(0), OPT['kvf'])]]), [OPT['tg'], OPT['tg'] + 1])
        else:
            fl += at([[salu('s_lshr_b32', sTB, sN, 3), salu('s_and_b32', sTB, sTB, 128)], [valu('v_xor_b32', vTK, sTB, vVd[0])],
                      [salu('s_or_b32', sTB, sN, 65536), salu('s_xor_b32', sN, sN, sNX)], [salu('s_xor_b32', sNX, sNX, 3072)]], [34, 35, 55, 59])
            if not same: fl += at([[salu('s_xor_b32', sN2, sN2, sNX2), salu('s_xor_b32', sNX2, sNX2, scat('n', 3))]], [58])
            fl += at(tag_m0([[salu('s_or_b32', M0, sW4K, sTB)], [buf_dma(vTK, srdV, sTA, 0, Vn(0), OPT['kvf'])]]), [OPT['tg'], OPT['tg'] + 1])
    if OPT['tch'] and not last and (hf == 0 or OPT['tch'] == 2):
        if hf == 0: fl += at([[salu('s_xor_b32', sTD, sTC, sXR)], [salu('s_or_b32', sTC, sTC, ~TMASK & 0xffffffff), salu('s_add_u32', sTC, sTC, mp(OPT['tstep']) )], [salu('s_and_b32', sTC, sTC, TMASK)]], [38, 41, 42])
        fl += at([[buf_load('buffer_load_dword', V(101 + hf), vTC, [srdK, srdV][hf], sTD, 0, OPT['tf'])]], [63])
    return schedule(mf, fl, 8, REP)

def q_loop(skip=False):
    NR = 7 if OPT['pl'] else 8
    bodies = []
    lab = 'L_qs' if skip else 'L_q'
    for c in range(NR):
        b = [label(lab)] + istamp(32, sCNT, 0) + q_half(c, 0, c == 7, skip) + q_half(c, 1, c == 7, skip)
        b += [salu('s_add_u32', sCNT, sCNT, 1), s_cmp('s_cmp_lg_u32', sCNT, sLIM), s_branch('s_cbranch_scc1', lab)]
        bodies.append(b)
    rolled(lab, bodies)
    blk = {}
    for part in range(OPT['trk']):
        n0, n1 = part * 4 // OPT['trk'], (part + 1) * 4 // OPT['trk']
        a = dma_K(Kn(0), s_mov(M0, sW4K), 0, False); a = a[0] + [s_nop(0)] + flat(a[1 + n0:1 + n1])
        b = dma_V(Vn(0), salu('s_add_u32', M0, sW4K, 65536), 0, False); b = b[0] + [s_nop(0)] + flat(b[1 + n0:1 + n1])
        blk.setdefault(OPT['kv0'] + part, []).extend(a + b)
    if not OPT['pl']:
        sw = []
        for d, s in ((srdX[0], srdK), (srdX[1], srdV), (srdW[1], srdV)):
            sw += [s_mov(d[k], s[k]) for k in range(3)]
        sw += [salu('s_xor_b32', sXC, sXR, mp(1)), salu('s_xor_b32', sWC[1], sXR, mp(2))]
        for n in range(4):
            sw += [valu('v_mov_b32', vXg[n], vKd[n]), valu('v_mov_b32', vXg[4 + n], vVd[n % 2]), valu('v_mov_b32', vWd[1][n], vVd[n % 2])]
        blk.setdefault(6, []).extend(sw)
    cs = sorted(blk)
    static, trace = bodies[0][:], []
    full = {}
    for k, c in enumerate(cs):
        hd = [label(f'L_q{k}'), s_cmp('s_cmp_lg_u32', sCNT, c + 1), s_branch('s_cbranch_scc1', f'L_q{k + 1}' if k + 1 < len(cs) else 'L_qtail')]
        full[c] = hd + blk[c] + [s_mov(sLIM, (cs + [NR - 1])[k + 1] + 1), s_branch('s_branch', 'L_q')]
        static += full[c]
    for c in range(NR): trace += bodies[c] + full.get(c, [])
    return static, trace, (cs[0] + 1 if cs else NR)

def conv(h, qt, s, tmp=None, pk=True):
    q = Qreg(qt, s)
    g = []
    src = V(QACC(0, s, 0, qt).i, 8) if h == 0 else tmp
    if h == 1: g += [[valu('v_accvgpr_read_b32', tmp[i], A(QACC(1, s, 0, qt).i + i))] for i in range(8)]
    if pk: g += [[pk_mul_s(src.sub(2 * i, 2), sSCALE)] for i in range(4)]
    else: g += [[valu('v_mul_f32', src[i], sSCALE[0], src[i])] for i in range(8)]
    g += [[valu('v_cvt_pk_bf16_f32', q[i], src[2 * i], src[2 * i + 1])] for i in range(4)]
    return g, [[perm16(q[0], q[2])], [perm16(q[1], q[3])]]
def l_init():
    return [[valu('v_accvgpr_write_b32', Lacc(i // 4)[i % 4], sPAD if i == 6 else 0)] for i in range(8)]

def q_tail():
    seq = [(hd, ks, i) for hd in range(2) for ks in range(2) for i in range(8)]
    mf = [mfma(QACC(hd, i // 2, i % 2, qt), Wf(p), XF(ks, qt), QACC(hd, i // 2, i % 2, qt), SH)
          for p, (hd, ks, i) in enumerate(seq) for qt in range(4)]
    B = 128
    m0, fl = period_parts(0, B, first=True)
    mf += m0
    for p in range(4, 32): fl += at([rd_W(p, 16 + seq[p][1], seq[p][0], seq[p][2])], [4 * (p - 4)])
    for p in range(2, 32, 2): fl += at([[wait(lg=[Wf(p), Wf(p + 1)] + ([XF(1, qt) for qt in range(4)] if p == 8 else []))]], [4 * p - 1])
    fl += at([[rd_X(8, 1, 0), rd_X(8, 1, 2)], [rd_X(8, 1, 1), rd_X(8, 1, 3)], [wait(vm=['E0']), s_barrier()]], [1, 2, 14])
    fl += at(dma_K((Kn(2), Xn(8, 1)), salu('s_add_u32', M0, sW4K, 49152)), [OPT['g2'] + g for g in (0, 1, 4, 5, 8, 9)])
    if OPT['la'] == 4:
        fl += at(dma_K((Kn(3), Xn(8, 0)), s_mov(M0, sKM)), [OPT['g3'] + g for g in (0, 1, 4, 5, 8, 9)])
        if OPT['gv']: fl += at(dma_V(Vn(2), salu('s_add_u32', M0, sW4K, 114688), mp(2), False), [OPT['gv'] + g for g in (0, 1, 4, 5, 8)])
    if OPT['pe'] == 3: fl += chain(pack_in2([0, 1], [vRC[0], vRC[1], vRC[2]], ('privP', 'E0', 'E1')), B + OPT['pg'], B + 64, step=1, per=0)
    fl += chain(l_init(), 5, 40, step=1)
    fl += at([[wait(vm=[Kn(0), Vn(0)], lg=0), s_barrier()]], [119])
    fl += at([[rd_K(Kn(0), 0, i // 4, i % 4)] for i in range(8)], [120, 120, 121, 121, 122, 122, 123, 123])
    fl += at([[wait(lg=[Kf(0, s) for s in range(4)])], [wait(lg=[Kf(1, s) for s in range(4)])]], [127, B + 3])
    prev, sw = None, []
    order = [(qt, s) for s in range(3) for qt in range(4)] + [(qt, 3) for qt in range(4)]
    order.sort(key=lambda x: (x[1] if x[1] < 2 else 2, x[0]))
    for qt, s in order:
        g, p16 = conv(0, qt, s, pk=OPT['pk0'])
        lo = 4 * (9 + 2 * s) + qt + 5
        hi = B + 8 * qt - 2
        ch = chain(g + [[s_nop(0)]] + p16[:1] + p16[1:], lo, hi, after=[prev], per=0); prev = ch[-1]; fl += ch
    return schedule(mf, fl, 8, REP)

sites = []
def check_parts():
    t = [V(32 + i) for i in range(8)]
    g = [[valu('v_accvgpr_read_b32', t[i], Lacc(i // 4)[i % 4])] for i in range(8)]
    g += [[valu('v_add_f32', vRC[q], t[2 * q], t[2 * q + 1])] for q in range(4)]
    g += [[valu('v_add_f32', t[0], vRC[0], vRC[1])], [valu('v_add_f32', t[1], vRC[2], vRC[3])], [valu('v_min3_f32', t[2], vRC[0], vRC[1], vRC[2])],
          [valu('v_add_f32', t[0], t[0], t[1])], [valu('v_min_f32', t[2], t[2], vRC[3])], [v_cmp('v_cmp_ngt_f32', sHI, t[0])],
          [I('v_cmp_gt_f32', f"v_cmp_gt_f32_e64 {sMASK}, {sLO}, {t[2]}", 'valu', [sLO, t[2]], [sMASK])]]
    k = len(sites); sites.append(k)
    br = [s_nop(0), I('s_or_b64', f"s_or_b64 {sMASK}, {sMASK}, vcc", 'salu', [sMASK, VCC], [sMASK, SCC]),
          s_branch('s_cbranch_scc0' if OPT['forcefb'] else 's_cbranch_scc1', f"L_tramp{k}"), label(f"L_ret{k}")]
    return g, br
def with_check(mf, fl, B, pad):
    ck, br = check_parts()
    c1 = chain(ck[:4], B + 50, B + 62, per=0)
    return schedule(mf, fl + c1 + chain([[s_nop(pad)]] + ck[4:], B + 64, B + 65, per=0, after=c1[-1:]), 8, REP) + br
def parked(qt):
    return [buf_store('buffer_store_dwordx4', A(32 * qt + 4 * m, 4), vO[qt], srdO, sOB[m // 2], (m % 2) * OU, OPT['ost']) for m in range(4)]
def epilogue(qt, mid=False):
    g = []
    for m in range(4):
        o = V(Oacc(2 * m, qt).i, 8)
        g += [[pk_mul_v(o.sub(2 * i, 2), vRC.sub(qt & 2, 2), qt & 1)] for i in range(4)]
        g += [[valu('v_cvt_pk_bf16_f32', o[i], o[2 * i], o[2 * i + 1])] for i in range(4)]
        if mid and not OPT['dst']: g += [[valu('v_accvgpr_write_b32', A(32 * qt + 4 * m + i), o[i])] for i in range(4)]
        else: g += [[buf_store('buffer_store_dwordx4', o.sub(0, 4), vO[qt], srdO, sOA[m // 2], (m % 2) * OU, OPT['ost2'])]]
    return g
def rcp(): return [valu('v_rcp_f32', vRC[q], vRC[q]) for q in range(4)]

def boundary():
    o = [label('L_mid')] + with_check(*period_parts(31), 0, 1) + stamp(4, V(32), V(33)) + stamp(16, V(32), V(33)) + stamp(17, V(32), V(33))
    pin = pack_in2([0, 1], [V(48), V(49), V(50)]) if OPT['pe'] in (1, 2, 4) else []
    if not OPT['pil']: o += flat(pin)
    if OPT['pe'] == 3: o += flat(pack_rd2([0, 1], V(48)))
    o += rcp() + flat(l_init())
    o += [s_mov(sITEM, 1), s_mov(sFH, 262144), s_mov(sEND, mp(31 + OPT['la'] - OPT['npl'])), s_mov(sOB[0], sOA[0]), s_mov(sOB[1], sOA[1])]
    tmp = V(56, 8)
    def cv(qt):
        out, pend = [], []
        for s in range(4):
            g, p = conv(1, qt, s, tmp)
            out += g[:2] + pend + g[2:]; pend = p
        return out + [[s_nop(1)]] + pend
    pre = cv(0) + epilogue(0, True)
    if OPT['pil']:
        o += flat(pin[:4])
        for k, g in reversed(list(enumerate(pin[4:]))): pre.insert(k * OPT['pil'], g)
    o += flat(pre) + [s_nop(1)]
    e, prev = [], None
    for qt in range(1, 4):
        ch = chain(cv(qt), 8 * qt - 8, 8 * qt - 2, after=[prev], per=0); prev = ch[-1]; e += ch
    for qt in range(1, 4):
        ch = chain(epilogue(qt, True), 20, ST[qt] - 3, after=[prev], per=0); prev = ch[-1]; e += ch
    e += chain([[salu('s_add_u32', sOA[0], sOA[0], 4 * OU), salu('s_add_u32', sOA[1], sOA[1], 4 * OU)]], 40, 65, after=[prev], per=0)
    if OPT['pe'] in (1, 2, 3):
        g = pack_in2([2], [vRC[0], vRC[1], vRC[2]])
        e += chain((pack_rd2([0, 1]) if OPT['pe'] < 3 else []) + g[:3] + [[wait(lg=[PK(u, nt) for u in range(2) for nt in range(3)])] + g[3]] + g[4:], 55, 65, after=[prev], per=0)
    if OPT['tlb']:
        t = [buf_load('buffer_load_dword', A(248 + q), vO[q], srdO, sOB[0], 0, ' nt') for q in range(4)]
        t += [buf_load('buffer_load_dword', A(252 + u), vT, srdQ, sPV[u], 0, ' nt') for u in range(3)] + [buf_load('buffer_load_dword', A(255), vT, srdP, sPU[0], 0, ' nt')]
        e += at([[x] for x in t], [56 + i for i in range(8)])
    return o + period(32, extra=e, first=True)
def final():
    mf, fl = [], []
    n = 2 * OPT['npl'] + 1
    for k in range(n):
        m, f = period_parts(64 - n + k, NP * k, nxt=k < n - 1, dma=False)
        mf += m; fl += f
    B = NP * (n - 1)
    if OPT['npl'] < 3: pi = chain(pack_in(), 0, 13, per=0); p0 = pi[-1:]
    else:
        g = pack_in()
        pi = chain(g[:11], 0, 10, per=0); p0 = pi[-1:]
        pi += chain(g[11:], 37, 44, per=0, after=p0)
    pr = chain(pack_rd(), OPT['prd'], OPT['prd'] + 40, step=3, per=0)
    pw = F(wait(lg=[PK(s, nt) for s in range(3) for nt in range(3)]), OPT['prd'] + 40, OPT['prd'] + 60, after=[pr[-1]])
    st = [[x] for qt in range(4) for x in parked(qt) if not OPT['dst']] + pack_st(range(3))
    lo, hi = (OPT['prd'] + 60 if OPT['dst'] else OPT['st0']), NP * n + OPT['st1']
    if OPT['pe']:
        pi, p0 = [], []
        pr = chain(pack_rd2([2]), 0, 6, per=0)
        pw = F(wait(lg=[PK(2, nt) for nt in range(3)]), 31, 31, after=[pr[-1]])
        if OPT['pe'] == 2: st = st[-9:-3] + st[:-9] + st[-3:]
    if OPT['pe'] == 4:
        t = [vRC[0], vRC[1], vRC[2]]
        pi = chain(tag_m0([[valu('v_accvgpr_read_b32', t[u], aPd[u])] for u in range(3)] + [[s_mov(M0, sW4K), s_nop(0)]] +
                          [[buf_dma(t[u], srdP, sPU[2], 1024 * u, ('privQ', Kn(28)), OPT['pf'])] for u in range(3)]), 0, 7, per=0)
        p0 = pi[-1:]
        pr = chain(pack_rd2([0, 1]), 55, 65, per=0, after=p0)
        p2 = chain([[valu('v_accvgpr_read_b32', vRC[2], aPq), wait(vm=['privQ'])]] +
                   [[ds_read('ds_read_b64_tr_b16', PK(2, nt).sub(2 * h, 2), vRC[2], h * 1536 + 8 * nt, 'privQ') for h in range(2)] for nt in range(3)],
                   OPT['prd'], OPT['prd'] + 8, per=0, after=pr[-1:])
        pr += p2
        pw = F(wait(lg=[PK(2, nt) for nt in range(3)]), OPT['prd'] + 9, OPT['prd'] + 20, after=[pr[-1]])
    st = chain(st, lo, hi, step=(hi - lo) / len(st), per=0, slack=6, after=p0)
    st[-3 if OPT['pe'] else -9].after.append((pw, 0))
    for k, g in enumerate(OPT['wb'].split(',') if OPT['wb'] else []):
        st += at([[salu('s_lshr_b32', sT1, S(2), 3), salu('s_lshl_b32', sT2, sW, 8), salu('s_or_b32', sT1, sT1, sT2), s_cmp('s_cmp_lg_u32', sT1, k),
                   s_branch('s_cbranch_scc1', f'L_wb{k}'), raw('buffer_wbl2 sc1'), label(f'L_wb{k}')]], [int(g)])
    if OPT['nopk'] == 1: st = st[:16]
    if OPT['nopk'] == 2: st = []
    if OPT['nopk'] == 3:
        pi, pr = [], []; pw = F(s_nop(0), 5, 6)
        st = chain([[x] for qt in range(4) for x in parked(qt)], lo, hi, step=(hi - lo) / 16, per=0, slack=6)
    o = [label('L_last')] + with_check(mf, fl + pi + pr + [pw] + st, B, 4) + stamp(21, V(40), V(41)) + rcp()
    for qt in range(4): o += flat(epilogue(qt))
    return o + stamp(20, V(32), V(33))

def fallback():
    vk, vv, ad, f, t, t2 = V(32), [V(33), V(34)], V(35), V(36), V(37), V(38)
    m, s8 = [V(40 + q) for q in range(4)], V(48, 8)
    l = [vRC[q] for q in range(4)]
    def FK(kt, s): return A(192 + (kt * 4 + s) * 4, 4)
    def xmax(op, x):
        return [valu('v_mov_b32', t2, x), s_nop(1), perm16(x, t2), valu(op, x, x, t2), valu('v_mov_b32', t2, x), s_nop(1), permswap(x, t2), valu(op, x, x, t2)]
    o = [label('L_fb'), s_nop(15), raw('s_waitcnt vmcnt(0) lgkmcnt(0)')]
    o += [raw(f"v_mbcnt_lo_u32_b32 {t}, -1, 0", 'valu', [], [t]), raw(f"v_mbcnt_hi_u32_b32 {t}, -1, {t}", 'valu', [t], [t]),
          valu('v_and_b32', t2, 15, t), valu('v_lshrrev_b32', t, 4, t), valu('v_lshlrev_b32', f, 1, t), valu('v_xor_b32', f, f, t2),
          valu('v_lshlrev_b32', ad, 8, t), valu('v_lshl_add_u32', vv[0], f, 4, ad), valu('v_xor_b32', vv[1], 128, vv[0]),
          valu('v_lshlrev_b32', t2, 8, t2), valu('v_lshl_add_u32', vk, t, 4, t2)]
    for q in range(4): o += [valu('v_mov_b32', m[q], f2u(-3.0e38)), valu('v_mov_b32', l[q], 0)]
    for i in range(128): o.append(valu('v_mov_b32', V(128 + i), 0))
    o += [s_mov(sF, sFH), s_mov(sFC, 32), label('L_fb_loop'), salu('s_add_u32', sF2, sF, 4096)]
    for kt in range(2):
        o += [buf_load('buffer_load_dwordx4', FK(kt, s), vk, srdK, [sF, sF2][kt], 64 * s) for s in range(4)]
        o += [salu('s_add_u32', M0, sPM0, 4096 * kt), s_nop(0)] + [buf_dma(vv[n % 2], srdV, [sF, sF2][kt], 1024 * n, 'privF') for n in range(4)]
    o += [wait(vm=0)]
    for dt in range(8):
        o += [valu('v_and_b32', ad, 0x1fff, vVr[dt]), valu('v_add_u32', ad, sPM0, ad), s_nop(0)]
        o += [ds_read('ds_read_b64_tr_b16', Vf(dt).sub(2 * h, 2), ad, h * 4096, 'privF') for h in range(2)]
    o += [wait(lg=0)]
    for q in range(4):
        for kt in range(2):
            d = s8.sub(4 * kt, 4)
            o += [mfma(d, FK(kt, s), Qreg(q, s), d if s else 0, SH) for s in range(4)]
        o += [s_nop(9), valu('v_max3_f32', t, s8[0], s8[1], s8[2]), valu('v_max3_f32', t, t, s8[3], s8[4]), valu('v_max3_f32', t, t, s8[5], s8[6]),
              valu('v_max3_f32', t, t, s8[7], m[q])] + xmax('v_max_f32', t)
        o += [valu('v_sub_f32', f, m[q], t), valu('v_exp_f32', f, f), valu('v_mov_b32', m[q], t)]
        for i in range(8): o += [valu('v_sub_f32', s8[i], s8[i], t), valu('v_exp_f32', s8[i], s8[i])]
        o += [valu('v_mul_f32', l[q], l[q], f)]
        o += [valu('v_cvt_pk_bf16_f32', s8[i], s8[2 * i], s8[2 * i + 1]) for i in range(4)]
        for i in range(4):
            o += [valu('v_lshlrev_b32', t, 16, s8[i]), valu('v_and_b32', t2, 0xffff0000, s8[i]), valu('v_add_f32', l[q], l[q], t), valu('v_add_f32', l[q], l[q], t2)]
        o += [valu('v_mul_f32', V(128 + 32 * q + i), V(128 + 32 * q + i), f) for i in range(32)]
        o += [s_nop(1)] + [mfma(Oacc(dt, q), Vf(dt), s8.sub(0, 4), Oacc(dt, q), SH) for dt in range(8)] + [s_nop(7)]
    o += [salu('s_add_u32', sF, sF, 8192), salu('s_sub_u32', sFC, sFC, 1), s_cmp('s_cmp_lg_u32', sFC, 0), s_branch('s_cbranch_scc1', 'L_fb_loop')]
    for q in range(4): o += xmax('v_add_f32', l[q])
    o += [s_nop(9), raw(f"s_setpc_b64 {sRET}", 'branch', [sRET])]
    return o

def k1_setup():
    u = [V(64 + i) for i in range(12)]
    l, g, q, t0, t1, t2, t3, r, c = u[:9]
    o = [s_cmp('s_cmp_ge_u32', S(2), 256), s_branch('s_cbranch_scc1', 'L_k1_end')]
    o += [s_load('s_load_dwordx8', S(4, 8), S(0, 2), 0), s_load('s_load_dwordx2', pWO, S(0, 2), 32),
          s_load('s_load_dwordx8', S(32, 8), S(0, 2), 40), s_load('s_load_dwordx2', S(40, 2), S(0, 2), 72),
          s_load('s_load_dwordx2', pWS, S(0, 2), 96)]
    o += [salu('s_bfe_u32', sP, S(2), 0x10002), salu('s_and_b32', sT0, S(2), 1), salu('s_lshl_b32', sT0, sT0, 2), salu('s_bfe_u32', sT1, S(2), 0x20003),
          salu('s_add_u32', sB, sT0, sT1), salu('s_lshl_b32', sT1, sT1, 1),
          salu('s_lshr_b32', sT2, S(2), 5), salu('s_add_u32', sR0, sT1, sT2), s_cmp('s_cmp_ge_u32', sR0, 9),
          csel(sT1, 9, 0), salu('s_sub_u32', sR0, sR0, sT1),
          salu('s_and_b32', sT0, S(2), 2), salu('s_lshl_b32', sT0, sT0, 2), salu('s_add_u32', sH, sT0, sT2), salu('s_lshl_b32', sH, sH, 1)]
    if not OPT['rot']: o.append(s_mov(sR0, 0))
    o += [salu('s_lshl_b32', sXC, sR0, 7), salu('s_lshl_b32', sWC[1], sR0, 19), salu('s_add_u32', sWC[0], sWC[1], 262144)]
    o += [valu('v_lshrrev_b32', t0, 6, vT), valu('v_and_b32', l, 63, vT), readfirstlane(sW, t0),
          valu('v_lshrrev_b32', g, 4, l), valu('v_and_b32', q, 15, l), valu('v_lshrrev_b32', t1, 3, l), salu('s_lshl_b32', sW4K, sW, 12)]
    o += [smul(sT0, sW, 64 * 1152), valu('v_mul_u32_u24', t0, 1152, t1), valu('v_and_b32', t2, 7, l), valu('v_xor_b32', t2, t2, g),
          valu('v_add_u32', t0, sT0, t0), valu('v_lshl_add_u32', vXg[0], t2, 4, t0), valu('v_xor_b32', t2, 4, t2), valu('v_lshl_add_u32', t3, t2, 4, t0)]
    for n in range(1, 8): o.append(valu('v_add_u32', vXg[n], n * 9216 - 1024 * (n % 4), t3 if n % 2 else vXg[0]))
    o += [valu('v_lshrrev_b32', t1, 5, l), valu('v_and_b32', t2, 31, l), valu('v_xor_b32', t2, t2, t1), salu('s_and_b32', sT0, sW, 1),
          salu('s_lshl_b32', sT0, sT0, 3), valu('v_xor_b32', t2, sT0, t2), salu('s_lshl_b32', sT1, sW, 16), valu('v_lshlrev_b32', t1, 13, t1),
          valu('v_add_u32', t0, sT1, t1), valu('v_lshl_add_u32', vWd[0][0], t2, 4, t0), valu('v_xor_b32', t2, 4, t2), valu('v_lshl_add_u32', t3, t2, 4, t0)]
    for n in range(1, 4): o.append(valu('v_add_u32', vWd[0][n], n * (16384 - 1024), t3 if n % 2 else vWd[0][0]))
    for n in range(4): o.append(valu('v_mov_b32', vWd[1][n], vWd[0][n]))
    o += [salu('s_add_u32', sXM[0], sW4K, XBASE[0][0]), salu('s_add_u32', sXM[1], sW4K, XBASE[0][1]), salu('s_add_u32', sWM, sW4K, 131072)]
    o += [wait(lg=0)] + probe(0) + [s_cmp('s_cmp_eq_u32', sP, 0)]
    for d, s1 in ((pX, S(32, 2)), (pWQ, S(38, 2)), (pK, S(34, 2)), (pV, S(36, 2)), (pWO, S(40, 2))):
        o.append(I('s_cselect_b64', f"s_cselect_b64 {d}, {d}, {s1}", 'salu', [d, s1, SCC], [d]))
    o += [smul(sT0, sB, 276480)] + set_srd(srdX[0], pX, sT0, 276480) + set_srd(srdX[1], pX, sT0, 276480)
    o += [salu('s_lshl_b32', sT0, sH, 8), salu('s_sub_u32', sT1, 576 * 8192, sT0)] + set_srd(srdW[0], pWQ, sT0, sT1) + set_srd(srdW[1], pWQ, sT0, sT1)
    def nop1(x): x = flat(x); x.insert(1, s_nop(0)); return x
    def xload(c):
        return nop1(dma_X(0, Xn(c, 0))) + nop1(dma_X(1, Xn(c, 1))) + advance(sXC, 128) + \
               [salu('s_xor_b32', sXM[0], sXM[0], 0xC000), salu('s_xor_b32', sXM[1], sXM[1], 0x18000)]
    o += xload(0) + nop1(dma_W(1, 'E1', salu('s_add_u32', M0, sWM, 16384))) + advance(sWC[1], 524288)
    if OPT['e0']: o += nop1(dma_W(0, 'E0', s_mov(M0, sWM))) + advance(sWC[0], 524288, 262144)
    o += probe(1)
    late = [] if OPT['e0'] else nop1(dma_W(0, 'E0', s_mov(M0, sWM))) + advance(sWC[0], 524288, 262144)
    late += xload(1) + nop1(dma_W(1, 'V3', salu('s_add_u32', M0, sW4K, 114688))) + advance(sWC[1], 524288)
    z = V(60, 4)
    o += [valu('v_mov_b32', z[i], 0) for i in range(4)] + [s_nop(1)]
    zero = [mfma(r, z, z, 0) for i in range(8) for r in (V(128 + 16 * i, 16), A(16 * i, 16))]
    mark = len(o)
    o += [salu('s_lshl_b32', sT0, sB, 5), salu('s_add_u32', sT0, sT0, sH), salu('s_lshl_b32', sT0, sT0, 18)]
    o += set_srd(srdK, pK, sT0, 524288) + set_srd(srdV, pV, sT0, 524288)
    o += [smul(sT0, sP, O_BYTES)] + set_srd(srdO, pWS, sT0, O_BYTES)
    o += set_srd(srdP, pWO, 0, PACK_BYTES)
    o += [smul(sT0, sP, PACK_BYTES), salu('s_add_u32', sT0, sT0, PACK_OFF)] + set_srd(srdQ, pWS, sT0, PACK_BYTES)
    if OPT['stamp']:
        if OPT['dbg']:
            o += set_srd(S(72, 4), pWS, 200 * 1024 * 1024, 0) + [salu('s_lshl_b32', S(76), S(2), 2), salu('s_add_u32', S(76), S(76), sW),
                  s_cmp('s_cmp_eq_u32', S(76), 4 * OPT['dbg']), raw("s_cselect_b32 s74, 64, 0"), s_mov(S(76), 0)]
        else:
            o += set_srd(S(72, 4), pWS, 200 * 1024 * 1024, 1024 * 1024)
            o += [salu('s_lshl_b32', S(76), S(2), 2), salu('s_add_u32', S(76), S(76), sW), salu('s_lshl_b32', S(76), S(76), 8)]
    if OPT['xr'] == 0: o += [s_mov(sXR, 0)]
    if OPT['xr'] == 1: o += [salu('s_bfe_u32', sXR, S(2), 0x40003), salu('s_lshl_b32', sXR, sXR, 14)]
    if OPT['xr'] == 2: o += [salu('s_and_b32', sXR, S(2), 15), salu('s_lshl_b32', sXR, sXR, 14)]
    if OPT['xr'] == 3: o += [salu('s_lshr_b32', sXR, S(2), 4), salu('s_xor_b32', sXR, sXR, S(2)), salu('s_and_b32', sXR, sXR, 15), salu('s_lshl_b32', sXR, sXR, 14)]
    if not LIN: o += [salu('s_lshr_b32', sT0, sXR, 14)] + s_scat(sXR, 't', sT0, sT1)
    o += [s_mov(sKOFF, mp(2)), s_mov(sVOFF, mp(OPT['la'] - 1)), s_mov(sITEM, 0), s_mov(sFH, 0), s_mov(sCNT, 0), s_mov(sTG, 32768), s_mov(sEND, mp(15 + OPT['la'])),
          salu('s_add_u32', sKM, sW4K, 32768 if OPT['la'] == 4 else 49152), salu('s_lshl_b32', sOA[0], sH, 12 if OPT['s16'] else 13), salu('s_add_u32', sOA[1], sOA[0], 2 * OU)]
    c_scale = math.log2(math.e) / math.sqrt(128.0)
    o += [s_mov(sHI, f2u(2.0 ** 40)), s_mov(sLO, f2u(2.0 ** -40)), s_mov(sSCALE[0], f2u(c_scale)), s_mov(sSCALE[1], f2u(c_scale))]
    o += [s_cmp('s_cmp_eq_u32', sW, 3), csel(sT0, f2u(-1.0e30), 0), csel(sPAD, f2u(1.0), 0)] + [valu('v_mov_b32', vCI[i], sT0) for i in range(4)]
    pg = posn('g')
    if pg[1] == pg[0] + 1: o += [valu('v_lshlrev_b32', t0, pg[0], g)]
    else: o += [valu('v_and_b32', t0, 1, g), valu('v_lshlrev_b32', t0, pg[0], t0), valu('v_lshrrev_b32', t3, 1, g), valu('v_lshl_add_u32', t0, t3, pg[1], t0)]
    if posn('w') == [12, 13]: o += [valu('v_add_u32', t0, sW4K, t0)]
    else: o += s_scat(sT0, 'w', sW, sT1) + [valu('v_add_u32', t0, sT0, t0)]
    for n in range(4):
        o += [valu('v_add_u32', t3, 4 * n, g), valu('v_xor_b32', t3, t3, q), valu('v_lshl_add_u32', vKd[n], t3, 4, t0)]
        if scat('n', n) != 1024 * n: o += [valu('v_add_u32', vKd[n], scat('n', n) - 1024 * n, vKd[n])]
    o += [valu('v_lshlrev_b32', t3, 1, g), valu('v_xor_b32', t3, t3, q), valu('v_lshl_add_u32', vVd[0], t3, 4, t0), valu('v_xor_b32', vVd[1], 128, vVd[0])]
    if scat('n', 1) != 1024: o += [valu('v_add_u32', vVd[1], scat('n', 1) - 1024, vVd[1])]
    if OPT['tch']:
        assert pg == [8, 9]
        pn = posn('n')
        o += [valu('v_and_b32', t3, 1, g), valu('v_lshlrev_b32', t3, pn[0], t3), valu('v_lshl_add_u32', t3, q, 6, t3), valu('v_lshrrev_b32', vTC, 1, g),
              valu('v_lshl_add_u32', vTC, vTC, pn[1], t3), valu('v_add_u32', vTC, sT0, vTC), s_mov(sTC, mp(OPT['t0']))]
    o += [valu('v_lshrrev_b32', t2, 1, q), valu('v_xor_b32', t2, t2, g), valu('v_lshlrev_b32', t1, 7, q), valu('v_add_u32', t1, sW4K, t1),
          valu('v_lshl_add_u32', t1, t2, 4, t1), valu('v_xor_b32', t3, 64, t1)]
    for part in range(2): o += [valu('v_add_u32', vXr[part][0], XBASE[0][part], t1), valu('v_add_u32', vXr[part][1], XBASE[0][part], t3)]
    o += [valu('v_xor_b32', t2, g, q), valu('v_lshlrev_b32', t1, 8, q), valu('v_lshl_add_u32', vKr[0], t2, 4, t1)]
    for s in range(1, 4): o.append(valu('v_xor_b32', vKr[s], 64 * s, vKr[0]))
    o += [valu('v_lshrrev_b32', r, 2, q), valu('v_and_b32', c, 3, l), valu('v_lshl_add_u32', t0, g, 2, r), valu('v_and_b32', t2, 7, t0),
          valu('v_lshlrev_b32', t1, 8, t0), valu('v_lshl_add_u32', t1, t2, 5, t1), valu('v_lshl_add_u32', t1, c, 3, t1), valu('v_add_u32', vVr[0], 65536, t1)]
    for dt in range(1, 8): o.append(valu('v_xor_b32', vVr[dt], 32 * dt, vVr[0]))
    o += [valu('v_lshl_add_u32', t0, g, 3, r), valu('v_lshlrev_b32', t0, 9, t0), valu('v_and_b32', t1, 1, c), valu('v_lshl_add_u32', t0, t1, 3, t0),
          valu('v_and_b32', t1, 2, c), valu('v_and_b32', t2, 1, r), valu('v_or_b32', t1, t1, t2), valu('v_and_b32', t2, 2, r), valu('v_lshl_or_b32', t1, t2, 1, t1),
          valu('v_and_b32', t2, 1, g), valu('v_lshl_or_b32', t1, t2, 3, t1), valu('v_lshl_add_u32', t0, t1, 4, t0), valu('v_add_u32', vWr[0], 131072, t0)]
    for i in range(1, 8): o.append(valu('v_xor_b32', vWr[i], (4 * (i // 2) + i % 2) * 16, vWr[0]))
    o += [valu('v_lshrrev_b32', t0, 5, l), valu('v_bfe_u32', t1, l, 1, 1), v_cmp('v_cmp_eq_u32', t0, t1), valu('v_mov_b32', t2, 0x3f803f80), valu('v_and_b32', t3, 1, l),
          valu('v_cndmask_b32', t2, 0, t2, VCC), valu('v_mul_u32_u24', t3, 0xaaaa, t3), valu('v_add_u32', vIDX, 0x4444, t3)]
    o += [valu('v_accvgpr_write_b32', aONE[i], t2) for i in range(4)]
    if OPT['s16']:
        o += [salu('s_lshl_b32', sPM0, sW, 13), salu('s_add_u32', sPM0, sPM0, 131072), valu('v_lshl_add_u32', t0, g, 2, r), valu('v_mul_u32_u24', t0, 96, t0),
              valu('v_mul_u32_u24', t1, 24, c), valu('v_add3_u32', t0, t0, t1, sPM0),
              valu('v_lshlrev_b32', vT, 4, l), valu('v_accvgpr_write_b32', aPr, t0), valu('v_subrev_u32', t0, sPM0, t0), valu('v_add_u32', t0, sW4K, t0),
              valu('v_accvgpr_write_b32', aPq, t0)]
        for k in range(3):
            o += [valu('v_add_u32', t0, 64 * k, l), valu('v_mul_u32_u24', t1, 171, t0), valu('v_lshrrev_b32', t1, 10, t1),
                  valu('v_mul_u32_u24', t2, 6, t1), valu('v_sub_u32', t2, t0, t2),
                  valu('v_mul_u32_u24', t1, 1152, t1), valu('v_lshl_add_u32', t1, t2, 4, t1), valu('v_subrev_u32', t1, 1024 * k, t1),
                  valu('v_accvgpr_write_b32', aPd[k], t1)]
        o += [smul(sT1, sB, 15), salu('s_lshl2_add_u32', sT1, sW, sT1), salu('s_lshl_b32', sT1, sT1, 17), valu('v_add_u32', vO[0], sT1, vT),
              s_mov(sT2, 3 * 131072), s_cmp('s_cmp_eq_u32', sW, 3), I('s_cselect_b32', f"s_cselect_b32 {sT1}, {HUGE}, {sT2}", 'salu', [SCC, sT2], [sT1]),
              valu('v_add_u32', vO[1], 131072, vO[0]), valu('v_add_u32', vO[2], 2 * 131072, vO[0]), valu('v_add_u32', vO[3], sT1, vO[0])]
        o += [salu('s_and_b32', sT0, S(2), 3), salu('s_lshl_b32', sT0, sT0, 5), salu('s_lshr_b32', sT1, S(2), 3), salu('s_add_u32', sT0, sT0, sT1),
              smul(sPU[0], sT0, 32 * 1152), smul(sT1, sW, 288), salu('s_add_u32', sPU[0], sPU[0], sT1),
              salu('s_add_u32', sPU[1], sPU[0], 96), salu('s_add_u32', sPU[2], sPU[0], 192), smul(sT0, sT0, 6144), smul(sT1, sW, 3)]
        for s in range(3):
            o += [salu('s_lshr_b32', sT2, sT1, 1), smul(sT2, sT2, 786432), salu('s_add_u32', sPV[s], sT0, sT2),
                  salu('s_and_b32', sT2, sT1, 1), smul(sT2, sT2, 3072), salu('s_add_u32', sPV[s], sPV[s], sT2)] + ([salu('s_add_u32', sT1, sT1, 1)] if s < 2 else [])
    else:
        o += [salu('s_lshl_b32', sPM0, sW, 13), salu('s_add_u32', sPM0, sPM0, 131072), valu('v_lshl_add_u32', t0, t0, 2, r), valu('v_mul_u32_u24', t0, 192, t0),
              valu('v_and_b32', t1, 1, g), valu('v_lshl_add_u32', t1, t1, 2, c), valu('v_mul_u32_u24', t1, 24, t1), valu('v_add3_u32', t0, t0, t1, sPM0),
              valu('v_lshlrev_b32', vT, 4, l), valu('v_accvgpr_write_b32', aPr, t0), valu('v_subrev_u32', t0, sPM0, t0), valu('v_add_u32', t0, sW4K, t0),
              valu('v_accvgpr_write_b32', aPq, t0)]
        for k in range(3):
            o += [valu('v_add_u32', t0, 64 * k, l), valu('v_mul_u32_u24', t1, 171, t0), valu('v_lshrrev_b32', t1, 11, t1),
                  valu('v_mul_u32_u24', t2, 12, t1), valu('v_sub_u32', t2, t0, t2), valu('v_and_b32', t3, 8, t1), valu('v_add_u32', t1, t1, t3),
                  valu('v_mul_u32_u24', t1, 1152, t1), valu('v_lshl_add_u32', t1, t2, 4, t1), valu('v_subrev_u32', t1, 1024 * k, t1),
                  valu('v_accvgpr_write_b32', aPd[k], t1)]
        o += [salu('s_lshl_b32', sT0, sW, 6), valu('v_add_u32', t0, sT0, q), smul(sT1, sB, 240)]
        for qt in range(4):
            o += [valu('v_add_u32', t1, 16 * qt, t0),
                  valu('v_add_u32', t2, sT1, t1), valu('v_lshrrev_b32', t3, 5, t2), valu('v_lshlrev_b32', t3, 18, t3),
                  valu('v_and_b32', t2, 31, t2), valu('v_lshl_add_u32', t3, t2, 4, t3), valu('v_lshl_add_u32', t3, g, 9, t3),
                  v_cmp('v_cmp_gt_u32', 240, t1), valu('v_mov_b32', t2, HUGE), s_nop(0),
                  valu('v_cndmask_b32', vO[qt], t2, t3, VCC)]
        o += [salu('s_and_b32', sT0, S(2), 3), salu('s_lshl_b32', sT0, sT0, 5), salu('s_lshr_b32', sT1, S(2), 3), salu('s_add_u32', sT0, sT0, sT1),
              salu('s_lshr_b32', sT2, sW, 1), salu('s_and_b32', sT1, sW, 1), smul(sPU[0], sT0, 32 * 1152), smul(sPU[1], sT2, 8 * 1152), smul(sPU[2], sT1, 576),
              salu('s_add_u32', sPU[0], sPU[0], sPU[1]), salu('s_add_u32', sPU[0], sPU[0], sPU[2]),
              salu('s_add_u32', sPU[1], sPU[0], 192), salu('s_add_u32', sPU[2], sPU[0], 384),
              salu('s_lshl1_add_u32', sT2, sT0, sT2), smul(sT2, sT2, 3072), smul(sPV[0], sT1, 3 * 786432), salu('s_add_u32', sPV[0], sPV[0], sT2),
              salu('s_add_u32', sPV[1], sPV[0], 786432), salu('s_add_u32', sPV[2], sPV[0], 2 * 786432)]
    rest, o = o[mark:], o[:mark]
    for i, x in enumerate(rest):
        if i % 12 == 0 and zero and x.kind != 'nop' and (not o or o[-1].kind != 'nop'): o.append(zero.pop(0))
        o.append(x)
    assert not zero
    return o + probe(2) + late + probe(3)

def code_fetch(lab, n, c, r=100, tid=V(0)):
    o = [raw(f's_getpc_b64 {c.sub(0, 2)}', 'salu', [], [c[0], c[1]]), label(lab), s_mov(c[3], 0x20000), raw(f's_mov_b32 {c[2]}, L_code_end-{lab}', 'salu', [], [c[2]]),
         valu('v_lshlrev_b32', V(r), 7, tid)]
    if n > 8:
        o += [v_cmp('v_cmp_gt_u32', n, tid), salu('s_bfe_u32', sT0, S(2), 0x30003), smul(sT0, sT0, 128 * n), valu('v_add_u32', V(r), sT0, V(r)),
              I('v_cndmask_b32', f'v_cndmask_b32_e32 {V(r)}, {V(r + 1)}, {V(r)}, vcc', 'valu', [VCC, V(r), V(r + 1)], [V(r)])]
        o.insert(4, valu('v_mov_b32', V(r + 1), HUGE))
        n = 1
    for i in range(n): o += ([valu('v_add_u32', V(r), 32768, V(r))] if i else []) + [buf_load('buffer_load_dword', V(r + 1 + i), V(r), c, 0, 0, OPT['cf'])]
    return o
def kernel1():
    qs, qtr, lim = q_loop()
    head = k1_setup() + [s_mov(sLIM, lim)] + ([] if OPT['trk'] else [s_mov(S(6), 0), s_mov(S(7), 1024), s_mov(S(10), 0), s_mov(S(11), scat('n', 1))]) + stamp(0)
    if OPT['stamp']:
        head[2:2] = [raw("s_memrealtime s[78:79]"), raw("s_waitcnt lgkmcnt(0)"), valu('v_mov_b32', V(31), S(78))]
        head += [valu('v_mov_b32', V(29), 0 if OPT['dbg'] else 60), raw("s_nop 0"), raw("buffer_store_dword v31, v29, s[72:75], s76 offen", 'vstore'), raw("s_nop 1")]
    if OPT['cpf'] and OPT['cpp']: head += code_fetch('L_here', OPT['cpf'], S(12, 4) if OPT['stamp'] else S(72, 4))
    elif OPT['cpf']:
        k = max(i for i, x in enumerate(head[:12]) if x.text.startswith('s_load')) + 1
        head[k:k] = code_fetch('L_here', OPT['cpf'], S(56, 4) if OPT['stamp'] else S(72, 4))
    head += [wait(vm=[Xn(0, 0), Xn(0, 1)])] + probe(4) + [rd_X(0, 0, qt) for qt in range(4)]
    head += [valu('v_xor_b32', vXr[0][0], 0xC000, vXr[0][0]), valu('v_xor_b32', vXr[1][0], 0x18000, vXr[1][0])]
    head += [wait(vm=['E1']), s_barrier()] + flat([rd_W(p, 0, 0, p) for p in range(4)]) + [wait(lg=[Wf(0), Wf(1)])] + probe(5) + probes_out(8)
    tail = [label('L_qtail')] + (istamp(32, sCNT, 0) + q_half(7, 0, True) + q_half(7, 1, True) if OPT['pl'] else []) + stamp(1) + q_tail() + stamp(2)
    def loop(skip):
        bodies, lab = [], 'L_atts' if skip else 'L_att'
        U = 4 if OPT['un'] else 1
        pos = [[] for _ in range(U)]
        for hd in range(2):
            for t in range(15 - hd * OPT['npl']):
                j = 32 * hd + 2 * t + 1
                bodies.append([label(lab)] * (t % U == 0) + istamp(48, sKOFF, 14) + period(j, skip=skip) + period(j + 1, skip=skip) + [s_cmp('s_cmp_lg_u32', sKOFF, sEND),
                              s_branch('s_cbranch_scc1', lab) if t % U == U - 1 else s_branch('s_cbranch_scc0', 'L_after')])
                pos[t % U].append(bodies[-1])
                if len(bodies) > 1: del REP[-2:]
        for k in range(U): rolled(f'{lab}{k}', pos[k])
        return bodies, flat(bodies[:U])
    bodies, text = loop(False)
    def pick(bit, lab): return [s_cmp('s_cmp_eq_u32', sW, 3), s_branch('s_cbranch_scc1', lab)] if OPT['sk'] & bit else []
    head += pick(2, 'L_qs'); tail += pick(1, 'L_atts')
    after = [label('L_after'), s_cmp('s_cmp_lg_u32', sITEM, 0), s_branch('s_cbranch_scc1', 'L_last')]
    mid = boundary()
    mid = mid[:1] + stamp(3) + mid[1:] + stamp(18) + pick(1, 'L_atts') + [s_branch('s_branch', 'L_att')]
    last = final()
    last = last[:1] + stamp(19) + last[1:] + [label('L_k1_end'), raw('s_endpgm')]
    al = [raw(f".p2align {OPT['al']}", 'label')] if OPT['al'] else []
    static = head + al + qs + tail + al + text + after + mid + last
    trace = [head + qtr + tail + flat(bodies[:15]) + after + mid + flat(bodies[15:]) + after + last]
    if OPT['sk']:
        if OPT['sk'] & 2:
            assert not OPT['trk'] and OPT['pl']
            qs, qtr, _ = q_loop(True); static += al + qs + [s_branch('s_branch', 'L_qtail')]
        if OPT['sk'] & 1: bodies, text = loop(True); static += al + text + [s_branch('s_branch', 'L_after')]
        trace.append(head + qtr + tail + flat(bodies[:15]) + after + mid + flat(bodies[15:]) + after + last)
    tramps = []
    for i in sites:
        tramps += [label(f"L_tramp{i}"), raw(f"s_call_b64 {sRET}, L_fb", 'branch', [], [sRET])]
        if OPT['pe'] == 3 and i == 0: tramps += [s_nop(1)] + flat(pack_in2([0, 1], [V(48), V(49), V(50)])) + [raw('s_waitcnt vmcnt(0)')]
        tramps += [s_branch('s_branch', f"L_ret{i}")]
    return static, trace, tramps + fallback()

def descriptor(name, vgpr, accum, sgpr=96):
    return f""".amdhsa_kernel {name}
  .amdhsa_next_free_vgpr {vgpr}
  .amdhsa_next_free_sgpr {sgpr}
  .amdhsa_accum_offset {accum}
  .amdhsa_group_segment_fixed_size 0
  .amdhsa_kernarg_size 104
  .amdhsa_user_sgpr_count 2
  .amdhsa_user_sgpr_kernarg_segment_ptr 1
  .amdhsa_system_sgpr_workgroup_id_x 1
.end_amdhsa_kernel
"""

def finish(static, trace, rare, name):
    trs = [expand(t) for t in (trace if isinstance(trace[0], list) else [trace])]
    val = {}
    for tr in trs:
        resolve_waits(tr)
        for x in tr:
            if x.kind == 'wait':
                o = val.get(id(x), x.val)
                val[id(x)] = tuple(b if a is None else a if b is None else min(a, b) for a, b in zip(o, x.val))
    errs = []
    for tr in trs:
        for x in tr:
            if x.kind == 'wait': x.val = val[id(x)]
    for tr in trs: errs += check(tr, name)
    if rare:
        resolve_waits(rare)
        errs += check(rare, name + "_rare")
    seen = set()
    for e in errs:
        k = e.split('] ', 1)[1]
        if k not in seen and len(seen) < 40: print("CHECK:", e, file=sys.stderr)
        seen.add(k)
    if errs: print(f"{len(errs)} check errors in {name}", file=sys.stderr)
    return render(static) + "\n" + (render(rare) if rare else "")

def main():
    ref = open(os.path.join(os.path.dirname(os.path.abspath(__file__)), '..', 'cdna_kernels', NAME + '.s.ref')).read().splitlines()
    hdr = [l for l in ref if l.startswith(';') and '@launch' not in l and 'Override launch' not in l and 'grid=ceil' not in l]
    st, tr, rare = kernel1()
    if OPT['rep']:
        for r in REP: print(len(r), sum(max(0, x - 8) for x in r), r, file=sys.stderr)
    out = hdr[:]
    out.append("; OLAY=17" if OPT["s16"] else "; OLAY=16")
    if OPT['k1']: out.append("; @launch kernel=attn_kernel grid=(256,1,1) block=(256,1,1) lds=163840")
    import gen4, gen7k2
    if OPT['s16']: gen4 = gen7k2
    if OPT['k2']: out.append(f"; @launch kernel=oproj_kernel grid=(240,1,1) block=(256,1,1) lds={gen4.LDS}")
    out += ['.amdgcn_target "amdgcn-amd-amdhsa--gfx950"', '.text', '.globl attn_kernel', '.p2align 8', '.type attn_kernel,@function', 'attn_kernel:']
    out.append(finish(st, tr, rare, 'k1'))
    if OPT['k2']:
        if OPT['dbg']: OPT['stamp'] = 0
        k2 = gen4.kernel2(OPT)
        if OPT['cp2']: k2[2:2] = code_fetch('L_here2', 1, S(44, 4), 24)
        out += ['.globl oproj_kernel', '.p2align 8', '.type oproj_kernel,@function', 'oproj_kernel:']
        out.append(finish(k2, k2, None, 'k2'))
    out += ['L_code_end:'] * (OPT['cpf'] + OPT['cp2'] > 0) + ['.section .rodata,"a"', '.p2align 6', descriptor('attn_kernel', 512, 256, 102)]
    if OPT['k2']:
        out += ['.p2align 6', descriptor('oproj_kernel', 512, 256)]
    open(sys.argv[1], 'w').write("\n".join(out))

if __name__ == '__main__':
    main()
```
